```python
import torch

def _softmax(x, axis=-1):
    return torch.softmax(x, dim=axis)

def _gelu(x):
    return torch.nn.functional.gelu(x, approximate='tanh')

def _silu(x):
    return torch.nn.functional.silu(x)

def _sigmoid(x):
    return torch.sigmoid(x)

def _layernorm(x, axis=-1, eps=1e-05):
    m = x.mean(dim=axis, keepdim=True)
    v = x.var(dim=axis, keepdim=True, unbiased=False)
    return (x - m) / torch.sqrt(v + eps)

def _scatter_add(tgt, idx, src, axis=0):
    return tgt.clone().index_add_(axis, idx, src)

def _segment_sum(src, seg, n):
    out = torch.zeros((n,) + src.shape[1:], dtype=src.dtype)
    return out.index_add_(0, seg, src)

def _pad(x, pw):
    flat = tuple((v for pair in reversed(pw) for v in pair))
    return torch.nn.functional.pad(x, flat)
kernel_name = 'adaLN_cond__compressed_kv_cla__glu_gated_geglu__decode'

def setup_inputs():

    _w = lambda a: (lambda t: t.to(torch.bfloat16) if t.is_floating_point() else t)(torch.as_tensor(a))

    def _A_setup():
        B, H, Sq, Sk, D, M = (4, 32, 1, 4096, 128, 640)
        Dc = 4 * D
        return {'x': _w((lambda *s: torch.randn(*s, dtype=torch.bfloat16) * 0.1)(B, Sq, M)), 'c_kv': _w((lambda *s: torch.randn(*s, dtype=torch.bfloat16) * 6.4)(B, Sk, Dc)), 'w_q': _w((lambda *s: torch.randn(*s, dtype=torch.bfloat16) * 0.8)(M, H, D) * M ** (-0.5)), 'w_uk': _w((lambda *s: torch.randn(*s, dtype=torch.bfloat16) * 0.8)(Dc, H, D) * Dc ** (-0.5)), 'w_uv': _w((lambda *s: torch.randn(*s, dtype=torch.bfloat16) * 6.4)(Dc, H, D) * Dc ** (-0.5)), 'w_o': _w((lambda *s: torch.randn(*s, dtype=torch.bfloat16) * 6.4)(H, D, M) * (H * D) ** (-0.5))}
    _A_in = _A_setup()

    def _B_setup():
        B, S, Dm, Df = (4, 1, 640, 1728)
        return {'x': _w((lambda *s: torch.randn(*s, dtype=torch.bfloat16) * 0.1)(B, S, Dm)), 'w_gate': _w((lambda *s: torch.randn(*s, dtype=torch.bfloat16) * 12.8)(Dm, Df) * Dm ** (-0.5)), 'w_up': _w((lambda *s: torch.randn(*s, dtype=torch.bfloat16) * 12.8)(Dm, Df) * Dm ** (-0.5)), 'w_down': _w((lambda *s: torch.randn(*s, dtype=torch.bfloat16) * 12.8)(Df, Dm) * Df ** (-0.5))}
    _B_in = _B_setup()
    return {'A_x': _A_in['x'], 'A_c_kv': _A_in['c_kv'], 'A_w_q': _A_in['w_q'], 'A_w_uk': _A_in['w_uk'], 'A_w_uv': _A_in['w_uv'], 'A_w_o': _A_in['w_o'], 'B_x': _B_in['x'], 'B_w_gate': _B_in['w_gate'], 'B_w_up': _B_in['w_up'], 'B_w_down': _B_in['w_down'], 'c': _w((lambda *s: torch.randn(*s, dtype=torch.bfloat16) * 0.1)(4, 640) * 8.0), 'w_mod': _w((lambda *s: torch.randn(*s, dtype=torch.bfloat16) * 0.1)(640, 6 * 640) * 640 ** (-0.5) * 8.0)}

def reference(A_x, A_c_kv, A_w_q, A_w_uk, A_w_uv, A_w_o, B_x, B_w_gate, B_w_up, B_w_down, c, w_mod):

    def _A_ref(x, c_kv, w_q, w_uk, w_uv, w_o):
        B, Sq, M = (x.shape[0], x.shape[1], x.shape[2])
        Sk = c_kv.shape[1]
        H, D = (w_q.shape[1], w_q.shape[2])
        q = torch.einsum('bqm,mhd->bhqd', x, w_q)
        k = torch.einsum('bkc,chd->bhkd', c_kv, w_uk)
        v = torch.einsum('bkc,chd->bhkd', c_kv, w_uv)
        scores = torch.einsum('bhqd,bhkd->bhqk', q, k) * D ** (-0.5)
        off = Sk - Sq
        qi = torch.arange(Sq)[:, None]
        kj = torch.arange(Sk)[None, :]
        cmask = kj <= qi + off
        scores = torch.where(cmask[None, None], scores, -1000000000.0)
        p = _softmax(scores, axis=-1)
        ctx = torch.einsum('bhqk,bhkd->bhqd', p, v)
        return torch.einsum('bhqd,hdm->bqm', ctx, w_o)

    def _B_ref(x, w_gate, w_up, w_down):
        g = torch.einsum('bsd,df->bsf', x, w_gate)
        u = torch.einsum('bsd,df->bsf', x, w_up)
        h = _gelu(g) * u
        return torch.einsum('bsf,fd->bsd', h, w_down)
    x = A_x
    mod = (_silu(c) @ w_mod).reshape(c.shape[0], 6, 1, -1)
    sa, ca, ga, sb, cb, gb = (mod[:, 0].clone(), mod[:, 1].clone(), mod[:, 2].clone(), mod[:, 3].clone(), mod[:, 4].clone(), mod[:, 5].clone())
    h = _layernorm(x, axis=-1) * (1 + ca) + sa
    x = x + ga * _A_ref(h, A_c_kv, A_w_q, A_w_uk, A_w_uv, A_w_o)
    h = _layernorm(x, axis=-1) * (1 + cb) + sb
    x = x + gb * _B_ref(h, B_w_gate, B_w_up, B_w_down)
    return x
```

```python
import sys, struct

NAME = 'adaLN_cond__compressed_kv_cla__glu_gated_geglu__decode_kernel'

P_X, P_CKV, P_WQ, P_WUK, P_WUV, P_WO, P_BX, P_WG = 4, 6, 8, 10, 12, 14, 16, 18
P_WU, P_WD, P_C, P_WMOD, P_OUT, P_DBG, P_WS = 20, 22, 24, 26, 28, 30, 32
S_WAVE, S_XCD, S_IDX, S_TAG, S_TAG2, S_EP = 3, 34, 35, 36, 37, 38
S_STRIP = 39
S_LW = 40
S_J5 = 41
T0, T1, T2, T3, T4, T5 = 42, 43, 44, 45, 46, 47
S_EX = 48
S_CNT = 50
S_R = 51
S_M = 52
S_J = 54
S_K = 55
S_CB = 56
S_STAMP = 60

def sp(r): return 's[%d:%d]' % (r, r + 1)
def vr(r, n=1): return 'v%d' % r if n == 1 else 'v[%d:%d]' % (r, r + n - 1)

L_CKV = 0
L_S0 = 110592
L_S1 = 131072
L_QA = 131072
L_ACT = 151552; ACTP = 1344
L_XNT = 156928
L_PB = L_XNT
L_QB = L_XNT; QBP = 320
L_RED = 162048
LDS_BYTES = 163840
L_WUV = 0
L_RED4 = 131072
L_CC = 139264
L_WO = 0
L_ACT5 = 65536; ACT5P = 4160
L_WD = 0
L_ACT7 = 65536; ACT7P = 3648
L_WGU = 0

W_EPOCH = 0
W_E0 = 0x1000
W_E1 = 0x20000
W_F2 = 0x40000
W_E2 = 0x50000
W_F3 = 0x80000
W_ST3 = 0x81000
W_E3 = 0x100000
W_E4 = 0x600000
W_E5 = 0x620000
W_E6 = 0x630000
W_STAMP = 0x700000

SPIN_CAP = 1 << 18
LOG2E = 1.4426950408889634

def f2u(x): return struct.unpack('<I', struct.pack('<f', x))[0]
def fl(x): return '0x%08x' % f2u(x)

UID = [0]
class Prog:
    def __init__(self, stamps):
        self.o = []; self.nbar = 0; self.stamps = stamps
    def __call__(self, s):
        for line in s.strip('\n').split('\n'):
            line = line.strip()
            if line: self.o.append('    ' + line)
    def label(self, l): self.o.append(l + ':')
    def bar(self):
        self.nbar += 1; self('s_barrier')
    def newl(self, p):
        UID[0] += 1; return 'L_%s_%d' % (p, UID[0])
    def stamp(self, i):
        if self.stamps: self('s_memrealtime %s' % sp(S_STAMP + 2 * i))
    def text(self): return '\n'.join(self.o) + '\n'

def rowreduce(p, v, t, op='add'):
    o = 'v_%s_f32' % op
    p(f'''
    v_mov_b32 v{t}, v{v}
    s_nop 1
    v_permlane16_swap_b32 v{v}, v{t}
    s_nop 1
    {o} v{v}, v{v}, v{t}
    v_mov_b32 v{t}, v{v}
    s_nop 1
    v_permlane32_swap_b32 v{v}, v{t}
    s_nop 1
    {o} v{v}, v{v}, v{t}
    ''')

def allreduce(p, v, t, op='add'):
    o = 'v_%s_f32' % op
    for m in ('quad_perm:[1,0,3,2]', 'quad_perm:[2,3,0,1]', 'row_half_mirror', 'row_mirror'):
        p('s_nop 1')
        p('%s_dpp v%d, v%d, v%d %s row_mask:0xf bank_mask:0xf' % (o, v, v, v, m))
    p('s_nop 0')
    rowreduce(p, v, t, op)

def unpack(p, dlo, dhi, src):
    p('v_lshlrev_b32 v%d, 16, v%d' % (dlo, src))
    p('v_and_b32 v%d, 0xffff0000, v%d' % (dhi, src))

def poll_loop(p, loads, checks):
    l0 = p.newl('poll'); l1 = p.newl('polld')
    p('s_mov_b32 s%d, 0' % S_CNT)
    p.label(l0)
    for l in loads: p(l)
    p('s_waitcnt vmcnt(0)')
    p('s_mov_b64 %s, exec' % sp(S_M))
    for (v, s) in checks:
        p('v_cmp_eq_u32 vcc, s%d, v%d' % (s, v))
        p('s_and_b64 %s, %s, vcc' % (sp(S_M), sp(S_M)))
    p('s_add_u32 s%d, s%d, 1' % (S_CNT, S_CNT))
    p('s_cmp_eq_u64 %s, exec' % sp(S_M))
    p('s_cbranch_scc1 %s' % l1)
    p('s_cmp_lt_u32 s%d, %d' % (S_CNT, SPIN_CAP))
    p('s_cbranch_scc1 %s' % l0)
    p.label(l1)

def gemv_steps(p, nsteps, vA, vB, acc, regs, first=True, swap=False, strideA=64, strideB=1024, offA=0, offB=0):
    for i in range(nsteps):
        a = regs + 8 * i; b = a + 4
        assert offB + i * strideB + 512 < 65536 and offA + i * strideA < 65536
        p('ds_read_b128 %s, v%d offset:%d' % (vr(a, 4), vA, offA + i * strideA))
        p('ds_read_b64_tr_b16 %s, v%d offset:%d' % (vr(b, 2), vB, offB + i * strideB))
        p('ds_read_b64_tr_b16 %s, v%d offset:%d' % (vr(b + 2, 2), vB, offB + i * strideB + 512))
    for i in range(nsteps):
        a = regs + 8 * i; b = a + 4
        p('s_waitcnt lgkmcnt(%d)' % min(15, 3 * (nsteps - 1 - i)))
        c = '0' if (first and i == 0) else vr(acc, 4)
        x, y = (vr(b, 4), vr(a, 4)) if swap else (vr(a, 4), vr(b, 4))
        p('v_mfma_f32_16x16x32_bf16 %s, %s, %s, %s' % (vr(acc, 4), x, y, c))

def dma_seq(p, ptr, s_off, step, s_lds, lds_const, count, voffs, skip_last_if=None):
    p(f'''
    s_add_u32 s{T0}, s{ptr}, s{s_off}
    s_addc_u32 s{T1}, s{ptr+1}, 0
    s_add_u32 m0, s{s_lds}, {lds_const}
    ''')
    for j in range(count):
        lab = None
        if skip_last_if and j == count - 1:
            lab = p.newl('dskip')
            p(skip_last_if); p('s_cbranch_scc1 %s' % lab)
        p('s_nop 0')
        p('global_load_lds_dwordx4 v%d, %s' % (voffs[j % len(voffs)], sp(T0)))
        if lab: p.label(lab)
        if j + 1 < count:
            p(f'''
            s_add_u32 s{T0}, s{T0}, {step}
            s_addc_u32 s{T1}, s{T1}, 0
            s_add_u32 m0, m0, 1024
            ''')

def ckv_f_const(j):
    k2 = j & 1; k3 = (j >> 1) & 1
    return (((k2 ^ k3) << 3) | k3)

def permaddr(p, dst, m, t1, t2):
    p(f'''
    v_and_b32 v{dst}, 0xffffffe0, v{m}
    v_lshlrev_b32 v{dst}, 1, v{dst}
    v_bfe_u32 v{t1}, v{m}, 2, 2
    v_lshlrev_b32 v{t1}, 4, v{t1}
    v_bfe_u32 v{t2}, v{m}, 4, 1
    v_lshlrev_b32 v{t2}, 3, v{t2}
    v_add3_u32 v{dst}, v{dst}, v{t1}, v{t2}
    v_and_b32 v{t1}, 3, v{m}
    v_lshlrev_b32 v{t1}, 1, v{t1}
    v_add_u32 v{dst}, v{dst}, v{t1}
    ''')

def granaddr(p, dst, gi, t1):
    p(f'''
    v_lshrrev_b32 v{dst}, 3, v{gi}
    v_lshlrev_b32 v{dst}, 6, v{dst}
    v_and_b32 v{t1}, 3, v{gi}
    v_lshl_add_u32 v{dst}, v{t1}, 4, v{dst}
    v_bfe_u32 v{t1}, v{gi}, 2, 1
    v_lshl_add_u32 v{dst}, v{t1}, 3, v{dst}
    ''')

def exec_set(p, mask): p(f's_mov_b64 {sp(S_EX)}, exec\ns_mov_b64 exec, {mask}')
def exec_restore(p): p(f's_mov_b64 exec, {sp(S_EX)}')

V_LANE, V_L16, V_G, V_TID = 0, 1, 2, 3
V_TRP = 9
V_REDR = 26
V_REDW = 27
ACC = 28

def red_write(p):
    p('s_nop 7')
    exec_set(p, '0xffff')
    p(f'ds_write_b128 v{V_REDW}, v[28:31]')
    exec_restore(p)
    p('s_waitcnt lgkmcnt(0)')

def red_write_all(p):
    pass

def red_sum(p):
    p(f'''
    ds_read_b128 v[28:31], v{V_REDR}
    ds_read_b128 v[64:67], v{V_REDR} offset:256
    ds_read_b128 v[68:71], v{V_REDR} offset:512
    ds_read_b128 v[72:75], v{V_REDR} offset:768
    s_waitcnt lgkmcnt(0)
    v_pk_add_f32 v[28:29], v[28:29], v[64:65]
    v_pk_add_f32 v[30:31], v[30:31], v[66:67]
    v_pk_add_f32 v[68:69], v[68:69], v[72:73]
    v_pk_add_f32 v[70:71], v[70:71], v[74:75]
    v_pk_add_f32 v[28:29], v[28:29], v[68:69]
    v_pk_add_f32 v[30:31], v[30:31], v[70:71]
    ''')

def store_granule(p, vaddr):
    p(f'''
    v_cvt_pk_bf16_f32 v64, v28, v29
    v_cvt_pk_bf16_f32 v65, v30, v31
    v_mov_b32 v66, s{S_TAG}
    v_mov_b32 v67, s{S_TAG2}
    global_store_dwordx4 v{vaddr}, v[64:67], {sp(P_WS)} sc1
    ''')

def gen(stamps=False):
    UID[0] = 0
    C = Prog(stamps); L = Prog(stamps); H = Prog(stamps)
    def bar():
        C.bar(); L.bar()
    H(f'''
    s_cmp_ge_u32 s2, 256
    s_cbranch_scc1 L_end
    s_load_dwordx16 s[4:19], s[0:1], 0
    s_load_dwordx8 s[20:27], s[0:1], 64
    s_load_dwordx4 s[28:31], s[0:1], 96
    s_load_dwordx2 s[32:33], s[0:1], 112
    v_lshrrev_b32 v1, 6, v0
    v_and_b32 v0, 63, v0
    s_and_b32 s{S_XCD}, s2, 7
    v_readfirstlane_b32 s{S_WAVE}, v1
    s_lshr_b32 s{S_IDX}, s2, 3
    s_lshl_b32 s{S_STRIP}, s{S_XCD}, 5
    s_add_u32 s{S_STRIP}, s{S_STRIP}, s{S_IDX}
    v_and_b32 v1, 15, v0
    v_lshrrev_b32 v2, 4, v0
    ''')
    H.stamp(0)
    H(f'''
    s_waitcnt lgkmcnt(0)
    s_cmp_ge_u32 s{S_WAVE}, 4
    s_cbranch_scc1 L_loader
    ''')
    L.label('L_loader')
    L(f'''
    s_sub_u32 s{S_LW}, s{S_WAVE}, 4
    v_lshrrev_b32 v3, 1, v0
    v_and_b32 v4, 1, v0
    v_lshlrev_b32 v4, 4, v4
    s_min_u32 s{T4}, s{S_IDX}, 29
    s_mul_i32 s{T5}, s{S_XCD}, 30
    s_add_u32 s{T4}, s{T4}, s{T5}
    s_lshl_b32 s{T4}, s{T4}, 5
    s_mul_i32 s{T5}, s{S_LW}, {5*32*7680}
    s_add_u32 s{T4}, s{T4}, s{T5}
    s_mul_i32 s{T5}, s{S_LW}, 5120
    s_movk_i32 s{S_J}, 7680
    v_mul_lo_u32 v5, v3, s{S_J}
    v_add_u32 v5, v5, v4
    ''')
    dma_seq(L, P_WMOD, T4, 32 * 7680, T5, L_S0, 5, [5])
    L(f'''
    s_lshl_b32 s{T4}, s{S_STRIP}, 5
    s_mul_i32 s{T2}, s{S_LW}, {5*32*8192}
    s_add_u32 s{T4}, s{T4}, s{T2}
    v_lshlrev_b32 v6, 13, v3
    v_add_u32 v6, v6, v4
    ''')
    dma_seq(L, P_WQ, T4, 32 * 8192, T5, L_S1, 5, [6])
    L(f'''
    s_lshr_b32 s{T4}, s{S_IDX}, 1
    s_lshl_b32 s{T5}, s{S_XCD}, 4
    s_add_u32 s{T4}, s{T4}, s{T5}
    s_lshl_b32 s{T4}, s{T4}, 17
    s_lshl_b32 s{T5}, s{S_LW}, 10
    s_add_u32 s{T4}, s{T4}, s{T5}
    s_add_u32 s56, s{P_CKV}, s{T4}
    s_addc_u32 s57, s{P_CKV+1}, 0
    s_mov_b32 s58, s{T5}
    s_lshl_b32 s{T5}, s{S_LW}, 1
    v_xor_b32 v7, s{T5}, v0
    ''')
    for q in range(4):
        L(f'v_xor_b32 v{8+q}, {ckv_f_const(q)}, v7')
        L(f'v_lshlrev_b32 v{8+q}, 4, v{8+q}')
    def ckv_rows(j0, j1):
        for j in range(j0, j1):
            L(f'''
            s_add_u32 m0, s58, {j*4096}
            s_nop 0
            global_load_lds_dwordx4 v{8+(j%4)}, s[56:57]
            s_add_u32 s56, s56, 4096
            s_addc_u32 s57, s57, 0
            ''')
    ckv_rows(0, 27)
    L('s_waitcnt vmcnt(32)')
    L.stamp(1)

    C(f'''
    s_load_dword s{S_EP}, {sp(P_WS)}, 0
    s_mul_i32 s{T0}, s{S_WAVE}, 1280
    v_lshlrev_b32 v4, 2, v0
    v_add_u32 v4, s{T0}, v4
    ''')
    for i in range(5): C(f'global_load_dword v{10+i}, v4, {sp(P_C)} offset:{256*i}')
    for i in range(5): C(f'global_load_dword v{15+i}, v4, {sp(P_X)} offset:{256*i}')
    C(f'''
    s_lshr_b32 s{T0}, s{S_STRIP}, 3
    s_and_b32 s{T1}, s{S_STRIP}, 7
    s_lshl_b32 s{T1}, s{T1}, 6
    s_lshl_b32 s{T2}, s{S_WAVE}, 4
    s_add_u32 s{T1}, s{T1}, s{T2}
    v_add_u32 v5, s{T1}, v1
    v_lshlrev_b32 v5, 13, v5
    s_lshl_b32 s{T0}, s{T0}, 8
    v_lshlrev_b32 v6, 4, v2
    v_add3_u32 v5, v5, v6, s{T0}
    ''')
    for i in range(4): C(f'global_load_dwordx4 v[{32+4*i}:{35+4*i}], v5, {sp(P_WUK)} offset:{64*i}')
    C(f'''
    v_lshlrev_b32 v6, 6, v2
    v_bfe_u32 v7, v0, 1, 2
    v_lshlrev_b32 v7, 4, v7
    v_bfe_u32 v8, v0, 3, 1
    v_lshlrev_b32 v8, 3, v8
    v_and_b32 v9, 1, v0
    v_lshlrev_b32 v9, 2, v9
    v_add3_u32 v6, v6, v7, v8
    s_mul_i32 s{T0}, s{S_WAVE}, {ACTP}
    s_add_u32 s{T0}, s{T0}, {L_ACT}
    v_add3_u32 v6, v6, v9, s{T0}
    s_mov_b32 s{T1}, {fl(-LOG2E)}
    ''')
    for i in range(5):
        C(f's_waitcnt vmcnt({13-i})')
        unpack(C, 20, 21, 10 + i)
        for r in (20, 21):
            C(f'''
            v_mul_f32 v22, s{T1}, v{r}
            v_exp_f32 v22, v22
            s_nop 0
            v_add_f32 v22, 1.0, v22
            v_rcp_f32 v22, v22
            s_nop 0
            v_mul_f32 v{r}, v{r}, v22
            ''')
        C(f'v_cvt_pk_bf16_f32 v20, v20, v21')
        C(f'ds_write_b32 v6, v20 offset:{256*i}')
    C('s_waitcnt vmcnt(4)')
    for i in range(5): unpack(C, 50 + 2 * i, 51 + 2 * i, 15 + i)
    C('v_add_f32 v20, v50, v51\nv_mul_f32 v21, v50, v50\nv_fmac_f32 v21, v51, v51')
    for i in range(2, 10):
        C(f'v_add_f32 v20, v20, v{50+i}\nv_fmac_f32 v21, v{50+i}, v{50+i}')
    allreduce(C, 20, 22); allreduce(C, 21, 22)
    C(f'''
    s_mov_b32 s{T1}, {fl(1.0/640)}
    v_mul_f32 v20, s{T1}, v20
    v_mul_f32 v21, s{T1}, v21
    v_fma_f32 v21, -v20, v20, v21
    v_add_f32 v21, {fl(1e-5)}, v21
    v_rsq_f32 v21, v21
    s_lshl_b32 s{T0}, s{S_WAVE}, 1
    s_add_u32 s{T0}, s{T0}, {L_XNT}
    v_lshlrev_b32 v7, 4, v0
    v_add_u32 v7, s{T0}, v7
    ''')
    for i in range(5):
        C(f'''
        v_sub_f32 v22, v{50+2*i}, v20
        v_sub_f32 v23, v{51+2*i}, v20
        v_mul_f32 v22, v22, v21
        v_mul_f32 v23, v23, v21
        v_cvt_pk_bf16_f32 v22, v22, v23
        ds_write_b16 v7, v22 offset:{1024*i}
        ds_write_b16_d16_hi v7, v22 offset:{1024*i+8}
        ''')
    C(f'''
    v_and_b32 v8, 3, v0
    v_mul_u32_u24 v8, {ACTP}, v8
    v_lshlrev_b32 v9, 4, v2
    s_mul_i32 s{T0}, s{S_WAVE}, 320
    s_add_u32 s{T0}, s{T0}, {L_ACT}
    v_add3_u32 v8, v8, v9, s{T0}
    v_lshlrev_b32 v9, 2, v2
    v_lshrrev_b32 v24, 2, v1
    v_add_u32 v9, v9, v24
    v_lshlrev_b32 v9, 5, v9
    v_and_b32 v24, 3, v1
    v_lshlrev_b32 v24, 3, v24
    v_add_u32 v9, v9, v24
    v_mov_b32 v60, v9
    s_mul_i32 s{T0}, s{S_WAVE}, 5120
    s_add_u32 s{T1}, s{T0}, {L_S0}
    v_add_u32 v25, s{T1}, v9
    s_add_u32 s{T1}, s{T0}, {L_S1}
    v_add_u32 v24, s{T1}, v9
    v_lshlrev_b32 v26, 4, v1
    v_add_u32 v26, {L_RED}, v26
    s_lshl_b32 s{T0}, s{S_WAVE}, 8
    v_add_u32 v27, s{T0}, v26
    s_lshl_b32 s{T0}, s{S_WAVE}, 6
    v_add_u32 v3, s{T0}, v0
    s_waitcnt lgkmcnt(0)
    s_add_u32 s{S_TAG}, s{S_EP}, 1
    s_not_b32 s{S_TAG2}, s{S_TAG}
    ''')
    C.stamp(1)
    bar()
    gemv_steps(C, 5, 8, 25, ACC, 64)
    red_write(C)
    bar()
    ckv_rows(27, 32)
    L('s_waitcnt vmcnt(32)')
    L.stamp(2)
    lskip = C.newl('p0skip')
    C(f'''
    s_cmp_lg_u32 s{S_WAVE}, 0
    s_cbranch_scc1 {lskip}
    s_cmp_ge_u32 s{S_IDX}, 30
    s_cbranch_scc1 {lskip}
    ''')
    exec_set(C, '0xffff')
    red_sum(C)
    C(f'''
    s_mul_i32 s{T0}, s{S_XCD}, 30
    s_add_u32 s{T0}, s{T0}, s{S_IDX}
    s_lshl_b32 s{T0}, s{T0}, 8
    s_add_u32 s{T0}, s{T0}, {W_E0}
    v_lshl_add_u32 v68, v1, 4, s{T0}
    ''')
    store_granule(C, 68)
    exec_restore(C)
    C.label(lskip)
    C.stamp(2)
    C(f'''
    v_lshlrev_b32 v4, 4, v3
    v_add_u32 v4, {W_E0}, v4
    v_add_u32 v5, 512, v3
    v_min_u32 v5, 639, v5
    v_lshlrev_b32 v6, 4, v5
    v_add_u32 v6, {W_E0}, v6
    v_add_u32 v7, {640*16}, v4
    v_add_u32 v10, {640*16}, v6
    v_add_u32 v11, 4096, v4
    v_add_u32 v12, 4096, v7
    v_lshlrev_b32 v13, 3, v3
    v_add_u32 v13, {L_XNT}, v13
    ds_read_b64 v[14:15], v13
    ds_read_b64 v[16:17], v13 offset:2048
    v_lshlrev_b32 v13, 3, v5
    v_add_u32 v13, {L_XNT}, v13
    ds_read_b64 v[18:19], v13
    ''')
    loads = [f'global_load_dwordx4 v[{64+4*i}:{67+4*i}], v{a}, {sp(P_WS)} sc1' for i, a in enumerate([4, 11, 6, 7, 12, 10])]
    checks = []
    for i in range(6): checks += [(66 + 4 * i, S_TAG), (67 + 4 * i, S_TAG2)]
    permaddr(C, 20, 3, 22, 23); C(f'v_add_u32 v20, {L_ACT}, v20')
    permaddr(C, 21, 5, 22, 23); C(f'v_add_u32 v21, {L_ACT}, v21')
    poll_loop(C, loads, checks)
    C.stamp(3)
    C('s_waitcnt lgkmcnt(0)')
    for ci, (xr, ar, off) in enumerate([(14, 20, 0), (16, 20, 512), (18, 21, 0)]):
        sa = 64 + 4 * ci; ca = 76 + 4 * ci
        for half in range(2):
            unpack(C, 90, 91, xr + half)
            unpack(C, 92, 93, sa + half)
            unpack(C, 94, 95, ca + half)
            C(f'''
            v_add_f32 v94, 1.0, v94
            v_add_f32 v95, 1.0, v95
            v_fma_f32 v90, v90, v94, v92
            v_fma_f32 v91, v91, v95, v93
            v_cvt_pk_bf16_f32 v90, v90, v91
            ds_write_b16 v{ar}, v90 offset:{off + (2*half)*ACTP}
            ds_write_b16_d16_hi v{ar}, v90 offset:{off + (2*half+1)*ACTP}
            ''')
    C('s_waitcnt lgkmcnt(0)')
    bar()
    gemv_steps(C, 5, 8, 24, ACC, 64)
    red_write(C)
    bar()
    lskip = C.newl('p1skip')
    C(f's_cmp_lg_u32 s{S_WAVE}, 0\ns_cbranch_scc1 {lskip}')
    exec_set(C, '0xffff')
    red_sum(C)
    C(f'''
    s_lshl_b32 s{T0}, s{S_STRIP}, 8
    s_add_u32 s{T0}, s{T0}, {W_E1}
    v_lshl_add_u32 v68, v1, 4, s{T0}
    ''')
    store_granule(C, 68)
    exec_restore(C)
    C.label(lskip)
    C.stamp(4)
    lskip = C.newl('p2skip')
    C(f'''
    s_cmp_ge_u32 s{S_WAVE}, 2
    s_cbranch_scc1 {lskip}
    s_lshr_b32 s{T0}, s{S_STRIP}, 3
    s_lshl_b32 s{T0}, s{T0}, 11
    s_add_u32 s{T0}, s{T0}, {W_E1}
    v_lshl_add_u32 v4, v3, 4, s{T0}
    ''')
    poll_loop(C, [f'global_load_dwordx4 v[64:67], v4, {sp(P_WS)} sc1'], [(66, S_TAG), (67, S_TAG2)])
    C(f'''
    v_lshlrev_b32 v5, 1, v3
    v_add_u32 v5, {L_QB}, v5
    ds_write_b16 v5, v64
    ds_write_b16_d16_hi v5, v64 offset:{QBP}
    ds_write_b16 v5, v65 offset:{2*QBP}
    ds_write_b16_d16_hi v5, v65 offset:{3*QBP}
    s_waitcnt lgkmcnt(0)
    ''')
    C.label(lskip)
    C.stamp(5)
    bar()
    C(f'''
    v_and_b32 v4, 3, v0
    v_mul_u32_u24 v4, {QBP}, v4
    v_lshlrev_b32 v5, 4, v2
    ''')
    C(f'''
    v_add_u32 v4, v4, v5
    v_add_u32 v4, {L_QB}, v4
    ds_read_b128 v[64:67], v4
    ds_read_b128 v[68:71], v4 offset:64
    ds_read_b128 v[72:75], v4 offset:128
    ds_read_b128 v[76:79], v4 offset:192
    ''')
    for i in range(4):
        C(f's_waitcnt lgkmcnt({3-i})')
        c = '0' if i == 0 else 'v[28:31]'
        C(f'v_mfma_f32_16x16x32_bf16 v[28:31], v[{32+4*i}:{35+4*i}], v[{64+4*i}:{67+4*i}], {c}')
    qscale = LOG2E / (128 ** 0.5)
    C(f'''
    s_lshr_b32 s{T0}, s{S_STRIP}, 3
    s_lshl_b32 s{T0}, s{T0}, 10
    s_and_b32 s{T1}, s{S_STRIP}, 7
    s_lshl_b32 s{T1}, s{T1}, 7
    s_add_u32 s{T0}, s{T0}, s{T1}
    s_lshl_b32 s{T1}, s{S_WAVE}, 5
    s_add_u32 s{T0}, s{T0}, s{T1}
    s_add_u32 s{T0}, s{T0}, {W_E2}
    v_lshlrev_b32 v4, 15, v1
    v_lshlrev_b32 v5, 3, v2
    v_add3_u32 v4, v4, v5, s{T0}
    s_mov_b32 s{T1}, {fl(qscale)}
    v_cmp_gt_u32 vcc, 4, v1
    s_nop 1
    v_mul_f32 v28, s{T1}, v28
    v_mul_f32 v29, s{T1}, v29
    v_mul_f32 v30, s{T1}, v30
    v_mul_f32 v31, s{T1}, v31
    v_cvt_pk_bf16_f32 v64, v28, v29
    v_cvt_pk_bf16_f32 v65, v30, v31
    s_and_saveexec_b64 {sp(S_EX)}, vcc
    global_store_dwordx2 v4, v[64:65], {sp(P_WS)} sc1
    s_mov_b64 exec, {sp(S_EX)}
    s_waitcnt vmcnt(0)
    ''')
    bar()
    def flag_store(p, s_off):
        p(f'v_mov_b32 v4, s{s_off}\nv_mov_b32 v5, s{S_TAG}')
        exec_set(p, '1')
        p(f'global_store_dword v4, v5, {sp(P_WS)} sc1')
        exec_restore(p)
    lskip = C.newl('p2f')
    C(f'''
    s_cmp_lg_u32 s{S_WAVE}, 0
    s_cbranch_scc1 {lskip}
    s_lshl_b32 s{T0}, s{S_STRIP}, 2
    s_add_u32 s{T0}, s{T0}, {W_F2}
    ''')
    flag_store(C, T0)
    C.label(lskip)
    C.stamp(6)
    C(f'''
    s_and_b32 s{S_J}, s{S_IDX}, 1
    s_lshl_b32 s{T0}, s{S_J}, 9
    s_add_u32 s{T0}, s{T0}, {W_F2}
    v_lshl_add_u32 v4, v0, 3, s{T0}
    ''')
    poll_loop(C, [f'global_load_dwordx2 v[64:65], v4, {sp(P_WS)} sc1'], [(64, S_TAG), (65, S_TAG)])
    C.stamp(7)
    C(f'''
    s_lshr_b32 s{T0}, s{S_XCD}, 1
    s_lshl_b32 s{T0}, s{T0}, 15
    s_lshl_b32 s{T1}, s{S_J}, 14
    s_add_u32 s{T0}, s{T0}, s{T1}
    s_lshl_b32 s{T1}, s{S_WAVE}, 12
    s_add_u32 s{T0}, s{T0}, s{T1}
    s_add_u32 s{T0}, s{T0}, {W_E2}
    s_add_u32 s{T2}, s{P_WS}, s{T0}
    s_addc_u32 s{T3}, s{P_WS+1}, 0
    s_lshr_b32 s{T4}, s{S_WAVE}, 1
    s_and_b32 s{T5}, s{S_WAVE}, 1
    s_xor_b32 s{T5}, s{T5}, s{T4}
    s_lshl_b32 s{T5}, s{T5}, 3
    s_or_b32 s{T5}, s{T5}, s{T4}
    v_xor_b32 v4, s{T5}, v0
    s_add_u32 m0, s{T1}, {L_QA}
    ''')
    for i in range(4):
        C(f'''
        v_xor_b32 v5, {i<<1}, v4
        v_lshlrev_b32 v5, 4, v5
        global_load_lds_dwordx4 v5, s[{T2}:{T3}] offset:{1024*i} sc1
        ''')
    C('s_waitcnt vmcnt(0)')
    L('s_waitcnt vmcnt(0)')
    L.stamp(3)
    bar()
    C.stamp(8)
    C(f'''
    v_and_b32 v4, 3, v1
    v_lshlrev_b32 v4, 1, v4
    v_bfe_u32 v5, v1, 3, 1
    v_bfe_u32 v6, v1, 2, 1
    v_xor_b32 v6, v6, v5
    v_lshlrev_b32 v6, 3, v6
    v_or3_b32 v4, v4, v5, v6
    v_xor_b32 v4, v4, v2
    v_lshlrev_b32 v4, 4, v4
    v_lshl_add_u32 v4, v1, 10, v4
    s_lshl_b32 s{T0}, s{S_WAVE}, 15
    v_add_u32 v5, s{T0}, v4
    v_add_u32 v4, {L_QA}, v4
    ''')
    for q in range(4):
        C(f'v_xor_b32 v{8+q}, {q*64}, v4')
        C(f'v_xor_b32 v{12+q}, {q*64}, v5')
    for ks in range(16):
        C(f'ds_read_b128 v[{64+4*ks}:{67+4*ks}], v{8+ks%4} offset:{(ks//4)*256}')
    def afrag(ks, t): return 128 + ((ks % 4) * 2 + t) * 4 + (32 if (ks // 4) % 2 else 0)
    def issueA(ks):
        for t in range(2):
            C(f'ds_read_b128 {vr(afrag(ks, t), 4)}, v{12+ks%4} offset:{(ks//4)*256 + t*16384}')
    for ks in range(8): issueA(ks)
    for ks in range(16):
        issued = min(16, (ks // 4) * 4 + 8)
        C(f's_waitcnt lgkmcnt({min(15, 2*(issued - ks - 1))})')
        for t in range(2):
            c = '0' if ks == 0 else vr(28 + 4 * t, 4)
            C(f'v_mfma_f32_16x16x32_bf16 {vr(28+4*t, 4)}, {vr(afrag(ks, t), 4)}, v[{64+4*ks}:{67+4*ks}], {c}')
        if ks % 4 == 3 and ks + 5 < 16:
            for k2 in range(ks + 5, ks + 9): issueA(k2)
    C(f'''
    s_nop 7
    v_max3_f32 v16, v28, v29, v30
    v_max3_f32 v16, v16, v31, v32
    v_max3_f32 v16, v16, v33, v34
    v_max_f32 v16, v16, v35
    ''')
    rowreduce(C, 16, 17, 'max')
    C(f'''
    v_lshlrev_b32 v18, 2, v1
    v_add_u32 v18, {L_RED}, v18
    s_lshl_b32 s{T0}, s{S_WAVE}, 6
    v_add_u32 v19, s{T0}, v18
    ds_write_b32 v19, v16
    s_waitcnt lgkmcnt(0)
    ''')
    bar()
    C(f'''
    ds_read_b32 v20, v18
    ds_read_b32 v21, v18 offset:64
    ds_read_b32 v22, v18 offset:128
    ds_read_b32 v23, v18 offset:192
    s_waitcnt lgkmcnt(0)
    v_max3_f32 v16, v20, v21, v22
    v_max_f32 v16, v16, v23
    ''')
    for i in range(8): C(f'v_sub_f32 v{28+i}, v{28+i}, v16')
    for i in range(8): C(f'v_exp_f32 v{28+i}, v{28+i}')
    C(f'''
    s_nop 0
    v_add_f32 v17, v28, v29
    v_add_f32 v20, v30, v31
    v_add_f32 v21, v32, v33
    v_add_f32 v22, v34, v35
    v_cvt_pk_bf16_f32 v56, v28, v29
    v_cvt_pk_bf16_f32 v57, v30, v31
    v_cvt_pk_bf16_f32 v58, v32, v33
    v_cvt_pk_bf16_f32 v59, v34, v35
    v_add_f32 v17, v17, v20
    v_add_f32 v21, v21, v22
    v_add_f32 v17, v17, v21
    v_lshlrev_b32 v20, 4, v0
    v_add_u32 v20, {L_PB}, v20
    s_lshl_b32 s{T0}, s{S_WAVE}, 10
    v_add_u32 v21, s{T0}, v20
    ds_write_b128 v21, v[56:59]
    ''')
    rowreduce(C, 17, 21, 'add')
    C(f'''
    ds_write_b32 v19, v17 offset:256
    s_waitcnt lgkmcnt(0)
    ''')
    bar()
    C(f'''
    ds_read_b128 v[64:67], v20
    ds_read_b128 v[68:71], v20 offset:1024
    ds_read_b128 v[72:75], v20 offset:2048
    ds_read_b128 v[76:79], v20 offset:3072
    v_lshrrev_b32 v4, 2, v1
    v_lshlrev_b32 v5, 1, v4
    v_lshrrev_b32 v6, 1, v2
    v_and_b32 v7, 1, v2
    v_xor_b32 v7, v7, v6
    v_lshlrev_b32 v7, 3, v7
    v_or3_b32 v5, v5, v6, v7
    v_bfe_u32 v6, v1, 1, 1
    v_xor_b32 v5, v5, v6
    v_lshlrev_b32 v5, 4, v5
    v_and_b32 v6, 1, v1
    v_lshlrev_b32 v6, 3, v6
    v_lshl_add_u32 v7, v2, 2, v4
    v_lshlrev_b32 v7, 10, v7
    v_add3_u32 v5, v5, v6, v7
    s_lshl_b32 s{T0}, s{S_WAVE}, 8
    v_add_u32 v5, s{T0}, v5
    ''')
    for t in range(8): C(f'v_xor_b32 v{8+t}, {t*32}, v5')
    def pvfrag(j, t): return 160 + (j % 2) * 32 + 4 * t
    def pvread(j, t):
        o = (j % 2) * 32768
        C(f'ds_read_b64_tr_b16 {vr(pvfrag(j, t), 2)}, v{8+t} offset:{o}')
        C(f'ds_read_b64_tr_b16 {vr(pvfrag(j, t)+2, 2)}, v{8+t} offset:{o + 16384}')
    for t in range(8): pvread(0, t)
    for j in range(4):
        for t in range(8):
            rem = 2 * (7 - t)
            C(f's_waitcnt lgkmcnt({min(15, rem + (2*t if j+1 < 4 else 0))})')
            c = '0' if j == 0 else vr(128 + 4 * t, 4)
            C(f'v_mfma_f32_16x16x32_bf16 {vr(128+4*t, 4)}, {vr(pvfrag(j, t), 4)}, v[{64+4*j}:{67+4*j}], {c}')
            if j + 1 < 4:
                if j + 1 == 2: C(f'v_add_u32 v{8+t}, 0x10000, v{8+t}')
                pvread(j + 1, t)
    C.stamp(9)
    C(f'''
    s_lshr_b32 s{T0}, s{S_XCD}, 1
    s_lshl_b32 s{T0}, s{T0}, 5
    s_lshl_b32 s{T1}, s{S_J}, 4
    s_add_u32 s{T0}, s{T0}, s{T1}
    s_and_b32 s{T1}, s{S_XCD}, 1
    s_lshl_b32 s{T1}, s{T1}, 4
    s_lshr_b32 s{T2}, s{S_IDX}, 1
    s_add_u32 s{T1}, s{T1}, s{T2}
    s_lshl_b32 s{T2}, s{T0}, 15
    s_lshl_b32 s{T3}, s{T1}, 10
    s_add_u32 s{T2}, s{T2}, s{T3}
    s_lshl_b32 s{T3}, s{S_WAVE}, 8
    s_add_u32 s{T2}, s{T2}, s{T3}
    s_add_u32 s{T2}, s{T2}, {W_E3}
    v_lshlrev_b32 v4, 15, v1
    v_lshlrev_b32 v5, 4, v2
    v_add3_u32 v4, v4, v5, s{T2}
    s_nop 1
    ''')
    for pr in range(4):
        a = 128 + 8 * pr
        C(f'''
        v_cvt_pk_bf16_f32 v{64+4*pr}, v{a}, v{a+1}
        v_cvt_pk_bf16_f32 v{65+4*pr}, v{a+2}, v{a+3}
        v_cvt_pk_bf16_f32 v{66+4*pr}, v{a+4}, v{a+5}
        v_cvt_pk_bf16_f32 v{67+4*pr}, v{a+6}, v{a+7}
        global_store_dwordx4 v4, v[{64+4*pr}:{67+4*pr}], {sp(P_WS)} offset:{64*pr} sc1
        ''')
    lskip = C.newl('st3')
    C(f'''
    s_cmp_lg_u32 s{S_WAVE}, 0
    s_cbranch_scc1 {lskip}
    ds_read_b32 v20, v18 offset:256
    ds_read_b32 v21, v18 offset:320
    ds_read_b32 v22, v18 offset:384
    ds_read_b32 v23, v18 offset:448
    s_lshl_b32 s{T2}, s{T0}, 8
    s_lshl_b32 s{T3}, s{T1}, 3
    s_add_u32 s{T2}, s{T2}, s{T3}
    s_add_u32 s{T2}, s{T2}, {W_ST3}
    v_lshl_add_u32 v5, v1, 8, s{T2}
    s_waitcnt lgkmcnt(0)
    v_add_f32 v20, v20, v21
    v_add_f32 v22, v22, v23
    v_add_f32 v17, v20, v22
    ''')
    exec_set(C, '0xffff')
    C(f'global_store_dwordx2 v5, v[16:17], {sp(P_WS)} sc1')
    exec_restore(C)
    C.label(lskip)
    C('s_waitcnt vmcnt(0)')
    bar()
    lskip = C.newl('f3')
    C(f'''
    s_cmp_lg_u32 s{S_WAVE}, 0
    s_cbranch_scc1 {lskip}
    s_lshr_b32 s{T2}, s{S_XCD}, 1
    s_lshl_b32 s{T2}, s{T2}, 1
    s_add_u32 s{T2}, s{T2}, s{S_J}
    s_lshl_b32 s{T2}, s{T2}, 5
    s_add_u32 s{T2}, s{T2}, s{T1}
    s_lshl_b32 s{T2}, s{T2}, 2
    s_add_u32 s{T2}, s{T2}, {W_F3}
    ''')
    flag_store(C, T2)
    C.label(lskip)
    C.stamp(10)
    assert C.nbar == L.nbar
    for p, sfx in ((C, 'c'), (L, 'l')):
        p(f'''
        s_cmp_lt_u32 s{S_IDX}, 16
        s_cbranch_scc1 L_roleA_{sfx}
        s_sub_u32 s{S_J5}, s{S_IDX}, 16          ; i = idx-16 (0..15)
        s_cmp_lt_u32 s{S_J5}, 10
        s_cbranch_scc1 L_roleB_{sfx}
        s_cmp_lt_u32 s{S_J5}, 15
        s_cbranch_scc1 L_roleC_{sfx}
        s_branch L_fin_{sfx}
        ''')
    C.label('L_roleA_c'); L.label('L_roleA_l')
    CA = Prog(stamps); LA = Prog(stamps)
    def barA(): CA.bar(); LA.bar()
    LA(f'''
    s_lshl_b32 s{T4}, s{S_XCD}, 2
    s_lshr_b32 s{T5}, s{S_IDX}, 2
    s_add_u32 s{T4}, s{T4}, s{T5}            ; h
    s_lshl_b32 s{T4}, s{T4}, 8
    s_lshl_b32 s{T5}, s{S_LW}, 20
    s_add_u32 s{T4}, s{T4}, s{T5}
    s_lshl_b32 s{T5}, s{S_LW}, 15
    v_lshrrev_b32 v3, 4, v0
    v_and_b32 v4, 15, v0
    v_lshlrev_b32 v5, 1, v3
    v_xor_b32 v5, v5, v4                     ; par 0
    v_xor_b32 v6, 8, v5                      ; par 1: row%8 += 4 -> f ^= 8
    v_lshlrev_b32 v5, 4, v5
    v_lshlrev_b32 v6, 4, v6
    v_lshl_add_u32 v5, v3, 13, v5
    v_lshl_add_u32 v6, v3, 13, v6
    ''')
    dma_seq(LA, P_WUV, T4, 4 * 8192, T5, L_WUV, 32, [5, 6])
    LA('s_waitcnt vmcnt(0)')
    LA.stamp(4)
    CA(f'''
    s_lshl_b32 s{S_J}, s{S_XCD}, 2
    s_lshr_b32 s{T5}, s{S_IDX}, 2
    s_add_u32 s{S_J}, s{S_J}, s{T5}          ; h
    s_and_b32 s{S_K}, s{S_IDX}, 3            ; b
    s_lshl_b32 s{T0}, s{S_K}, 1
    s_lshr_b32 s{T1}, s{S_J}, 4
    s_add_u32 s{T0}, s{T0}, s{T1}
    s_lshl_b32 s{T0}, s{T0}, 7
    s_add_u32 s{T0}, s{T0}, {W_F3}
    v_and_b32 v4, 31, v0
    v_lshl_add_u32 v5, v4, 2, s{T0}
    s_lshl_b32 s{T0}, s{S_K}, 5
    s_add_u32 s{T0}, s{T0}, s{S_J}           ; bh
    s_lshl_b32 s{T1}, s{T0}, 8
    s_add_u32 s{T1}, s{T1}, {W_ST3}
    v_lshl_add_u32 v6, v4, 3, s{T1}
    s_lshl_b32 s{T1}, s{T0}, 15
    s_lshl_b32 s{T2}, s{S_WAVE}, 13
    s_add_u32 s{T1}, s{T1}, s{T2}
    s_add_u32 s{T1}, s{T1}, {W_E3}
    v_lshl_add_u32 v7, v0, 4, s{T1}
    v_add_u32 v10, 4096, v7
    ''')
    poll_loop(CA, [f'global_load_dword v64, v5, {sp(P_WS)} sc1'], [(64, S_TAG)])
    CA.stamp(11)
    CA(f'global_load_dwordx2 v[16:17], v6, {sp(P_WS)} sc1')
    for i in range(8):
        CA(f'global_load_dwordx4 v[{64+4*i}:{67+4*i}], v{7 if i < 4 else 10}, {sp(P_WS)} offset:{1024*(i%4)} sc1')
    CA('s_waitcnt vmcnt(8)')
    CA('v_mov_b32 v18, v16')
    allreduce(CA, 18, 19, 'max')
    CA(f'''
    v_sub_f32 v16, v16, v18
    v_exp_f32 v16, v16
    s_nop 0
    v_mul_f32 v17, v17, v16
    ''')
    allreduce(CA, 17, 19, 'add')
    CA(f'''
    v_rcp_f32 v17, v17
    s_nop 0
    v_mul_f32 v16, v16, v17
    v_add_f32 v16, v16, v16
    s_lshl_b32 s{T0}, s{S_WAVE}, 3
    s_nop 0
    ''')
    for i in range(8):
        CA(f's_add_u32 s{T1}, s{T0}, {i}')
        CA(f's_nop 0')
        CA(f'v_readlane_b32 s{92+i}, v16, s{T1}')
    for i in range(8):
        CA(f's_waitcnt vmcnt({7-i})')
        for q in range(4):
            unpack(CA, 20, 21, 64 + 4 * i + q)
            if i == 0:
                CA(f'v_mul_f32 v{32+2*q}, s{92+i}, v20\nv_mul_f32 v{33+2*q}, s{92+i}, v21')
            else:
                CA(f'v_fmac_f32 v{32+2*q}, s{92+i}, v20\nv_fmac_f32 v{33+2*q}, s{92+i}, v21')
    CA(f'''
    v_lshlrev_b32 v4, 5, v0
    v_add_u32 v4, {L_RED4}, v4
    s_lshl_b32 s{T0}, s{S_WAVE}, 11
    v_add_u32 v5, s{T0}, v4
    ds_write_b128 v5, v[32:35]
    ds_write_b128 v5, v[36:39] offset:16
    s_waitcnt lgkmcnt(0)
    ''')
    barA()
    CA.stamp(12)
    for w in range(4):
        CA(f'ds_read_b128 v[{64+8*w}:{67+8*w}], v4 offset:{2048*w}')
        CA(f'ds_read_b128 v[{68+8*w}:{71+8*w}], v4 offset:{2048*w+16}')
    CA('s_waitcnt lgkmcnt(0)')
    for q in range(4):
        CA(f'''
        v_pk_add_f32 v[{64+2*q}:{65+2*q}], v[{64+2*q}:{65+2*q}], v[{72+2*q}:{73+2*q}]
        v_pk_add_f32 v[{80+2*q}:{81+2*q}], v[{80+2*q}:{81+2*q}], v[{88+2*q}:{89+2*q}]
        v_pk_add_f32 v[{64+2*q}:{65+2*q}], v[{64+2*q}:{65+2*q}], v[{80+2*q}:{81+2*q}]
        v_cvt_pk_bf16_f32 v{32+q}, v{64+2*q}, v{65+2*q}
        ''')
    CA(f'''
    s_lshl_b32 s{T0}, s{S_WAVE}, 10
    s_add_u32 s{T0}, s{T0}, {L_CC}
    v_lshl_add_u32 v5, v0, 4, s{T0}
    ds_write_b128 v5, v[32:35]
    v_lshl_add_u32 v6, v2, 4, s{T0}
    ; tr base: row = 4g+r ; addr = row*256 + ((2nt + (c4>>1)) ^ (2*(row%8)))*16 + (c4&1)*8
    v_lshrrev_b32 v10, 2, v1
    v_lshl_add_u32 v10, v2, 2, v10           ; row
    v_and_b32 v11, 7, v10
    v_lshlrev_b32 v11, 1, v11
    v_bfe_u32 v12, v1, 1, 1
    v_xor_b32 v11, v11, v12
    v_lshlrev_b32 v11, 4, v11
    v_and_b32 v12, 1, v1
    v_lshlrev_b32 v12, 3, v12
    v_lshlrev_b32 v10, 8, v10
    v_add3_u32 v10, v10, v11, v12
    s_lshl_b32 s{T0}, s{S_WAVE}, 6
    v_xor_b32 v10, s{T0}, v10                ; tile 2w
    v_xor_b32 v11, 32, v10                   ; tile 2w+1
    v_add_u32 v12, 0x10000, v10
    v_add_u32 v13, 0x10000, v11
    s_waitcnt lgkmcnt(0)
    ''')
    for ks in range(16): CA(f'ds_read_b128 v[{64+4*ks}:{67+4*ks}], v6 offset:{64*ks}')
    def uvfrag(ks, t): return 128 + ((ks % 4) * 2 + t) * 4 + (32 if (ks // 4) % 2 else 0)
    def uvread(ks):
        for t in range(2):
            va = (10 + t) if ks < 8 else (12 + t)
            o = (ks % 8) * 8192
            CA(f'ds_read_b64_tr_b16 {vr(uvfrag(ks, t), 2)}, v{va} offset:{o}')
            CA(f'ds_read_b64_tr_b16 {vr(uvfrag(ks, t)+2, 2)}, v{va} offset:{o+4096}')
    for ks in range(8): uvread(ks)
    for ks in range(16):
        issued = min(16, (ks // 4) * 4 + 8)
        CA(f's_waitcnt lgkmcnt({min(15, 4*(issued - ks - 1))})')
        for t in range(2):
            c = '0' if ks == 0 else vr(28 + 4 * t, 4)
            CA(f'v_mfma_f32_16x16x32_bf16 {vr(28+4*t, 4)}, {vr(uvfrag(ks, t), 4)}, v[{64+4*ks}:{67+4*ks}], {c}')
        if ks % 4 == 3 and ks + 5 < 16:
            for k2 in range(ks + 5, ks + 9): uvread(k2)
    CA(f'''
    s_lshl_b32 s{T0}, s{S_K}, 14
    s_lshl_b32 s{T1}, s{S_J}, 9
    s_add_u32 s{T0}, s{T0}, s{T1}
    s_lshl_b32 s{T1}, s{S_WAVE}, 7
    s_add_u32 s{T0}, s{T0}, s{T1}
    s_add_u32 s{T0}, s{T0}, {W_E4}
    v_lshl_add_u32 v4, v2, 4, s{T0}
    v_cmp_eq_u32 vcc, 0, v1
    v_mov_b32 v66, s{S_TAG}
    v_mov_b32 v67, s{S_TAG2}
    v_mov_b32 v70, s{S_TAG}
    v_mov_b32 v71, s{S_TAG2}
    s_nop 3
    v_cvt_pk_bf16_f32 v64, v28, v29
    v_cvt_pk_bf16_f32 v65, v30, v31
    v_cvt_pk_bf16_f32 v68, v32, v33
    v_cvt_pk_bf16_f32 v69, v34, v35
    s_and_saveexec_b64 {sp(S_EX)}, vcc
    global_store_dwordx4 v4, v[64:67], {sp(P_WS)} sc1
    global_store_dwordx4 v4, v[68:71], {sp(P_WS)} offset:64 sc1
    s_mov_b64 exec, {sp(S_EX)}
    ''')
    CA.stamp(13)
    barA()
    for p, sfx in ((CA, 'c'), (LA, 'l')):
        p(f'''
        s_cmp_ge_u32 s{S_IDX}, 7
        s_cbranch_scc1 L_fin_{sfx}
        s_mul_i32 s{S_R}, s{S_XCD}, 7
        s_add_u32 s{S_R}, s{S_R}, s{S_IDX}      ; j6
        s_cmp_ge_u32 s{S_R}, 54
        s_cbranch_scc1 L_fin_{sfx}
        ''')
    LA(f'''
    s_lshl_b32 s{T4}, s{S_R}, 6
    s_and_b32 s{T5}, s{S_LW}, 1
    s_lshl_b32 s{T5}, s{T5}, 5
    s_add_u32 s{T4}, s{T4}, s{T5}
    s_cmp_ge_u32 s{S_LW}, 2
    s_cselect_b32 s{S_CB}, s{P_WU}, s{P_WG}
    s_cselect_b32 s{S_CB+1}, s{P_WU+1}, s{P_WG+1}
    s_mul_i32 s{T5}, s{S_LW}, 20480
    v_lshrrev_b32 v3, 1, v0
    v_and_b32 v4, 1, v0
    v_lshlrev_b32 v4, 4, v4
    s_movk_i32 s{S_J}, 3456
    v_mul_lo_u32 v5, v3, s{S_J}
    v_add_u32 v5, v5, v4
    ''')
    dma_seq(LA, S_CB, T4, 32 * 3456, T5, L_WGU, 20, [5])
    LA('s_waitcnt vmcnt(0)')
    LA.stamp(5)
    def col_setup(p):
        p(f'''
        v_add_u32 v5, 512, v3
        v_min_u32 v5, 639, v5
        v_lshlrev_b32 v4, 4, v3              ; t*16
        v_lshlrev_b32 v6, 4, v5              ; col3*16
        v_add_u32 v7, 4096, v4               ; (t+256)*16
        ''')
    col_setup(CA)
    CA(f'''
    v_lshlrev_b32 v10, 1, v3
    v_lshlrev_b32 v11, 1, v5
    v_add_u32 v12, 512, v10
    ''')
    for b in range(4):
        CA(f'global_load_ushort v{96+b}, v10, {sp(P_X)} offset:{1280*b}')
        CA(f'global_load_ushort v{100+b}, v12, {sp(P_X)} offset:{1280*b}')
        CA(f'global_load_ushort v{104+b}, v11, {sp(P_X)} offset:{1280*b}')
    CA(f'''
    v_add_u32 v12, {W_E0}, v4
    v_add_u32 v13, {W_E0}, v7
    v_add_u32 v14, {W_E0}, v6
    ''')
    loads = []; checks = []
    for k, base in enumerate((1280, 1920, 2560)):
        for ci in range(3):
            CA(f'v_add_u32 v{200+3*k+ci}, {base*16}, v{12+ci}')
            r = 108 + 12 * k + 4 * ci
            loads.append(f'global_load_dwordx4 v[{r}:{r+3}], v{200+3*k+ci}, {sp(P_WS)} sc1')
            checks += [(r + 2, S_TAG), (r + 3, S_TAG2)]
    poll_loop(CA, loads, checks)
    CA(f'''
    v_add_u32 v12, {W_E5}, v4
    v_add_u32 v13, {W_E5}, v7
    v_add_u32 v14, {W_E5}, v6
    v_add_u32 v15, {640*16}, v12
    v_add_u32 v16, {640*16}, v13
    v_add_u32 v17, {640*16}, v14
    ''')
    permaddr(CA, 20, 3, 22, 23); CA(f'v_add_u32 v20, {L_ACT}, v20')
    permaddr(CA, 21, 5, 22, 23); CA(f'v_add_u32 v21, {L_ACT}, v21')
    loads = [f'global_load_dwordx4 v[{64+4*i}:{67+4*i}], v{12+i}, {sp(P_WS)} sc1' for i in range(6)]
    checks = []
    for i in range(6): checks += [(66 + 4 * i, S_TAG), (67 + 4 * i, S_TAG2)]
    poll_loop(CA, loads, checks)
    CA.stamp(14)
    def x1calc(p, ncols, xregs, ga_base, oa_base, ob_base, dst):
        for ci in range(ncols):
            for half in range(2):
                unpack(p, 90, 91, oa_base + 4 * ci + half)
                unpack(p, 92, 93, ob_base + 4 * ci + half)
                unpack(p, 94, 95, ga_base + 4 * ci + half)
                p(f'''
                v_add_f32 v90, v90, v92
                v_add_f32 v91, v91, v93
                v_lshlrev_b32 v92, 16, v{xregs[ci]+2*half}
                v_lshlrev_b32 v93, 16, v{xregs[ci]+2*half+1}
                v_fma_f32 v90, v90, v94, v92
                v_fma_f32 v91, v91, v95, v93
                v_cvt_pk_bf16_f32 v90, v90, v91
                ''')
                unpack(p, dst + 4 * ci + 2 * half, dst + 4 * ci + 2 * half + 1, 90)
    x1calc(CA, 3, [96, 100, 104], 108, 64, 76, 144)
    CA(f'v_cmp_gt_u32 vcc, 128, v3\ns_nop 1')
    for b in range(4):
        CA(f'''
        v_cndmask_b32 v90, 0, v{152+b}, vcc
        v_add_f32 v{160+b}, v{144+b}, v{148+b}
        v_add_f32 v{160+b}, v{160+b}, v90
        v_mul_f32 v{164+b}, v{144+b}, v{144+b}
        v_fmac_f32 v{164+b}, v{148+b}, v{148+b}
        v_fmac_f32 v{164+b}, v90, v90
        ''')
    for r in range(8): allreduce(CA, 160 + r, 90, 'add')
    CA(f'''
    s_lshl_b32 s{T0}, s{S_WAVE}, 5
    s_add_u32 s{T0}, s{T0}, {L_RED}
    v_mov_b32 v90, s{T0}
    ''')
    exec_set(CA, '1')
    CA('ds_write_b128 v90, v[160:163]\nds_write_b128 v90, v[164:167] offset:16')
    exec_restore(CA)
    CA('s_waitcnt lgkmcnt(0)')
    barA()
    CA(f'v_mov_b32 v90, {L_RED}')
    for w in range(4):
        CA(f'ds_read_b128 v[{168+8*w}:{171+8*w}], v90 offset:{32*w}')
        CA(f'ds_read_b128 v[{172+8*w}:{175+8*w}], v90 offset:{32*w+16}')
    CA('s_waitcnt lgkmcnt(0)')
    for r in range(8):
        CA(f'''
        v_add_f32 v{168+r}, v{168+r}, v{176+r}
        v_add_f32 v{184+r}, v{184+r}, v{192+r}
        v_add_f32 v{168+r}, v{168+r}, v{184+r}
        ''')
    CA(f's_mov_b32 s{T1}, {fl(1.0/640)}')
    for b in range(4):
        CA(f'''
        v_mul_f32 v{168+b}, s{T1}, v{168+b}
        v_mul_f32 v{172+b}, s{T1}, v{172+b}
        v_fma_f32 v{172+b}, -v{168+b}, v{168+b}, v{172+b}
        v_add_f32 v{172+b}, {fl(1e-5)}, v{172+b}
        v_rsq_f32 v{172+b}, v{172+b}
        ''')
    CA('s_nop 0')
    for ci, (ar, off) in enumerate([(20, 0), (20, 512), (21, 0)]):
        for half in range(2):
            unpack(CA, 92, 93, 120 + 4 * ci + half)
            unpack(CA, 94, 95, 132 + 4 * ci + half)
            b0 = 2 * half; b1 = b0 + 1
            CA(f'''
            v_add_f32 v94, 1.0, v94
            v_add_f32 v95, 1.0, v95
            v_sub_f32 v90, v{144+4*ci+b0}, v{168+b0}
            v_sub_f32 v91, v{144+4*ci+b1}, v{168+b1}
            v_mul_f32 v90, v90, v{172+b0}
            v_mul_f32 v91, v91, v{172+b1}
            v_fma_f32 v90, v90, v94, v92
            v_fma_f32 v91, v91, v95, v93
            v_cvt_pk_bf16_f32 v90, v90, v91
            ds_write_b16 v{ar}, v90 offset:{off + b0*ACTP}
            ds_write_b16_d16_hi v{ar}, v90 offset:{off + b1*ACTP}
            ''')
    CA('s_waitcnt lgkmcnt(0)')
    barA()
    CA(f'''
    v_and_b32 v8, 3, v0
    v_mul_u32_u24 v8, {ACTP}, v8
    v_lshlrev_b32 v10, 4, v2
    v_add_u32 v8, v8, v10
    v_add_u32 v8, {L_ACT}, v8
    s_mul_i32 s{T0}, s{S_WAVE}, 20480
    v_add_u32 v10, s{T0}, v60
    ''')
    gemv_steps(CA, 20, 8, 10, ACC, 64, swap=True)
    CA(f'''
    s_nop 7
    s_and_b32 s{T0}, s{S_WAVE}, 1
    s_lshl_b32 s{T0}, s{T0}, 10
    s_add_u32 s{T0}, s{T0}, {L_RED4}
    v_lshl_add_u32 v4, v0, 4, s{T0}
    ''')
    lskip = CA.newl('p6w')
    CA(f'''
    s_cmp_lt_u32 s{S_WAVE}, 2
    s_cbranch_scc1 {lskip}
    ds_write_b128 v4, v[28:31]
    s_waitcnt lgkmcnt(0)
    ''')
    CA.label(lskip)
    barA()
    lskip = CA.newl('p6f')
    CA(f'''
    s_cmp_ge_u32 s{S_WAVE}, 2
    s_cbranch_scc1 {lskip}
    ds_read_b128 v[64:67], v4
    s_mov_b32 s{T0}, {fl(0.044715)}
    s_mov_b32 s{T1}, {fl(-2.0 * 0.7978845608028654 * LOG2E)}
    ''')
    for r in range(4):
        CA(f'''
        v_mul_f32 v70, v{28+r}, v{28+r}
        v_mul_f32 v70, s{T0}, v70
        v_fma_f32 v70, v70, v{28+r}, v{28+r}
        v_mul_f32 v70, s{T1}, v70
        v_exp_f32 v70, v70
        s_nop 0
        v_add_f32 v70, 1.0, v70
        v_rcp_f32 v70, v70
        s_nop 0
        v_mul_f32 v{28+r}, v{28+r}, v70
        ''')
    CA('s_waitcnt lgkmcnt(0)')
    for r in range(4): CA(f'v_mul_f32 v{28+r}, v{28+r}, v{64+r}')
    CA(f'''
    s_lshl_b32 s{T0}, s{S_R}, 7
    s_lshl_b32 s{T1}, s{S_WAVE}, 6
    s_add_u32 s{T0}, s{T0}, s{T1}
    s_add_u32 s{T0}, s{T0}, {W_E6}
    v_mul_u32_u24 v5, {432*16}, v1
    v_lshlrev_b32 v6, 4, v2
    v_add3_u32 v5, v5, v6, s{T0}
    v_cmp_gt_u32 vcc, 4, v1
    s_nop 1
    s_and_saveexec_b64 {sp(S_EX)}, vcc
    ''')
    store_granule(CA, 5)
    CA(f's_mov_b64 exec, {sp(S_EX)}')
    CA.label(lskip)
    CA.stamp(15)
    assert CA.nbar == LA.nbar
    CA('s_branch L_fin_c'); LA('s_branch L_fin_l')
    CB = Prog(stamps); LB = Prog(stamps)
    def barB(): CB.bar(); LB.bar()
    CB.label('L_roleB_c'); LB.label('L_roleB_l')
    for p in (CB, LB):
        p(f'''
        s_mul_i32 s{S_J}, s{S_XCD}, 5
        s_lshr_b32 s{T0}, s{S_J5}, 1
        s_add_u32 s{S_J}, s{S_J}, s{T0}          ; strip
        s_and_b32 s{S_K}, s{S_J5}, 1             ; kh
        ''')
    LB(f'''
    s_lshl_b32 s{T4}, s{S_J}, 5
    s_mul_i32 s{T5}, s{S_K}, {2048*1280}
    s_add_u32 s{T4}, s{T4}, s{T5}
    s_mul_i32 s{T5}, s{S_LW}, {512*1280}
    s_add_u32 s{T4}, s{T4}, s{T5}
    s_lshl_b32 s{T5}, s{S_LW}, 14
    v_lshrrev_b32 v3, 1, v0
    v_and_b32 v4, 1, v0
    v_lshlrev_b32 v4, 4, v4
    v_mul_u32_u24 v5, 1280, v3
    v_add_u32 v5, v5, v4
    ''')
    dma_seq(LB, P_WO, T4, 32 * 1280, T5, L_WO, 16, [5])
    LB('s_waitcnt vmcnt(0)')
    LB.stamp(4)
    CB(f'''
    s_lshl_b32 s{T0}, s{S_K}, 13             ; kh*512*16
    s_add_u32 s{T0}, s{T0}, {W_E4}
    v_lshl_add_u32 v4, v3, 4, s{T0}
    v_add_u32 v5, 4096, v4
    ''')
    loads = []; checks = []
    for b in range(4):
        for hf in range(2):
            i = 2 * b + hf
            if b: CB(f'v_add_u32 v{10+i}, {16384*b}, v{4+hf}')
            else: CB(f'v_mov_b32 v{10+i}, v{4+hf}')
            loads.append(f'global_load_dwordx4 v[{64+4*i}:{67+4*i}], v{10+i}, {sp(P_WS)} sc1')
            checks += [(66 + 4 * i, S_TAG), (67 + 4 * i, S_TAG2)]
    granaddr(CB, 20, 3, 22)
    CB(f'v_add_u32 v20, {L_ACT5}, v20')
    poll_loop(CB, loads, checks)
    CB.stamp(11)
    for b in range(4):
        for hf in range(2):
            i = 2 * b + hf
            CB(f'ds_write_b64 v20, v[{64+4*i}:{65+4*i}] offset:{b*ACT5P + hf*2048}')
    CB('s_waitcnt lgkmcnt(0)')
    barB()
    CB.stamp(12)
    CB(f'''
    v_and_b32 v8, 3, v0
    v_mul_u32_u24 v8, {ACT5P}, v8
    v_lshlrev_b32 v10, 4, v2
    s_lshl_b32 s{T0}, s{S_WAVE}, 10
    s_add_u32 s{T0}, s{T0}, {L_ACT5}
    v_add3_u32 v8, v8, v10, s{T0}
    s_lshl_b32 s{T0}, s{S_WAVE}, 14
    v_add_u32 v10, s{T0}, v60
    ''')
    gemv_steps(CB, 16, 8, 10, ACC, 64)
    red_write(CB)
    barB()
    lskip = CB.newl('p5f')
    CB(f's_cmp_lg_u32 s{S_WAVE}, 0\ns_cbranch_scc1 {lskip}')
    exec_set(CB, '0xffff')
    red_sum(CB)
    CB(f'''
    s_mul_i32 s{T0}, s{S_K}, 640
    s_lshl_b32 s{T1}, s{S_J}, 4
    s_add_u32 s{T0}, s{T0}, s{T1}
    s_lshl_b32 s{T0}, s{T0}, 4
    s_add_u32 s{T0}, s{T0}, {W_E5}
    v_lshl_add_u32 v68, v1, 4, s{T0}
    ''')
    store_granule(CB, 68)
    exec_restore(CB)
    CB.label(lskip)
    CB.stamp(13)
    assert CB.nbar == LB.nbar
    CB('s_branch L_fin_c'); LB('s_branch L_fin_l')
    CC = Prog(stamps); LC = Prog(stamps)
    def barC(): CC.bar(); LC.bar()
    CC.label('L_roleC_c'); LC.label('L_roleC_l')
    for p in (CC, LC):
        p(f'''
        s_mul_i32 s{S_J}, s{S_XCD}, 5
        s_add_u32 s{S_J}, s{S_J}, s{S_J5}
        s_sub_u32 s{S_J}, s{S_J}, 10             ; strip
        ''')
    LC(f'''
    s_mul_i32 s{T5}, s{S_LW}, 14
    s_cmp_eq_u32 s{S_LW}, 3
    s_cselect_b32 s{T3}, 1, 0
    s_sub_u32 s{T5}, s{T5}, s{T3}            ; start
    s_lshl_b32 s{T4}, s{S_J}, 5
    s_mul_i32 s{T3}, s{T5}, {32*1280}
    s_add_u32 s{T4}, s{T4}, s{T3}
    s_lshl_b32 s{T5}, s{T5}, 10
    v_lshrrev_b32 v3, 1, v0
    v_and_b32 v4, 1, v0
    v_lshlrev_b32 v4, 4, v4
    v_mul_u32_u24 v5, 1280, v3
    v_add_u32 v5, v5, v4
    ''')
    dma_seq(LC, P_WD, T4, 32 * 1280, T5, L_WD, 14, [5], skip_last_if=f's_cmp_ge_u32 s{S_LW}, 2')
    LC('s_waitcnt vmcnt(0)')
    LC.stamp(4)
    CC(f'''
    s_lshl_b32 s{T0}, s{S_J}, 4
    v_add_u32 v5, s{T0}, v1                  ; col
    v_lshlrev_b32 v10, 1, v5
    ''')
    for b in range(4): CC(f'global_load_ushort v{96+b}, v10, {sp(P_X)} offset:{1280*b}')
    CC(f'''
    v_lshlrev_b32 v4, 4, v5
    v_add_u32 v11, {W_E0 + 1280*16}, v4
    v_add_u32 v12, {W_E0 + 3200*16}, v4
    v_add_u32 v13, {W_E5}, v4
    v_add_u32 v14, {W_E5 + 640*16}, v4
    ''')
    poll_loop(CC, [f'global_load_dwordx4 v[108:111], v11, {sp(P_WS)} sc1', f'global_load_dwordx4 v[208:211], v12, {sp(P_WS)} sc1',
                   f'global_load_dwordx4 v[116:119], v13, {sp(P_WS)} sc1', f'global_load_dwordx4 v[120:123], v14, {sp(P_WS)} sc1'],
              [(110, S_TAG), (111, S_TAG2), (210, S_TAG), (211, S_TAG2), (118, S_TAG), (119, S_TAG2), (122, S_TAG), (123, S_TAG2)])
    x1calc(CC, 1, [96], 108, 116, 120, 200)
    CC(f'''
    v_add_u32 v5, 256, v3
    v_min_u32 v5, 431, v5
    v_lshlrev_b32 v4, 4, v3
    v_add_u32 v4, {W_E6}, v4
    v_lshlrev_b32 v6, 4, v5
    v_add_u32 v6, {W_E6}, v6
    ''')
    loads = []; checks = []
    for b in range(4):
        for hf in range(2):
            i = 2 * b + hf
            CC(f'v_add_u32 v{10+i}, {432*16*b}, v{4 if hf == 0 else 6}')
            loads.append(f'global_load_dwordx4 v[{64+4*i}:{67+4*i}], v{10+i}, {sp(P_WS)} sc1')
            checks += [(66 + 4 * i, S_TAG), (67 + 4 * i, S_TAG2)]
    granaddr(CC, 20, 3, 22); CC(f'v_add_u32 v20, {L_ACT7}, v20')
    granaddr(CC, 21, 5, 22); CC(f'v_add_u32 v21, {L_ACT7}, v21')
    poll_loop(CC, loads, checks)
    CC.stamp(11)
    for b in range(4):
        CC(f'ds_write_b64 v20, v[{64+8*b}:{65+8*b}] offset:{b*ACT7P}')
        CC(f'ds_write_b64 v21, v[{68+8*b}:{69+8*b}] offset:{b*ACT7P}')
    CC('s_waitcnt lgkmcnt(0)')
    barC()
    CC.stamp(12)
    CC(f'''
    s_mul_i32 s{T5}, s{S_WAVE}, 14
    s_cmp_eq_u32 s{S_WAVE}, 3
    s_cselect_b32 s{T3}, 1, 0
    s_sub_u32 s{T5}, s{T5}, s{T3}
    v_and_b32 v8, 3, v0
    v_mul_u32_u24 v8, {ACT7P}, v8
    v_lshlrev_b32 v10, 4, v2
    s_lshl_b32 s{T0}, s{T5}, 6
    s_add_u32 s{T0}, s{T0}, {L_ACT7}
    v_add3_u32 v8, v8, v10, s{T0}
    s_lshl_b32 s{T0}, s{T5}, 10
    v_add_u32 v10, s{T0}, v60
    ''')
    gemv_steps(CC, 13, 8, 10, ACC, 64)
    lskip = CC.newl('p7x')
    CC(f's_cmp_ge_u32 s{S_WAVE}, 2\ns_cbranch_scc1 {lskip}')
    gemv_steps(CC, 1, 8, 10, ACC, 64, first=False, offA=13 * 64, offB=13 * 1024)
    CC.label(lskip)
    red_write(CC)
    barC()
    lskip = CC.newl('p7f')
    CC(f's_cmp_lg_u32 s{S_WAVE}, 0\ns_cbranch_scc1 {lskip}')
    exec_set(CC, '0xffff')
    red_sum(CC)
    for half in range(2):
        unpack(CC, 94, 95, 208 + half)
        CC(f'''
        v_fma_f32 v{28+2*half}, v{28+2*half}, v94, v{200+2*half}
        v_fma_f32 v{29+2*half}, v{29+2*half}, v95, v{201+2*half}
        ''')
    CC(f'''
    v_cvt_pk_bf16_f32 v64, v28, v29
    v_cvt_pk_bf16_f32 v65, v30, v31
    s_lshl_b32 s{T0}, s{S_J}, 5
    v_lshl_add_u32 v4, v1, 1, s{T0}
    global_store_short v4, v64, {sp(P_OUT)}
    global_store_short_d16_hi v4, v64, {sp(P_OUT)} offset:1280
    global_store_short v4, v65, {sp(P_OUT)} offset:2560
    global_store_short_d16_hi v4, v65, {sp(P_OUT)} offset:3840
    ''')
    exec_restore(CC)
    CC(f'''
    s_cmp_lg_u32 s{S_J}, 0
    s_cbranch_scc1 {lskip}
    v_mov_b32 v4, 0
    v_mov_b32 v5, s{S_TAG}
    ''')
    exec_set(CC, '1')
    CC(f'global_store_dword v4, v5, {sp(P_WS)} sc1')
    exec_restore(CC)
    CC.label(lskip)
    CC.stamp(13)
    assert CC.nbar == LC.nbar
    CC('s_branch L_fin_c'); LC('s_branch L_fin_l')
    F = Prog(stamps)
    for sfx, slot in (('c', 0), ('l', 1)):
        F.label('L_fin_' + sfx)
        if stamps:
            lab = F.newl('nst')
            F(f'''
            s_memrealtime {sp(S_STAMP + 2*15)}
            s_cmp_lg_u32 s{S_WAVE}, {0 if slot == 0 else 4}
            s_cbranch_scc1 {lab}
            s_waitcnt lgkmcnt(0)
            s_lshl_b32 s{T0}, s2, 8
            s_add_u32 s{T0}, s{T0}, {W_STAMP + slot*128}
            v_mov_b32 v4, s{T0}
            ''')
            for i in range(16):
                F(f'v_mov_b32 v5, s{S_STAMP+2*i}\nglobal_store_dword v4, v5, {sp(P_WS)} offset:{4*i}')
            F.label(lab)
        F('s_endpgm')
    body = H.text() + C.text() + CA.text() + CB.text() + CC.text() + L.text() + LA.text() + LB.text() + LC.text() + F.text()
    return body

HEADER = open('adaLN_cond__compressed_kv_cla__glu_gated_geglu__decode.s.ref').read().split('; @launch')[0]

def full(stamps=False):
    body = gen(stamps)
    return (HEADER + f'; @launch grid=(256,1,1) block=(512,1,1) lds={LDS_BYTES}\n' +
            f'''.amdgcn_target "amdgcn-amd-amdhsa--gfx950"
.text
.globl {NAME}
.p2align 8
.type {NAME},@function
{NAME}:
{body}L_end:
    s_endpgm
.section .rodata,"a"
.p2align 6
.amdhsa_kernel {NAME}
  .amdhsa_next_free_vgpr 256
  .amdhsa_next_free_sgpr 102
  .amdhsa_accum_offset 256
  .amdhsa_group_segment_fixed_size 0
  .amdhsa_kernarg_size 120
  .amdhsa_user_sgpr_count 2
  .amdhsa_user_sgpr_kernarg_segment_ptr 1
  .amdhsa_system_sgpr_workgroup_id_x 1
.end_amdhsa_kernel
''')

if __name__ == '__main__':
    stamps = len(sys.argv) > 2 and sys.argv[2] == 'stamps'
    open(sys.argv[1], 'w').write(full(stamps))
```

```python
import sys, struct

NAME = 'adaLN_cond__compressed_kv_cla__glu_gated_geglu__decode_kernel'

P_X, P_CKV, P_WQ, P_WUK, P_WUV, P_WO, P_BX, P_WG = 4, 6, 8, 10, 12, 14, 16, 18
P_WU, P_WD, P_C, P_WMOD, P_OUT, P_DBG, P_WS = 20, 22, 24, 26, 28, 30, 32
S_WAVE, S_XCD, S_IDX, S_TAG, S_TAG2, S_EP = 3, 34, 35, 36, 37, 38
S_STRIP = 39
S_LW = 40
S_J5 = 41
T0, T1, T2, T3, T4, T5 = 42, 43, 44, 45, 46, 47
S_EX = 48
S_CNT = 50
S_R = 51
S_M = 52
S_J = 54
S_K = 55
S_CB = 56
S_W = 59
S_STAMP = 60
S_SC = 92
S_EX2 = 100
S_S0 = 2
S_S0 = 0

def sp(r): return 's[%d:%d]' % (r, r + 1)
def vr(r, n=1): return 'v%d' % r if n == 1 else 'v[%d:%d]' % (r, r + n - 1)

L_CKV = 0
L_QA = 131072
L_PB = 147456
L_REDA = 155648
L_RED4 = 131072
L_CC = 147456
L_WUV = 0
L_WM = 0
L_WQ = 20480
L_WG6 = 0; L_WU6 = 40960
L_WMN = 0
L_WO = 0
L_WD = 0
L_ACT5 = 131072; ACT5P = 4160
L_ACT7 = 131072; ACT7P = 3648
L_ACT = 151552; ACTP = 1344
L_XNT = 156928
L_RED = 162048
L_CNT = 163072
LDS_BYTES = 163840

W_E0 = 0x1000
W_E1 = 0x20000
W_E2 = 0x40000
W_F3 = 0x80000
W_ST3 = 0x90000
W_E3 = 0x100000
W_E4 = 0x600000
W_E5 = 0x620000
W_E6 = 0x630000
W_STAMP = 0x700000

SPIN_CAP = 1 << 18
import os
NT = os.environ.get('NT', 'nt')
DEPTH = int(os.environ.get('DEPTH', '4'))
TAILWAIT = int(os.environ.get('TAILWAIT', '1'))
TDEPTH = int(os.environ.get('TDEPTH', '8'))
LOG2E = 1.4426950408889634
M4 = '0x000f000f'

def f2u(x): return struct.unpack('<I', struct.pack('<f', x))[0]
def fl(x): return '0x%08x' % f2u(x)

UID = [0]
class Prog:
    def __init__(self, stamps):
        self.o = []; self.stamps = stamps
    def __call__(self, s):
        for line in s.strip('\n').split('\n'):
            line = line.strip()
            if line: self.o.append('    ' + line)
    def label(self, l): self.o.append(l + ':')
    def signal(self, k):
        self(f's_mov_b64 {sp(S_EX2)}, exec\ns_mov_b64 exec, 1\nds_add_u32 v61, v62 offset:{4*k}\ns_mov_b64 exec, {sp(S_EX2)}')
    def wait(self, k, target, sleep=0):
        l0 = self.newl('lw')
        self.label(l0)
        if sleep: self(f's_sleep {sleep}')
        self(f'''
        ds_read_b32 v63, v61 offset:{4*k}
        s_waitcnt lgkmcnt(0)
        v_readfirstlane_b32 s{S_W}, v63
        s_cmp_lt_u32 s{S_W}, {target}
        s_cbranch_scc1 {l0}
        ''')
    def newl(self, p):
        UID[0] += 1; return 'L_%s_%d' % (p, UID[0])
    def stamp(self, i):
        if self.stamps: self('s_memrealtime %s' % sp(S_STAMP + 2 * i))
    def text(self): return '\n'.join(self.o) + '\n'

def rowreduce(p, v, t, op='add'):
    o = 'v_%s_f32' % op
    p(f'''
    v_mov_b32 v{t}, v{v}
    s_nop 1
    v_permlane16_swap_b32 v{v}, v{t}
    s_nop 1
    {o} v{v}, v{v}, v{t}
    v_mov_b32 v{t}, v{v}
    s_nop 1
    v_permlane32_swap_b32 v{v}, v{t}
    s_nop 1
    {o} v{v}, v{v}, v{t}
    ''')

def allreduce(p, v, t, op='add'):
    o = 'v_%s_f32' % op
    for m in ('quad_perm:[1,0,3,2]', 'quad_perm:[2,3,0,1]', 'row_half_mirror', 'row_mirror'):
        p('s_nop 1')
        p('%s_dpp v%d, v%d, v%d %s row_mask:0xf bank_mask:0xf' % (o, v, v, v, m))
    p('s_nop 0')
    rowreduce(p, v, t, op)

def unpack(p, dlo, dhi, src):
    p('v_lshlrev_b32 v%d, 16, v%d' % (dlo, src))
    p('v_and_b32 v%d, 0xffff0000, v%d' % (dhi, src))

def poll_loop(p, loads, checks):
    l0 = p.newl('poll'); l1 = p.newl('polld')
    p('s_mov_b32 s%d, 0' % S_CNT)
    p.label(l0)
    for l in loads: p(l)
    p('s_add_u32 s%d, s%d, 1' % (S_CNT, S_CNT))
    p('s_waitcnt vmcnt(0)')
    first = True
    for (a, b) in checks:
        if first:
            p(f'v_xor_b32 v58, s{S_TAG}, v{a}')
            if b is not None: p(f'v_xor_b32 v59, s{S_TAG2}, v{b}')
            else: p('v_mov_b32 v59, 0')
            first = False
        else:
            p(f'v_xor_b32 v57, s{S_TAG}, v{a}')
            if b is not None:
                p(f'v_xor_b32 v56, s{S_TAG2}, v{b}')
                p('v_or3_b32 v58, v58, v57, v56')
            else:
                p('v_or_b32 v58, v58, v57')
    p('v_or_b32 v58, v58, v59')
    p('v_cmp_ne_u32 vcc, 0, v58')
    p(f's_cmp_ge_u32 s{S_CNT}, {SPIN_CAP}')
    p('s_cbranch_scc1 %s' % l1)
    p('s_cbranch_vccnz %s' % l0)
    p.label(l1)

def gemv_steps(p, nsteps, vA, vB, acc, regs, first=True, swap=False, strideA=64, strideB=1024, offA=0, offB=0, halfB=512):
    for i in range(nsteps):
        a = regs + 8 * i; b = a + 4
        assert offB + i * strideB + halfB < 65536 and offA + i * strideA < 65536
        p('ds_read_b128 %s, v%d offset:%d' % (vr(a, 4), vA, offA + i * strideA))
        p('ds_read_b64_tr_b16 %s, v%d offset:%d' % (vr(b, 2), vB, offB + i * strideB))
        p('ds_read_b64_tr_b16 %s, v%d offset:%d' % (vr(b + 2, 2), vB, offB + i * strideB + halfB))
    for i in range(nsteps):
        a = regs + 8 * i; b = a + 4
        p('s_waitcnt lgkmcnt(%d)' % min(15, 3 * (nsteps - 1 - i)))
        c = '0' if (first and i == 0) else vr(acc, 4)
        x, y = (vr(b, 4), vr(a, 4)) if swap else (vr(a, 4), vr(b, 4))
        p('v_mfma_f32_16x16x32_bf16 %s, %s, %s, %s' % (vr(acc, 4), x, y, c))

def load_seq(p, ptr, s_off, step, count, voffs, s_lds=None, lds_const=0, dst=None, skip_last_if=None, throttle=True):
    p(f's_add_u32 s{T0}, s{ptr}, s{s_off}\ns_addc_u32 s{T1}, s{ptr+1}, 0')
    if s_lds is not None: p(f's_add_u32 m0, s{s_lds}, {lds_const}')
    for j in range(count):
        lab = None
        if skip_last_if and j == count - 1:
            lab = p.newl('dskip')
            p(skip_last_if); p('s_cbranch_scc1 %s' % lab)
        if s_lds is not None:
            p('s_nop 0')
            p('global_load_lds_dwordx4 v%d, %s %s' % (voffs[j % len(voffs)], sp(T0), NT))
        else:
            if TDEPTH and throttle and j >= TDEPTH: p(f's_waitcnt vmcnt({TDEPTH-1})')
            p('global_load_dwordx4 %s, v%d, %s %s' % (vr(dst(j), 4), voffs[j % len(voffs)], sp(T0), NT))
        if lab: p.label(lab)
        if j + 1 < count:
            p(f's_add_u32 s{T0}, s{T0}, {step}\ns_addc_u32 s{T1}, s{T1}, 0')
            if s_lds is not None: p('s_add_u32 m0, m0, 1024')

def ckv_f_const(j):
    k2 = j & 1; k3 = (j >> 1) & 1
    return (((k2 ^ k3) << 3) | k3)

def permaddr(p, dst, m, t1, t2):
    p(f'''
    v_and_b32 v{dst}, 0xffffffe0, v{m}
    v_lshlrev_b32 v{dst}, 1, v{dst}
    v_bfe_u32 v{t1}, v{m}, 2, 2
    v_lshlrev_b32 v{t1}, 4, v{t1}
    v_bfe_u32 v{t2}, v{m}, 4, 1
    v_lshlrev_b32 v{t2}, 3, v{t2}
    v_add3_u32 v{dst}, v{dst}, v{t1}, v{t2}
    v_and_b32 v{t1}, 3, v{m}
    v_lshlrev_b32 v{t1}, 1, v{t1}
    v_add_u32 v{dst}, v{dst}, v{t1}
    ''')

def granaddr(p, dst, gi, t1):
    p(f'''
    v_lshrrev_b32 v{dst}, 3, v{gi}
    v_lshlrev_b32 v{dst}, 6, v{dst}
    v_and_b32 v{t1}, 3, v{gi}
    v_lshl_add_u32 v{dst}, v{t1}, 4, v{dst}
    v_bfe_u32 v{t1}, v{gi}, 2, 1
    v_lshl_add_u32 v{dst}, v{t1}, 3, v{dst}
    ''')

def exec_set(p, mask): p(f's_mov_b64 {sp(S_EX)}, exec\ns_mov_b64 exec, {mask}')
def exec_restore(p): p(f's_mov_b64 exec, {sp(S_EX)}')
S_M4 = 96

V_REDR = 26
V_REDW = 27
V_REDR2 = 22
V_REDW2 = 23
ACC = 28

def red_write(p, rowfmt=False):
    p('s_nop 7')
    exec_set(p, sp(S_M4) if rowfmt else '0xffff')
    p(f'ds_write_b128 v{V_REDW2 if rowfmt else V_REDW}, v[28:31]')
    exec_restore(p)

def red_sum(p, rowfmt=False):
    a = V_REDR2 if rowfmt else V_REDR
    p(f'''
    ds_read_b128 v[28:31], v{a}
    ds_read_b128 v[64:67], v{a} offset:256
    ds_read_b128 v[68:71], v{a} offset:512
    ds_read_b128 v[72:75], v{a} offset:768
    s_waitcnt lgkmcnt(2)
    v_pk_add_f32 v[28:29], v[28:29], v[64:65]
    v_pk_add_f32 v[30:31], v[30:31], v[66:67]
    s_waitcnt lgkmcnt(0)
    v_pk_add_f32 v[68:69], v[68:69], v[72:73]
    v_pk_add_f32 v[70:71], v[70:71], v[74:75]
    v_pk_add_f32 v[28:29], v[28:29], v[68:69]
    v_pk_add_f32 v[30:31], v[30:31], v[70:71]
    ''')

def store_granule(p, vaddr):
    p(f'''
    v_cvt_pk_bf16_f32 v64, v28, v29
    v_cvt_pk_bf16_f32 v65, v30, v31
    v_mov_b32 v66, s{S_TAG}
    v_mov_b32 v67, s{S_TAG2}
    global_store_dwordx4 v{vaddr}, v[64:67], {sp(P_WS)} sc1
    ''')


def gemv2(p, nsteps, vA, vB, strideB, halfB, acc, swap=False, strideA=64, offA=0, offB=0, first=True, banks=(64, 160), batch=12, vtmp=(56, 57)):
    maxoff = offB + (nsteps - 1) * strideB + halfB
    nb = maxoff // 65536 + 1
    bases = [vB]
    for k in range(1, nb):
        p(f'v_add_u32 v{vtmp[k-1]}, {k*65536}, v{vB}')
        bases.append(vtmp[k - 1])
    def rd(i):
        r = banks[(i // batch) % 2] + 8 * (i % batch)
        p('ds_read_b128 %s, v%d offset:%d' % (vr(r, 4), vA, offA + i * strideA))
        for h, o in enumerate((offB + i * strideB, offB + i * strideB + halfB)):
            p('ds_read_b64_tr_b16 %s, v%d offset:%d' % (vr(r + 4 + 2 * h, 2), bases[o // 65536], o % 65536))
    issued = 0
    def issue_upto(n):
        nonlocal issued
        while issued < min(n, nsteps):
            rd(issued); issued += 1
    issue_upto(2 * batch)
    for i in range(nsteps):
        r = banks[(i // batch) % 2] + 8 * (i % batch)
        p('s_waitcnt lgkmcnt(%d)' % min(15, 3 * (issued - 1 - i)))
        c = '0' if (first and i == 0) else vr(acc, 4)
        x, y = (vr(r + 4, 4), vr(r, 4)) if swap else (vr(r, 4), vr(r + 4, 4))
        p('v_mfma_f32_16x16x32_bf16 %s, %s, %s, %s' % (vr(acc, 4), x, y, c))
        if (i + 1) % batch == 0: issue_upto(i + 1 + 2 * batch)

def trpat(p, dst, pitch, s_tile, t1, t2):
    if pitch == 64:
        p(f'''
        v_lshrrev_b32 v{t1}, 2, v1
        v_lshl_add_u32 v{t1}, v2, 2, v{t1}          ; row = 4g+r
        v_lshlrev_b32 v{dst}, 6, v{t1}
        v_bfe_u32 v{t1}, v1, 1, 1                   ; c4>>1
        v_and_b32 v{t2}, 1, v2
        v_lshlrev_b32 v{t2}, 1, v{t2}
        v_xor_b32 v{t1}, v{t1}, v{t2}
        s_lshl_b32 s{T5}, s{s_tile}, 1
        v_xor_b32 v{t1}, s{T5}, v{t1}
        v_lshl_add_u32 v{dst}, v{t1}, 4, v{dst}
        v_and_b32 v{t1}, 1, v1
        v_lshl_add_u32 v{dst}, v{t1}, 3, v{dst}
        ''')
    else:
        p(f'''
        v_lshrrev_b32 v{t1}, 2, v1
        v_lshl_add_u32 v{t1}, v2, 2, v{t1}          ; row
        v_lshlrev_b32 v{dst}, 7, v{t1}
        v_bfe_u32 v{t1}, v{t1}, 1, 2                ; (row>>1)&3
        v_lshlrev_b32 v{t1}, 1, v{t1}
        v_bfe_u32 v{t2}, v1, 1, 1
        v_xor_b32 v{t1}, v{t1}, v{t2}
        s_lshl_b32 s{T5}, s{s_tile}, 1
        v_xor_b32 v{t1}, s{T5}, v{t1}
        v_lshl_add_u32 v{dst}, v{t1}, 4, v{dst}
        v_and_b32 v{t1}, 1, v1
        v_lshl_add_u32 v{dst}, v{t1}, 3, v{dst}
        ''')

def dma_voff(p, dst, seg, pitch, t1, t2):
    if seg == 64:
        p(f'''
        v_lshrrev_b32 v{t1}, 2, v0                  ; row
        v_and_b32 v{t2}, 3, v0
        v_bfe_u32 v{dst}, v0, 4, 1
        v_lshlrev_b32 v{dst}, 1, v{dst}
        v_xor_b32 v{t2}, v{t2}, v{dst}
        v_lshlrev_b32 v{t2}, 4, v{t2}
        s_mov_b32 s{T5}, {pitch}
        v_mul_lo_u32 v{dst}, v{t1}, s{T5}
        v_add_u32 v{dst}, v{dst}, v{t2}
        ''')
    else:
        p(f'''
        v_lshrrev_b32 v{t1}, 3, v0                  ; row
        v_and_b32 v{t2}, 7, v0
        v_bfe_u32 v{dst}, v0, 4, 2                  ; (row>>1)&3
        v_lshlrev_b32 v{dst}, 1, v{dst}
        v_xor_b32 v{t2}, v{t2}, v{dst}
        v_lshlrev_b32 v{t2}, 4, v{t2}
        s_mov_b32 s{T5}, {pitch}
        v_mul_lo_u32 v{dst}, v{t1}, s{T5}
        v_add_u32 v{dst}, v{dst}, v{t2}
        ''')

def act_prep(C, do_silu=True, do_ln=True, pre=None, cnt=0):
    C(f'''
    s_mul_i32 s{T0}, s{S_WAVE}, 1280
    v_lshlrev_b32 v4, 2, v0
    v_add_u32 v4, s{T0}, v4
    ''')
    if do_silu:
        for i in range(5): C(f'global_load_dword v{10+i}, v4, {sp(P_C)} offset:{256*i}')
    if do_ln:
        for i in range(5): C(f'global_load_dword v{15+i}, v4, {sp(P_X)} offset:{256*i}')
    C(f'''
    v_lshlrev_b32 v6, 6, v2
    v_bfe_u32 v7, v0, 1, 2
    v_lshlrev_b32 v7, 4, v7
    v_bfe_u32 v8, v0, 3, 1
    v_lshlrev_b32 v8, 3, v8
    v_and_b32 v9, 1, v0
    v_lshlrev_b32 v9, 2, v9
    v_add3_u32 v6, v6, v7, v8
    s_mul_i32 s{T0}, s{S_WAVE}, {ACTP}
    s_add_u32 s{T0}, s{T0}, {L_ACT}
    v_add3_u32 v6, v6, v9, s{T0}
    s_mov_b32 s{T1}, {fl(-LOG2E)}
    ''')
    if do_silu:
        C(f's_waitcnt vmcnt({5 if do_ln else 0})')
        for i in range(5):
            unpack(C, 20, 21, 10 + i)
            C(f'''
            v_mul_f32 v22, s{T1}, v20
            v_mul_f32 v23, s{T1}, v21
            v_exp_f32 v22, v22
            v_exp_f32 v23, v23
            s_nop 0
            v_add_f32 v22, 1.0, v22
            v_add_f32 v23, 1.0, v23
            v_rcp_f32 v22, v22
            v_rcp_f32 v23, v23
            s_nop 0
            v_mul_f32 v20, v20, v22
            v_mul_f32 v21, v21, v23
            v_cvt_pk_bf16_f32 v20, v20, v21
            ds_write_b32 v6, v20 offset:{256*i}
            ''')
        C.signal(cnt)
    if do_ln:
        C('s_waitcnt vmcnt(0)')
        for i in range(5): unpack(C, 40 + 2 * i, 41 + 2 * i, 15 + i)
        C('v_add_f32 v20, v40, v41\nv_mul_f32 v21, v40, v40\nv_fmac_f32 v21, v41, v41')
        for i in range(2, 10):
            C(f'v_add_f32 v20, v20, v{40+i}\nv_fmac_f32 v21, v{40+i}, v{40+i}')
        allreduce(C, 20, 18); allreduce(C, 21, 18)
        C(f'''
        s_mov_b32 s{T1}, {fl(1.0/640)}
        v_mul_f32 v20, s{T1}, v20
        v_mul_f32 v21, s{T1}, v21
        v_fma_f32 v21, -v20, v20, v21
        v_add_f32 v21, {fl(1e-5)}, v21
        v_rsq_f32 v21, v21
        s_lshl_b32 s{T0}, s{S_WAVE}, 1
        s_add_u32 s{T0}, s{T0}, {L_XNT}
        v_lshlrev_b32 v7, 4, v0
        v_add_u32 v7, s{T0}, v7
        ''')
        for i in range(5):
            C(f'''
            v_sub_f32 v18, v{40+2*i}, v20
            v_sub_f32 v19, v{41+2*i}, v20
            v_mul_f32 v18, v18, v21
            v_mul_f32 v19, v19, v21
            v_cvt_pk_bf16_f32 v18, v18, v19
            ds_write_b16 v7, v18 offset:{1024*i}
            ds_write_b16_d16_hi v7, v18 offset:{1024*i+8}
            ''')
        C.signal(15)

def aaddr(C, dst, lbase, pitch, s_extra, t1):
    C(f'''
    v_and_b32 v{dst}, 3, v0
    v_mul_u32_u24 v{dst}, {pitch}, v{dst}
    v_lshlrev_b32 v{t1}, 4, v2
    s_add_u32 s{T5}, s{s_extra}, {lbase}
    v_add3_u32 v{dst}, v{dst}, v{t1}, s{T5}
    ''')

def tag_setup(C):
    C(f'''
    s_waitcnt lgkmcnt(0)
    s_add_u32 s{S_TAG}, s{S_EP}, 1
    s_not_b32 s{S_TAG2}, s{S_TAG}
    ''')

def pair_reduce(C, cnt, lab_done):
    lk = C.newl('pr')
    C(f's_cmp_lt_u32 s{S_WAVE}, 2\ns_cbranch_scc1 {lk}')
    red_write(C)
    C.signal(cnt)
    C(f's_branch {lab_done}')
    C.label(lk)
    C.wait(cnt, 2)
    C(f'''
    ds_read_b128 v[64:67], v27 offset:512
    s_waitcnt lgkmcnt(0)
    v_pk_add_f32 v[28:29], v[28:29], v[64:65]
    v_pk_add_f32 v[30:31], v[30:31], v[66:67]
    ''')

def red_regs(C):
    C(f'''
    v_lshlrev_b32 v26, 4, v1
    v_add_u32 v26, {L_RED}, v26
    s_lshl_b32 s{T0}, s{S_WAVE}, 8
    v_add_u32 v27, s{T0}, v26
    ''')
ADEPTH = int(os.environ.get('ADEPTH', '8'))
TTRIG = int(os.environ.get('TTRIG', '1'))
ATRIG = int(os.environ.get('ATRIG', '0'))
LIGHT = int(os.environ.get('LIGHT', '1'))
WUVWAIT = int(os.environ.get('WUVWAIT', '1'))

def trig(p, off, en=True):
    if not en: return
    l0 = p.newl('tg'); l1 = p.newl('tgd')
    p(f'''
    s_load_dword s{S_EP}, {sp(P_WS)}, 0
    v_mov_b32 v20, {off}
    s_mov_b32 s{S_CNT}, 0
    s_waitcnt lgkmcnt(0)
    s_add_u32 s{S_TAG}, s{S_EP}, 1
    {l0}:
    global_load_dword v21, v20, {sp(P_WS)} offset:8 sc1
    s_add_u32 s{S_CNT}, s{S_CNT}, 1
    s_waitcnt vmcnt(0)
    v_readfirstlane_b32 s{S_W}, v21
    s_cmp_ge_u32 s{S_CNT}, {SPIN_CAP}
    s_cbranch_scc1 {l1}
    s_cmp_eq_u32 s{S_W}, s{S_TAG}
    s_cbranch_scc1 {l1}
    s_sleep 2
    s_branch {l0}
    {l1}:
    ''')

def gen(stamps=False):
    UID[0] = 0
    H = Prog(stamps)
    H(f'''
    s_cmp_ge_u32 s2, 256
    s_cbranch_scc1 L_end
    s_load_dwordx16 s[4:19], s[0:1], 0
    s_load_dwordx8 s[20:27], s[0:1], 64
    s_load_dwordx4 s[28:31], s[0:1], 96
    s_load_dwordx2 s[32:33], s[0:1], 112
    v_lshrrev_b32 v1, 6, v0
    v_and_b32 v0, 63, v0
    s_and_b32 s{S_XCD}, s2, 7
    v_readfirstlane_b32 s{S_WAVE}, v1
    s_lshr_b32 s{S_IDX}, s2, 3
    v_and_b32 v1, 15, v0
    v_lshrrev_b32 v2, 4, v0
    ''')
    H.stamp(0)
    H(f'''
    v_mov_b32 v61, {L_CNT}
    v_mov_b32 v62, 1
    v_mov_b32 v63, 0
    v_lshl_add_u32 v3, v0, 2, v61
    s_cmp_lg_u32 s{S_WAVE}, 0
    s_cbranch_scc1 L_noinit
    ds_write_b32 v3, v63
    L_noinit:
    s_mov_b32 s{S_M4}, 0x000f000f
    s_mov_b32 s{S_M4+1}, 0x000f000f
    s_and_b32 s{S_LW}, s{S_WAVE}, 3
    s_lshl_b32 s{T0}, s{S_LW}, 6
    v_add_u32 v3, s{T0}, v0
    s_waitcnt lgkmcnt(0)
    s_barrier
    s_cmp_ge_u32 s{S_WAVE}, 4
    s_cbranch_scc1 L_loader
    s_load_dword s{S_EP}, {sp(P_WS)}, 0
    s_cmp_lt_u32 s{S_IDX}, 16
    s_cbranch_scc1 L_A_c
    s_branch L_F_c
    L_loader:
    s_cmp_lt_u32 s{S_IDX}, 16
    s_cbranch_scc1 L_A_l
    s_branch L_F_l
    ''')
    def dump_regs(p, base_reg, count, vaddr, step=1024):
        off = 0
        for j in range(count):
            if off + 0 > 65535 - 0 or off > 60000:
                p(f'v_add_u32 v{vaddr}, {off}, v{vaddr}'); off = 0
            p(f'ds_write_b128 v{vaddr}, {vr(base_reg(j), 4)} offset:{off}')
            off += step

    AL = Prog(stamps); AC = Prog(stamps)
    AL.label('L_A_l')
    AL(f'''
    s_lshl_b32 s{T5}, s{S_XCD}, 4
    s_add_u32 s{T4}, s{T5}, s{S_IDX}         ; cid
    s_lshl_b32 s{T4}, s{T4}, 17
    s_lshl_b32 s{T5}, s{S_LW}, 10
    s_add_u32 s{T4}, s{T4}, s{T5}
    s_add_u32 s56, s{P_CKV}, s{T4}
    s_addc_u32 s57, s{P_CKV+1}, 0
    s_mov_b32 s58, s{T5}
    s_lshl_b32 s{T5}, s{S_LW}, 1
    v_xor_b32 v7, s{T5}, v0
    ''')
    for q in range(4):
        AL(f'v_xor_b32 v{8+q}, {ckv_f_const(q)}, v7')
        AL(f'v_lshlrev_b32 v{8+q}, 4, v{8+q}')
    trig(AL, W_E0 + 639 * 16, en=ATRIG)
    for j in range(32):
        if j >= ADEPTH: AL(f's_waitcnt vmcnt({ADEPTH-1})')
        AL(f'''
        s_add_u32 m0, s58, {j*4096}
        s_nop 0
        global_load_lds_dwordx4 v{8+(j%4)}, s[56:57] {NT}
        s_add_u32 s56, s56, 4096
        s_addc_u32 s57, s57, 0
        ''')
    AL(f'''
    s_lshl_b32 s{T4}, s{S_XCD}, 2
    s_lshr_b32 s{T5}, s{S_IDX}, 2
    s_add_u32 s{T4}, s{T4}, s{T5}
    s_lshl_b32 s{T4}, s{T4}, 8
    s_lshl_b32 s{T5}, s{S_LW}, 20
    s_add_u32 s{T4}, s{T4}, s{T5}
    v_lshrrev_b32 v3, 4, v0
    v_and_b32 v4, 15, v0
    v_lshlrev_b32 v5, 1, v3
    v_xor_b32 v5, v5, v4
    v_xor_b32 v6, 8, v5
    v_lshlrev_b32 v5, 4, v5
    v_lshlrev_b32 v6, 4, v6
    v_lshl_add_u32 v5, v3, 13, v5
    v_lshl_add_u32 v6, v3, 13, v6
    s_waitcnt vmcnt(0)
    ''')
    AL.signal(6); AL.stamp(3)
    load_seq(AL, P_WUV, T4, 4 * 8192, 32, [5, 6], dst=lambda j: 64 + 4 * j)
    AL(f's_lshl_b32 s{T5}, s{S_LW}, 15\nv_lshl_add_u32 v12, v0, 4, s{T5}')
    AL('s_waitcnt vmcnt(0)')
    AL.signal(20)
    AL.stamp(4)
    AL.wait(9, 4, sleep=1)
    dump_regs(AL, lambda j: 64 + 4 * j, 32, 12)
    AL.signal(10); AL.stamp(5)
    AL('s_branch L_fin')

    C = AC
    C.label('L_A_c')
    C(f'''
    s_lshr_b32 s{T0}, s{S_XCD}, 1            ; b
    s_lshl_b32 s{T0}, s{T0}, 16              ; b*32*2048
    s_add_u32 s{T0}, s{T0}, {W_E2}
    v_lshl_add_u32 v4, v3, 4, s{T0}
    v_and_b32 v5, 127, v3
    v_lshrrev_b32 v6, 7, v3
    v_lshrrev_b32 v7, 1, v5
    v_lshlrev_b32 v10, 1, v6
    v_xor_b32 v7, v7, v10
    v_lshlrev_b32 v7, 4, v7
    v_and_b32 v10, 1, v5
    v_lshl_add_u32 v7, v10, 3, v7
    v_lshl_add_u32 v7, v6, 10, v7
    v_add_u32 v7, {L_QA}, v7
    ''')
    for i in range(8):
        k1 = i & 1; k2 = (i >> 1) & 1; k3 = i >> 2
        fc = (k1 << 2) | ((k2 ^ k3) << 3) | k3
        C(f'v_xor_b32 v{40+i}, {fc*16}, v7')
    for i in range(16):
        if i: C(f'v_add_u32 v{10+i}, {4096*i}, v4')
        else: C('v_mov_b32 v10, v4')
    C(f'''
    v_and_b32 v4, 3, v1
    v_lshlrev_b32 v4, 1, v4
    v_bfe_u32 v5, v1, 3, 1
    v_bfe_u32 v6, v1, 2, 1
    v_xor_b32 v6, v6, v5
    v_lshlrev_b32 v6, 3, v6
    v_or3_b32 v4, v4, v5, v6
    v_xor_b32 v4, v4, v2
    v_lshlrev_b32 v4, 4, v4
    v_lshl_add_u32 v4, v1, 10, v4
    s_lshl_b32 s{T0}, s{S_WAVE}, 15
    v_add_u32 v5, s{T0}, v4
    v_add_u32 v4, {L_QA}, v4
    ''')
    for q in range(4):
        C(f'v_xor_b32 v{48+q}, {q*64}, v4')
        C(f'v_xor_b32 v{52+q}, {q*64}, v5')
    tag_setup(C)
    C.stamp(1)
    C.wait(6, 4, sleep=1)
    if WUVWAIT: C.wait(20, 4, sleep=1)
    C.stamp(2)
    C(f'''
    s_lshr_b32 s{T0}, s{S_XCD}, 1
    s_lshl_b32 s{T0}, s{T0}, 16
    s_add_u32 s{T0}, s{T0}, {W_E2}
    v_lshlrev_b32 v26, 8, v3
    v_add_u32 v26, s{T0}, v26
    ''')
    if LIGHT: poll_loop(C, [f'global_load_dwordx2 v[64:65], v26, {sp(P_WS)} offset:8 sc1'], [(64, 65)])
    C.stamp(3)
    loads = [f'global_load_dwordx4 {vr(192+4*i, 4)}, v{10+i}, {sp(P_WS)} sc1' for i in range(16)]
    poll_loop(C, loads, [(194 + 4 * i, 195 + 4 * i) for i in range(16)])
    C.stamp(7)
    for i in range(8):
        C(f'ds_write_b64 v{40+i}, {vr(192+4*i, 2)} offset:{2048*i}')
    C.signal(11)
    C(f'''
    v_lshrrev_b32 v4, 2, v1
    v_lshlrev_b32 v5, 1, v4
    v_lshrrev_b32 v6, 1, v2
    v_and_b32 v7, 1, v2
    v_xor_b32 v7, v7, v6
    v_lshlrev_b32 v7, 3, v7
    v_or3_b32 v5, v5, v6, v7
    v_bfe_u32 v6, v1, 1, 1
    v_xor_b32 v5, v5, v6
    v_lshlrev_b32 v5, 4, v5
    v_and_b32 v6, 1, v1
    v_lshlrev_b32 v6, 3, v6
    v_lshl_add_u32 v7, v2, 2, v4
    v_lshlrev_b32 v7, 10, v7
    v_add3_u32 v5, v5, v6, v7
    s_lshl_b32 s{T0}, s{S_WAVE}, 8
    v_add_u32 v5, s{T0}, v5
    v_lshlrev_b32 v18, 2, v1
    v_add_u32 v18, {L_REDA}, v18
    s_lshl_b32 s{T0}, s{S_WAVE}, 7
    v_add_u32 v19, s{T0}, v18
    v_lshlrev_b32 v20, 4, v0
    v_add_u32 v20, {L_PB}, v20
    s_lshl_b32 s{T0}, s{S_WAVE}, 11
    v_add_u32 v21, s{T0}, v20
    ''')
    for t in range(8): C(f'v_xor_b32 v{8+t}, {t*32}, v5')
    C.wait(11, 4)
    def afrag(ks, t): return 128 + ((ks % 4) * 2 + t) * 4 + (32 if (ks // 4) % 2 else 0)
    def issueA(ks):
        for t in range(2):
            C(f'ds_read_b128 {vr(afrag(ks, t), 4)}, v{52+ks%4} offset:{(ks//4)*256 + t*16384}')
    for hg in range(2):
        if hg == 1: C.wait(13, 4)
        for ks in range(16):
            C(f'ds_read_b128 v[{64+4*ks}:{67+4*ks}], v{48+ks%4} offset:{(ks//4)*256}')
        for ks in range(8): issueA(ks)
        if hg == 0:
            C('s_waitcnt lgkmcnt(15)')
            C('s_waitcnt lgkmcnt(14)')
            C.signal(12)
            C.stamp(8)
        for ks in range(16):
            issued = min(16, (ks // 4) * 4 + 8)
            C(f's_waitcnt lgkmcnt({min(15, 2*(issued - ks - 1))})')
            for t in range(2):
                a = 28 + 8 * hg + 4 * t
                c = '0' if ks == 0 else vr(a, 4)
                C(f'v_mfma_f32_16x16x32_bf16 {vr(a, 4)}, {vr(afrag(ks, t), 4)}, {vr(64+4*ks, 4)}, {c}')
            if ks % 4 == 3 and ks + 5 < 16:
                for k2 in range(ks + 5, ks + 9): issueA(k2)
            if hg == 0 and ks == 7:
                C.wait(12, 4)
                for i in range(8):
                    C(f'ds_write_b64 v{40+i}, {vr(192+4*(8+i), 2)} offset:{2048*i}')
                C.signal(13)
    C(f'''
    s_lshr_b32 s{T0}, s{S_XCD}, 1
    s_lshl_b32 s{T0}, s{T0}, 5               ; b*32
    s_and_b32 s{T1}, s{S_XCD}, 1
    s_lshl_b32 s{T1}, s{T1}, 4
    s_add_u32 s{T1}, s{T1}, s{S_IDX}         ; chunk
    s_lshl_b32 s{T2}, s{T0}, 15
    s_lshl_b32 s{T3}, s{T1}, 10
    s_add_u32 s{T2}, s{T2}, s{T3}
    s_lshl_b32 s{T3}, s{S_WAVE}, 8
    s_add_u32 s{T2}, s{T2}, s{T3}
    s_add_u32 s{T2}, s{T2}, {W_E3}
    v_lshlrev_b32 v4, 15, v1
    v_lshlrev_b32 v5, 4, v2
    v_add3_u32 v4, v4, v5, s{T2}
    v_add_u32 v5, {16*32768}, v4
    ''')
    for hg in range(2):
        a = 28 + 8 * hg
        C(f'''
        v_max3_f32 v{16+hg}, v{a}, v{a+1}, v{a+2}
        v_max3_f32 v{16+hg}, v{16+hg}, v{a+3}, v{a+4}
        v_max3_f32 v{16+hg}, v{16+hg}, v{a+5}, v{a+6}
        v_max_f32 v{16+hg}, v{16+hg}, v{a+7}
        ''')
    def rowreduce2(p, va, vb, ta, tb, op):
        o = 'v_%s_f32' % op
        p(f'''
        v_mov_b32 v{ta}, v{va}
        v_mov_b32 v{tb}, v{vb}
        s_nop 0
        v_permlane16_swap_b32 v{va}, v{ta}
        v_permlane16_swap_b32 v{vb}, v{tb}
        s_nop 0
        {o} v{va}, v{va}, v{ta}
        {o} v{vb}, v{vb}, v{tb}
        v_mov_b32 v{ta}, v{va}
        v_mov_b32 v{tb}, v{vb}
        s_nop 0
        v_permlane32_swap_b32 v{va}, v{ta}
        v_permlane32_swap_b32 v{vb}, v{tb}
        s_nop 0
        {o} v{va}, v{va}, v{ta}
        {o} v{vb}, v{vb}, v{tb}
        ''')
    rowreduce2(C, 16, 17, 22, 23, 'max')
    C('ds_write_b32 v19, v16\nds_write_b32 v19, v17 offset:64')
    C.signal(7)
    def pvfrag(j, t): return 192 + (j % 2) * 32 + 4 * t
    def pvread(j, t):
        o = (j % 2) * 32768
        C(f'ds_read_b64_tr_b16 {vr(pvfrag(j, t), 2)}, v{8+t} offset:{o}')
        C(f'ds_read_b64_tr_b16 {vr(pvfrag(j, t)+2, 2)}, v{8+t} offset:{o + 16384}')
    for t in range(8): pvread(0, t)
    C.wait(7, 4)
    for hg in range(2):
        for w in range(4): C(f'ds_read_b32 v{64+4*hg+w}, v18 offset:{128*w + 64*hg}')
    C('s_waitcnt lgkmcnt(0)')
    for hg in range(2):
        C(f'v_max3_f32 v{16+hg}, v{64+4*hg}, v{65+4*hg}, v{66+4*hg}\nv_max_f32 v{16+hg}, v{16+hg}, v{67+4*hg}')
    for hg in range(2):
        for i in range(8): C(f'v_sub_f32 v{28+8*hg+i}, v{28+8*hg+i}, v{16+hg}')
    for i in range(16): C(f'v_exp_f32 v{28+i}, v{28+i}')
    C('s_nop 0')
    for hg in range(2):
        for q in range(4): C(f'v_cvt_pk_bf16_f32 v{64+4*hg+q}, v{28+8*hg+2*q}, v{29+8*hg+2*q}')
        C(f'ds_write_b128 v21, {vr(64+4*hg, 4)} offset:{1024*hg}')
    C.signal(8)
    for hg in range(2):
        a = 28 + 8 * hg
        C(f'''
        v_add_f32 v{22+hg}, v{a}, v{a+1}
        v_add_f32 v{24+hg}, v{a+2}, v{a+3}
        v_add_f32 v{44+hg}, v{a+4}, v{a+5}
        v_add_f32 v{46+hg}, v{a+6}, v{a+7}
        v_add_f32 v{22+hg}, v{22+hg}, v{24+hg}
        v_add_f32 v{44+hg}, v{44+hg}, v{46+hg}
        v_add_f32 v{22+hg}, v{22+hg}, v{44+hg}
        ''')
    rowreduce2(C, 22, 23, 24, 25, 'add')
    C('ds_write_b32 v19, v22 offset:512\nds_write_b32 v19, v23 offset:576')
    C.signal(16)
    C.wait(8, 4)
    for j in range(4):
        for hg in range(2): C(f'ds_read_b128 {vr(64+(j*2+hg)*4, 4)}, v20 offset:{(j*2+hg)*1024}')
    for j in range(4):
        for t in range(8):
            if j == 0: C(f's_waitcnt lgkmcnt({min(15, 6 + 2*t)})')
            else: C(f's_waitcnt lgkmcnt({min(15, 2*(7-t) + (2*t if j+1 < 4 else 0))})')
            for hg in range(2):
                a = 128 + (t * 2 + hg) * 4
                c = '0' if j == 0 else vr(a, 4)
                C(f'v_mfma_f32_16x16x32_bf16 {vr(a, 4)}, {vr(pvfrag(j, t), 4)}, {vr(64+(j*2+hg)*4, 4)}, {c}')
            if j + 1 < 4:
                if j + 1 == 2: C(f'v_add_u32 v{8+t}, 0x10000, v{8+t}')
                pvread(j + 1, t)
    C.stamp(9)
    C('s_nop 2')
    for hg in range(2):
        for pr in range(4):
            a0 = 128 + ((2 * pr) * 2 + hg) * 4; a1 = 128 + ((2 * pr + 1) * 2 + hg) * 4
            d = 192 + (hg * 4 + pr) * 4
            C(f'''
            v_cvt_pk_bf16_f32 v{d}, v{a0}, v{a0+1}
            v_cvt_pk_bf16_f32 v{d+1}, v{a0+2}, v{a0+3}
            v_cvt_pk_bf16_f32 v{d+2}, v{a1}, v{a1+1}
            v_cvt_pk_bf16_f32 v{d+3}, v{a1+2}, v{a1+3}
            global_store_dwordx4 v{4+hg}, {vr(d, 4)}, {sp(P_WS)} offset:{64*pr} sc1
            ''')
    lskip = C.newl('st3')
    C(f's_cmp_lg_u32 s{S_WAVE}, 0\ns_cbranch_scc1 {lskip}')
    C.wait(16, 4)
    for hg in range(2):
        for w in range(4): C(f'ds_read_b32 v{64+4*hg+w}, v18 offset:{512 + 128*w + 64*hg}')
    C(f'''
    s_lshl_b32 s{T2}, s{T0}, 8
    s_lshl_b32 s{T3}, s{T1}, 3
    s_add_u32 s{T2}, s{T2}, s{T3}
    s_add_u32 s{T2}, s{T2}, {W_ST3}
    v_lshl_add_u32 v5, v1, 8, s{T2}
    v_add_u32 v6, 4096, v5
    v_mov_b32 v72, v16
    v_mov_b32 v74, v17
    s_waitcnt lgkmcnt(0)
    v_add_f32 v64, v64, v65
    v_add_f32 v66, v66, v67
    v_add_f32 v73, v64, v66
    v_add_f32 v68, v68, v69
    v_add_f32 v70, v70, v71
    v_add_f32 v75, v68, v70
    ''')
    exec_set(C, '0xffff')
    C(f'global_store_dwordx2 v5, v[72:73], {sp(P_WS)} sc1\nglobal_store_dwordx2 v6, v[74:75], {sp(P_WS)} sc1')
    exec_restore(C)
    C.label(lskip)
    C('s_waitcnt vmcnt(0)')
    C.signal(9)
    lskip = C.newl('f3')
    C(f'''
    s_cmp_lg_u32 s{S_WAVE}, 0
    s_cbranch_scc1 {lskip}
    s_add_u32 s{T2}, s{T0}, s{T1}
    s_lshl_b32 s{T2}, s{T2}, 7
    s_add_u32 s{T2}, s{T2}, {W_F3}
    v_mov_b32 v4, s{T2}
    v_mov_b32 v5, s{S_TAG}
    ''')
    C.wait(9, 4)
    exec_set(C, '1')
    C(f'global_store_dword v4, v5, {sp(P_WS)} sc1')
    exec_restore(C)
    C.label(lskip)
    C.stamp(10)
    CA = C
    CA(f'''
    s_lshl_b32 s{S_J}, s{S_XCD}, 2
    s_lshr_b32 s{T5}, s{S_IDX}, 2
    s_add_u32 s{S_J}, s{S_J}, s{T5}
    s_and_b32 s{S_K}, s{S_IDX}, 3
    s_lshl_b32 s{T0}, s{S_K}, 12              ; b*32 flags*128B
    s_add_u32 s{T0}, s{T0}, {W_F3}
    v_and_b32 v4, 31, v0
    v_lshl_add_u32 v5, v4, 7, s{T0}
    s_lshl_b32 s{T0}, s{S_K}, 5
    s_add_u32 s{T0}, s{T0}, s{S_J}
    s_lshl_b32 s{T1}, s{T0}, 8
    s_add_u32 s{T1}, s{T1}, {W_ST3}
    v_lshl_add_u32 v6, v4, 3, s{T1}
    s_lshl_b32 s{T1}, s{T0}, 15
    s_lshl_b32 s{T2}, s{S_WAVE}, 13
    s_add_u32 s{T1}, s{T1}, s{T2}
    s_add_u32 s{T1}, s{T1}, {W_E3}
    v_lshl_add_u32 v7, v0, 4, s{T1}
    v_add_u32 v10, 4096, v7
    v_lshlrev_b32 v4, 5, v0
    v_add_u32 v4, {L_RED4}, v4
    s_lshl_b32 s{T0}, s{S_WAVE}, 11
    v_add_u32 v11, s{T0}, v4
    ''')
    poll_loop(CA, [f'global_load_dword v64, v5, {sp(P_WS)} sc1'], [(64, None)])
    CA.stamp(11)
    CA(f'global_load_dwordx2 v[16:17], v6, {sp(P_WS)} sc1')
    for i in range(8):
        CA(f'global_load_dwordx4 v[{64+4*i}:{67+4*i}], v{7 if i < 4 else 10}, {sp(P_WS)} offset:{1024*(i%4)} sc1')
    CA('s_waitcnt vmcnt(8)')
    CA('v_mov_b32 v18, v16')
    allreduce(CA, 18, 19, 'max')
    CA(f'''
    v_sub_f32 v16, v16, v18
    v_exp_f32 v16, v16
    s_nop 0
    v_mul_f32 v17, v17, v16
    ''')
    allreduce(CA, 17, 19, 'add')
    CA(f'''
    v_rcp_f32 v17, v17
    s_nop 0
    v_mul_f32 v16, v16, v17
    v_add_f32 v16, v16, v16
    s_lshl_b32 s{T0}, s{S_WAVE}, 3
    s_nop 0
    ''')
    for i in range(8):
        CA(f's_add_u32 s{T1}, s{T0}, {i}')
        CA(f'v_readlane_b32 s{S_SC+i}, v16, s{T1}')
    for i in range(8):
        CA(f's_waitcnt vmcnt({7-i})')
        for q in range(4):
            unpack(CA, 20, 21, 64 + 4 * i + q)
            if i == 0:
                CA(f'v_mul_f32 v{32+2*q}, s{S_SC+i}, v20\nv_mul_f32 v{33+2*q}, s{S_SC+i}, v21')
            else:
                CA(f'v_fmac_f32 v{32+2*q}, s{S_SC+i}, v20\nv_fmac_f32 v{33+2*q}, s{S_SC+i}, v21')
    CA(f'''
    ds_write_b128 v11, v[32:35]
    ds_write_b128 v11, v[36:39] offset:16
    ''')
    CA.signal(17)
    CA(f'''
    s_lshl_b32 s{T0}, s{S_WAVE}, 10
    s_add_u32 s{T0}, s{T0}, {L_CC}
    v_lshl_add_u32 v5, v0, 4, s{T0}
    v_lshl_add_u32 v6, v2, 4, s{T0}
    v_lshrrev_b32 v10, 2, v1
    v_lshl_add_u32 v10, v2, 2, v10
    v_and_b32 v11, 7, v10
    v_lshlrev_b32 v11, 1, v11
    v_bfe_u32 v12, v1, 1, 1
    v_xor_b32 v11, v11, v12
    v_lshlrev_b32 v11, 4, v11
    v_and_b32 v12, 1, v1
    v_lshlrev_b32 v12, 3, v12
    v_lshlrev_b32 v10, 8, v10
    v_add3_u32 v10, v10, v11, v12
    s_lshl_b32 s{T0}, s{S_WAVE}, 6
    v_xor_b32 v10, s{T0}, v10
    v_xor_b32 v11, 32, v10
    v_add_u32 v12, 0x10000, v10
    v_add_u32 v13, 0x10000, v11
    s_lshl_b32 s{T0}, s{S_K}, 14
    s_lshl_b32 s{T1}, s{S_J}, 9
    s_add_u32 s{T0}, s{T0}, s{T1}
    s_lshl_b32 s{T1}, s{S_WAVE}, 7
    s_add_u32 s{T0}, s{T0}, s{T1}
    s_add_u32 s{T0}, s{T0}, {W_E4}
    v_lshlrev_b32 v14, 6, v1
    v_lshl_add_u32 v14, v2, 4, v14
    v_add_u32 v14, s{T0}, v14
    v_mov_b32 v38, s{S_TAG}
    v_mov_b32 v39, s{S_TAG2}
    v_cmp_gt_u32 vcc, 2, v1
    v_cmp_eq_u32 {sp(S_M)}, 1, v1
    ''')
    CA.wait(17, 4)
    CA.stamp(12)
    for w in range(4):
        CA(f'ds_read_b128 v[{64+8*w}:{67+8*w}], v4 offset:{2048*w}')
        CA(f'ds_read_b128 v[{68+8*w}:{71+8*w}], v4 offset:{2048*w+16}')
    CA('s_waitcnt lgkmcnt(0)')
    for q in range(4):
        CA(f'''
        v_pk_add_f32 v[{64+2*q}:{65+2*q}], v[{64+2*q}:{65+2*q}], v[{72+2*q}:{73+2*q}]
        v_pk_add_f32 v[{80+2*q}:{81+2*q}], v[{80+2*q}:{81+2*q}], v[{88+2*q}:{89+2*q}]
        v_pk_add_f32 v[{64+2*q}:{65+2*q}], v[{64+2*q}:{65+2*q}], v[{80+2*q}:{81+2*q}]
        v_cvt_pk_bf16_f32 v{32+q}, v{64+2*q}, v{65+2*q}
        ''')
    CA('ds_write_b128 v5, v[32:35]')
    CA.wait(10, 4)
    for ks in range(16): CA(f'ds_read_b128 v[{64+4*ks}:{67+4*ks}], v6 offset:{64*ks}')
    def uvfrag(ks, t): return 128 + ((ks % 4) * 2 + t) * 4 + (32 if (ks // 4) % 2 else 0)
    def uvread(ks):
        for t in range(2):
            va = (10 + t) if ks < 8 else (12 + t)
            o = (ks % 8) * 8192
            CA(f'ds_read_b64_tr_b16 {vr(uvfrag(ks, t), 2)}, v{va} offset:{o}')
            CA(f'ds_read_b64_tr_b16 {vr(uvfrag(ks, t)+2, 2)}, v{va} offset:{o+4096}')
    for ks in range(8): uvread(ks)
    for ks in range(16):
        issued = min(16, (ks // 4) * 4 + 8)
        CA(f's_waitcnt lgkmcnt({min(15, 4*(issued - ks - 1))})')
        for t in range(2):
            c = '0' if ks == 0 else vr(28 + 4 * t, 4)
            CA(f'v_mfma_f32_16x16x32_bf16 {vr(28+4*t, 4)}, {vr(uvfrag(ks, t), 4)}, v[{64+4*ks}:{67+4*ks}], {c}')
        if ks % 4 == 3 and ks + 5 < 16:
            for k2 in range(ks + 5, ks + 9): uvread(k2)
    CA(f'''
    s_nop 7
    v_cvt_pk_bf16_f32 v36, v28, v29
    v_cvt_pk_bf16_f32 v37, v30, v31
    v_cvt_pk_bf16_f32 v40, v32, v33
    v_cvt_pk_bf16_f32 v41, v34, v35
    v_cndmask_b32 v36, v36, v40, {sp(S_M)}
    v_cndmask_b32 v37, v37, v41, {sp(S_M)}
    s_and_saveexec_b64 {sp(S_EX)}, vcc
    global_store_dwordx4 v14, v[36:39], {sp(P_WS)} sc1
    s_mov_b64 exec, {sp(S_EX)}
    ''')
    CA.stamp(13)
    CA('s_branch L_fin')

    FL = Prog(stamps); FC = Prog(stamps)
    FL.label('L_F_l')
    for p in (FL, FC):
        if p is FC: p.label('L_F_c')
        p(f'''
        s_sub_u32 s{S_J5}, s{S_IDX}, 16          ; j
        s_lshl_b32 s{S_STRIP}, s{S_XCD}, 3
        s_add_u32 s{S_STRIP}, s{S_STRIP}, s{S_J5}   ; Y: h*2+half
        s_lshl_b32 s{S_K}, s{S_XCD}, 2
        s_add_u32 s{S_K}, s{S_K}, s{S_J5}
        s_sub_u32 s{S_K}, s{S_K}, 8                 ; Z: h
        s_mul_i32 s{S_R}, s{S_XCD}, 3
        s_add_u32 s{S_R}, s{S_R}, s{S_J5}
        s_sub_u32 s{S_R}, s{S_R}, 12
        s_cmp_lt_u32 s{S_J5}, 8
        s_cbranch_scc1 L_Y_{'l' if p is FL else 'c'}
        s_cmp_lt_u32 s{S_J5}, 12
        s_cbranch_scc1 L_Z_{'l' if p is FL else 'c'}
        s_cmp_ge_u32 s{S_J5}, 15
        s_cbranch_scc1 L_tail_{'l' if p is FL else 'c'}
        s_cmp_ge_u32 s{S_R}, 20
        s_cbranch_scc1 L_tail_{'l' if p is FL else 'c'}
        ''')
    dma_voff(FL, 6, 128, 7680, 3, 4)
    FL(f'''
    s_lshl_b32 s{T4}, s{S_R}, 7
    s_mul_i32 s{T2}, s{S_LW}, {20*8*7680}
    s_add_u32 s{T4}, s{T4}, s{T2}
    s_mul_i32 s{T5}, s{S_LW}, 20480
    ''')
    load_seq(FL, P_WMOD, T4, 8 * 7680, 20, [6], s_lds=T5, lds_const=0)
    FL('s_waitcnt vmcnt(0)'); FL.signal(0); FL.stamp(1)
    FL.wait(5, 4, sleep=1)
    FL('s_branch L_tail_l')
    def p0tile(C, colbase_bytes, s_tile, cnt_ready, cnt_done):
        act_prep(C, True, False, cnt=cnt_ready)
        C(f's_mov_b32 s{T0}, 0')
        aaddr(C, 8, L_ACT, ACTP, T0, 9)
        trpat(C, 25, 128, S_WAVE, 9, 24)
        C(f'''
        s_lshl_b32 s{T0}, s{s_tile}, 2
        s_add_u32 s{T0}, s{T0}, s{S_WAVE}
        s_lshl_b32 s{T0}, s{T0}, 8
        s_add_u32 s{T0}, s{T0}, {W_E0 + colbase_bytes}
        v_lshl_add_u32 v21, v1, 4, s{T0}
        ''')
        tag_setup(C)
        C.stamp(1)
        C.wait(cnt_ready, 8)
        gemv2(C, 20, 8, 25, 4096, 2048, ACC, banks=(64, 144), batch=10)
        C.signal(cnt_done)
        C('s_nop 7')
        exec_set(C, '0xffff')
        store_granule(C, 21)
        exec_restore(C)
    C = FC
    p0tile(C, 0, S_R, 0, 5)
    C.stamp(2)
    C('s_branch L_tail_c')
    FL.label('L_Y_l')
    dma_voff(FL, 6, 128, 8192, 3, 4)
    FL(f'''
    s_lshl_b32 s{T4}, s{S_STRIP}, 7
    s_mul_i32 s{T2}, s{S_LW}, {20*8*8192}
    s_add_u32 s{T4}, s{T4}, s{T2}
    s_mul_i32 s{T5}, s{S_LW}, 20480
    ''')
    load_seq(FL, P_WQ, T4, 8 * 8192, 20, [6], s_lds=T5, lds_const=0)
    FL('s_waitcnt vmcnt(0)'); FL.signal(2); FL.stamp(2)
    FL.wait(5, 4, sleep=1)
    FL('s_branch L_tail_l')
    C.label('L_Y_c')
    act_prep(C, False, True)
    C(f'''
    v_lshlrev_b32 v4, 4, v3
    v_add_u32 v4, {W_E0}, v4
    v_add_u32 v5, 512, v3
    v_min_u32 v5, 639, v5
    v_lshlrev_b32 v6, 4, v5
    v_add_u32 v6, {W_E0}, v6
    v_add_u32 v7, {640*16}, v4
    v_add_u32 v10, {640*16}, v6
    v_add_u32 v11, 4096, v4
    v_add_u32 v12, 4096, v7
    ''')
    C.wait(15, 4)
    C(f'''
    v_lshlrev_b32 v13, 3, v3
    v_add_u32 v13, {L_XNT}, v13
    ds_read_b64 v[14:15], v13
    ds_read_b64 v[16:17], v13 offset:2048
    v_lshlrev_b32 v13, 3, v5
    v_add_u32 v13, {L_XNT}, v13
    ds_read_b64 v[18:19], v13
    ''')
    permaddr(C, 20, 3, 56, 57); C(f'v_add_u32 v20, {L_ACT}, v20')
    permaddr(C, 21, 5, 56, 57); C(f'v_add_u32 v21, {L_ACT}, v21')
    C('s_waitcnt lgkmcnt(0)')
    for ci in range(3):
        for half in range(2):
            unpack(C, 40 + 4 * ci + 2 * half, 41 + 4 * ci + 2 * half, 14 + 2 * ci + half)
    C(f's_mov_b32 s{T0}, 0')
    aaddr(C, 8, L_ACT, ACTP, T0, 9)
    trpat(C, 24, 128, S_WAVE, 9, 25)
    C(f'''
    s_lshl_b32 s{T0}, s{S_STRIP}, 2
    s_add_u32 s{T0}, s{T0}, s{S_WAVE}
    s_lshl_b32 s{T0}, s{T0}, 8
    s_add_u32 s{T0}, s{T0}, {W_E1}
    v_lshlrev_b32 v13, 6, v1
    v_lshlrev_b32 v14, 4, v2
    v_add3_u32 v13, v13, v14, s{T0}
    ''')
    tag_setup(C)
    C.stamp(1)
    C.wait(2, 4, sleep=1)
    C.stamp(2)
    loads = [f'global_load_dwordx4 v[{64+4*i}:{67+4*i}], v{a}, {sp(P_WS)} sc1' for i, a in enumerate([4, 11, 6, 7, 12, 10])]
    poll_loop(C, loads, [(66 + 4 * i, 67 + 4 * i) for i in range(6)])
    C.stamp(3)
    for ci, (ar, off) in enumerate([(20, 0), (20, 512), (21, 0)]):
        sa = 64 + 4 * ci; ca = 76 + 4 * ci
        for half in range(2):
            x = 40 + 4 * ci + 2 * half
            unpack(C, 92, 93, sa + half)
            unpack(C, 94, 95, ca + half)
            C(f'''
            v_pk_fma_f32 v[90:91], v[{x}:{x+1}], v[94:95], v[{x}:{x+1}]
            v_pk_add_f32 v[90:91], v[90:91], v[92:93]
            v_cvt_pk_bf16_f32 v90, v90, v91
            ds_write_b16 v{ar}, v90 offset:{off + (2*half)*ACTP}
            ds_write_b16_d16_hi v{ar}, v90 offset:{off + (2*half+1)*ACTP}
            ''')
    C.signal(3); C.wait(3, 4)
    gemv2(C, 20, 8, 24, 4096, 2048, ACC, swap=True, banks=(64, 144), batch=10)
    C.signal(5)
    C('s_nop 7')
    exec_set(C, sp(S_M4))
    store_granule(C, 13)
    exec_restore(C)
    C.stamp(4)
    C('s_branch L_tail_c')
    FL.label('L_Z_l')
    FL(f'''
    s_lshl_b32 s{T4}, s{S_K}, 8
    s_lshl_b32 s{T5}, s{S_LW}, 20
    s_add_u32 s{T4}, s{T4}, s{T5}
    s_lshl_b32 s{T5}, s{S_LW}, 15
    v_lshrrev_b32 v3, 4, v0
    v_and_b32 v4, 15, v0
    v_xor_b32 v4, v4, v3
    ''')
    for q in range(4):
        FL(f'v_xor_b32 v{8+q}, {4*q}, v4\nv_lshlrev_b32 v{8+q}, 4, v{8+q}\nv_lshl_add_u32 v{8+q}, v3, 13, v{8+q}')
    load_seq(FL, P_WUK, T4, 4 * 8192, 32, [8, 9, 10, 11], s_lds=T5, lds_const=0)
    FL('s_waitcnt vmcnt(0)'); FL.signal(2); FL.stamp(2)
    FL.wait(5, 4, sleep=1)
    FL('s_branch L_tail_l')
    C.label('L_Z_c')
    C(f'''
    v_xor_b32 v30, v1, v2
    v_lshlrev_b32 v30, 4, v30
    v_lshl_add_u32 v30, v1, 8, v30
    s_lshl_b32 s{T1}, s{S_WAVE}, 15
    v_add_u32 v30, s{T1}, v30
    ''')
    for ks in range(4): C(f'v_xor_b32 v{32+ks}, {64*ks}, v30')
    C(f'''
    s_lshl_b32 s{T0}, s{S_K}, 11
    s_add_u32 s{T0}, s{T0}, {W_E1}
    v_and_b32 v4, 3, v0
    v_lshlrev_b32 v4, 6, v4
    v_lshrrev_b32 v5, 1, v2
    v_lshl_add_u32 v4, v5, 8, v4
    v_and_b32 v5, 1, v2
    v_lshl_add_u32 v4, v5, 5, v4
    v_add_u32 v4, s{T0}, v4
    s_lshl_b32 s{T0}, s{S_K}, 11
    s_lshl_b32 s{T1}, s{S_WAVE}, 9           ; w*32 granules*16B
    s_add_u32 s{T0}, s{T0}, s{T1}
    s_add_u32 s{T0}, s{T0}, {W_E2}
    v_and_b32 v5, 3, v1
    v_lshlrev_b32 v5, 16, v5
    v_lshrrev_b32 v6, 2, v1
    v_lshl_add_u32 v5, v6, 6, v5
    v_lshl_add_u32 v5, v2, 4, v5
    v_add_u32 v5, s{T0}, v5
    ''')
    tag_setup(C)
    C(f'''
    s_mov_b32 s{T1}, {fl(LOG2E / (128 ** 0.5))}
    v_mov_b32 v18, s{S_TAG}
    v_mov_b32 v19, s{S_TAG2}
    v_mov_b32 v22, s{S_TAG}
    v_mov_b32 v23, s{S_TAG2}
    ''')
    C.wait(2, 4, sleep=1)
    for t in range(8):
        for ks in range(4):
            C(f'ds_read_b128 {vr(128+(t*4+ks)*4, 4)}, v{32+ks} offset:{4096*t}')
    C('s_waitcnt lgkmcnt(0)')
    C.stamp(2)
    loads = []
    for ks in range(4):
        for hf in range(2):
            r = 96 + 8 * ks + 4 * hf
            loads.append(f'global_load_dwordx4 {vr(r, 4)}, v4, {sp(P_WS)} offset:{512*ks + 16*hf} sc1')
    poll_loop(C, loads, [(98 + 4 * i, 99 + 4 * i) for i in range(8)])
    C.stamp(5)
    for ks in range(4):
        C(f'v_mov_b32 v{98+8*ks}, v{100+8*ks}\nv_mov_b32 v{99+8*ks}, v{101+8*ks}')
    C('s_nop 0')
    for ks in range(4):
        for t in range(8):
            c = '0' if ks == 0 else vr(28 + 4 * t if t < 7 else 64, 4)
            a = 28 + 4 * t if t < 7 else 64
            C(f'v_mfma_f32_16x16x32_bf16 {vr(a, 4)}, {vr(128+(t*4+ks)*4, 4)}, {vr(96+8*ks, 4)}, {c}')
    C('s_nop 1')
    for t in range(8):
        a = 28 + 4 * t if t < 7 else 64
        if t == 7: C('s_nop 3')
        C(f'''
        v_mul_f32 v{a}, s{T1}, v{a}
        v_mul_f32 v{a+1}, s{T1}, v{a+1}
        v_mul_f32 v{a+2}, s{T1}, v{a+2}
        v_mul_f32 v{a+3}, s{T1}, v{a+3}
        v_cvt_pk_bf16_f32 v{70+2*t}, v{a}, v{a+1}
        v_cvt_pk_bf16_f32 v{71+2*t}, v{a+2}, v{a+3}
        ''')
    for half in range(2):
        d = 16 + 4 * half
        b0 = 70 + 8 * half
        C(f'v_mov_b32 v{d}, v{b0}\nv_mov_b32 v{d+1}, v{b0+1}\ns_nop 0')
        for t in range(1, 4):
            C(f'v_mov_b32_dpp v{d}, v{b0+2*t} row_shr:{4*t} row_mask:0xf bank_mask:{hex(1<<t)}')
            C(f'v_mov_b32_dpp v{d+1}, v{b0+1+2*t} row_shr:{4*t} row_mask:0xf bank_mask:{hex(1<<t)}')
        C(f'global_store_dwordx4 v5, {vr(d, 4)}, {sp(P_WS)} offset:{256*half} sc1')
    C.signal(5)
    C.stamp(6)
    for p, sfx in ((FL, 'l'), (C, 'c')):
        p.label('L_tail_' + sfx)
        p(f'''
        s_mul_i32 s{S_R}, s{S_XCD}, 5
        s_add_u32 s{S_R}, s{S_R}, s{S_J5}           ; j<5: P0n tile
        s_mul_i32 s{S_J}, s{S_XCD}, 7
        s_add_u32 s{S_J}, s{S_J}, s{S_J5}           ; j<7: j6
        s_cmp_lt_u32 s{S_J5}, 7
        s_cbranch_scc1 L_T6_{sfx}
        s_cmp_lt_u32 s{S_J5}, 8
        s_cbranch_scc1 L_fin
        s_sub_u32 s{S_R}, s{S_R}, 11                ; j>=11: unit5
        s_mul_i32 s{S_J}, s{S_XCD}, 3
        s_add_u32 s{S_J}, s{S_J}, s{S_J5}
        s_sub_u32 s{S_J}, s{S_J}, 8                 ; 8<=j<11: unit7
        s_cmp_lt_u32 s{S_J5}, 11
        s_cbranch_scc1 L_T7_{sfx}
        s_branch L_T5_{sfx}
        ''')
        p.label('L_T6_' + sfx)
        p(f's_cmp_ge_u32 s{S_J}, 54\ns_cbranch_scc1 L_fin')
    dma_voff(FL, 6, 128, 7680, 3, 4)
    dma_voff(FL, 5, 64, 3456, 3, 4)
    FL(f'''
    s_cmp_ge_u32 s{S_J5}, 5
    s_cbranch_scc1 L_F_no0n
    s_lshl_b32 s{T4}, s{S_R}, 7
    s_add_u32 s{T4}, s{T4}, {1280*2}
    s_mul_i32 s{T2}, s{S_LW}, {20*8*7680}
    s_add_u32 s{T4}, s{T4}, s{T2}
    s_mul_i32 s{T5}, s{S_LW}, 20480
    ''')
    load_seq(FL, P_WMOD, T4, 8 * 7680, 20, [6], s_lds=T5, lds_const=L_WMN)
    FL('s_waitcnt vmcnt(0)'); FL.signal(18); FL.stamp(3)
    FL.wait(19, 4, sleep=1)
    FL.label('L_F_no0n')
    FL(f'''
    s_lshl_b32 s{T4}, s{S_J}, 6
    s_and_b32 s{T2}, s{S_LW}, 1
    s_mul_i32 s{T2}, s{T2}, {20*16*3456}
    s_add_u32 s{T4}, s{T4}, s{T2}
    s_cmp_ge_u32 s{S_LW}, 2
    s_cselect_b32 s{S_CB}, s{P_WU}, s{P_WG}
    s_cselect_b32 s{S_CB+1}, s{P_WU+1}, s{P_WG+1}
    s_mul_i32 s{T5}, s{S_LW}, 20480
    ''')
    load_seq(FL, S_CB, T4, 16 * 3456, 20, [5], s_lds=T5, lds_const=L_WG6)
    FL('s_waitcnt vmcnt(0)'); FL.signal(13); FL.stamp(5)
    FL('s_branch L_fin')
    FL.label('L_T5_l')
    dma_voff(FL, 5, 64, 1280, 3, 4)
    FL(f'''
    s_lshr_b32 s{T4}, s{S_R}, 1
    s_lshl_b32 s{T4}, s{T4}, 6
    s_and_b32 s{T2}, s{S_R}, 1
    s_mul_i32 s{T2}, s{T2}, {2048*1280}
    s_add_u32 s{T4}, s{T4}, s{T2}
    s_mul_i32 s{T2}, s{S_LW}, {512*1280}
    s_add_u32 s{T4}, s{T4}, s{T2}
    s_lshl_b32 s{T5}, s{S_LW}, 15
    ''')
    load_seq(FL, P_WO, T4, 16 * 1280, 32, [5], s_lds=T5, lds_const=L_WO)
    FL('s_waitcnt vmcnt(0)'); FL.signal(10); FL.stamp(4)
    FL('s_branch L_fin')
    FL.label('L_T7_l')
    FL(f's_cmp_ge_u32 s{S_J}, 20\ns_cbranch_scc1 L_fin')
    dma_voff(FL, 5, 64, 1280, 3, 4)
    FL(f'''
    s_lshl_b32 s{T4}, s{S_J}, 6
    s_mul_i32 s{T2}, s{S_LW}, {27*16*1280}
    s_add_u32 s{T4}, s{T4}, s{T2}
    s_mul_i32 s{T5}, s{S_LW}, {27*1024}
    ''')
    load_seq(FL, P_WD, T4, 16 * 1280, 27, [5], s_lds=T5, lds_const=L_WD)
    FL('s_waitcnt vmcnt(0)'); FL.signal(10); FL.stamp(4)
    FL('s_branch L_fin')
    C(f's_cmp_ge_u32 s{S_J5}, 5\ns_cbranch_scc1 L_B_no0n')
    C.wait(5, 4)
    p0tile(C, 1280 * 16, S_R, 18, 19)
    C.label('L_B_no0n')
    C(f's_mov_b32 s{T0}, 0')
    aaddr(C, 8, L_ACT, ACTP, T0, 9)
    CA = C
    CA(f'''
    v_add_u32 v5, 512, v3
    v_min_u32 v5, 639, v5
    v_lshlrev_b32 v4, 4, v3
    v_lshlrev_b32 v6, 4, v5
    v_add_u32 v7, 4096, v4
    v_lshlrev_b32 v10, 1, v3
    v_lshlrev_b32 v11, 1, v5
    v_add_u32 v12, 512, v10
    ''')
    for b in range(4):
        CA(f'global_load_ushort v{96+b}, v10, {sp(P_X)} offset:{1280*b}')
        CA(f'global_load_ushort v{100+b}, v12, {sp(P_X)} offset:{1280*b}')
        CA(f'global_load_ushort v{104+b}, v11, {sp(P_X)} offset:{1280*b}')
    CA(f'''
    v_add_u32 v12, {W_E0}, v4
    v_add_u32 v13, {W_E0}, v7
    v_add_u32 v14, {W_E0}, v6
    ''')
    loads = []; checks = []
    for k, base in enumerate((1280, 1920, 2560)):
        for ci in range(3):
            CA(f'v_add_u32 v{200+3*k+ci}, {base*16}, v{12+ci}')
            r = 108 + 12 * k + 4 * ci
            loads.append(f'global_load_dwordx4 v[{r}:{r+3}], v{200+3*k+ci}, {sp(P_WS)} sc1')
            checks += [(r + 2, r + 3)]
    poll_loop(CA, loads, checks)
    CA(f'''
    v_add_u32 v12, {W_E5}, v4
    v_add_u32 v13, {W_E5}, v7
    v_add_u32 v14, {W_E5}, v6
    v_add_u32 v15, {640*16}, v12
    v_add_u32 v16, {640*16}, v13
    v_add_u32 v17, {640*16}, v14
    ''')
    permaddr(CA, 20, 3, 56, 57); CA(f'v_add_u32 v20, {L_ACT}, v20')
    permaddr(CA, 21, 5, 56, 57); CA(f'v_add_u32 v21, {L_ACT}, v21')
    for ci in range(3):
        for b in range(4): CA(f'v_lshlrev_b32 v{210+4*ci+b}, 16, v{96+4*ci+b}')
        for half in range(2):
            unpack(CA, 222 + 4 * ci + 2 * half, 223 + 4 * ci + 2 * half, 108 + 4 * ci + half)
            unpack(CA, 234 + 4 * ci + 2 * half, 235 + 4 * ci + 2 * half, 120 + 4 * ci + half)
            unpack(CA, 96 + 4 * ci + 2 * half, 97 + 4 * ci + 2 * half, 132 + 4 * ci + half)
            CA(f'v_add_f32 v{96+4*ci+2*half}, 1.0, v{96+4*ci+2*half}\nv_add_f32 v{97+4*ci+2*half}, 1.0, v{97+4*ci+2*half}')
    CA(f's_and_b32 s{T4}, s{S_WAVE}, 1')
    trpat(CA, 10, 64, T4, 18, 19)
    CA(f'''
    s_lshr_b32 s{T0}, s{S_WAVE}, 1
    s_mul_i32 s{T0}, s{T0}, 40960
    v_add_u32 v10, s{T0}, v10
    s_lshl_b32 s{T0}, s{S_WAVE}, 5
    s_add_u32 s{T0}, s{T0}, {L_RED}
    v_mov_b32 v18, s{T0}
    v_mov_b32 v19, {L_RED}
    v_cmp_gt_u32 vcc, 128, v3
    s_and_b32 s{T0}, s{S_WAVE}, 1
    s_lshl_b32 s{T1}, s{T0}, 10
    s_add_u32 s{T1}, s{T1}, {L_RED4}
    v_lshl_add_u32 v22, v0, 4, s{T1}
    s_lshl_b32 s{T1}, s{S_J}, 1
    s_add_u32 s{T0}, s{T0}, s{T1}
    s_lshl_b32 s{T0}, s{T0}, 8
    s_add_u32 s{T0}, s{T0}, {W_E6}
    v_lshlrev_b32 v23, 6, v1
    v_lshl_add_u32 v23, v2, 4, v23
    v_add_u32 v23, s{T0}, v23
    s_mov_b64 {sp(S_M)}, vcc
    ''')
    loads = [f'global_load_dwordx4 v[{64+4*i}:{67+4*i}], v{12+i}, {sp(P_WS)} sc1' for i in range(6)]
    poll_loop(CA, loads, [(66 + 4 * i, 67 + 4 * i) for i in range(6)])
    CA.stamp(14)
    for ci in range(3):
        for half in range(2):
            o = 4 * ci + 2 * half
            unpack(CA, 90, 91, 64 + 4 * ci + half)
            unpack(CA, 92, 93, 76 + 4 * ci + half)
            CA(f'''
            v_pk_add_f32 v[90:91], v[90:91], v[92:93]
            v_pk_fma_f32 v[90:91], v[90:91], v[{222+o}:{223+o}], v[{210+o}:{211+o}]
            v_cvt_pk_bf16_f32 v90, v90, v91
            ''')
            unpack(CA, 144 + o, 145 + o, 90)
    for b in range(4):
        CA(f'''
        v_cndmask_b32 v90, 0, v{152+b}, {sp(S_M)}
        v_add_f32 v{160+b}, v{144+b}, v{148+b}
        v_add_f32 v{160+b}, v{160+b}, v90
        v_mul_f32 v{164+b}, v{144+b}, v{144+b}
        v_fmac_f32 v{164+b}, v{148+b}, v{148+b}
        v_fmac_f32 v{164+b}, v90, v90
        ''')
    for m in ('quad_perm:[1,0,3,2]', 'quad_perm:[2,3,0,1]', 'row_half_mirror', 'row_mirror'):
        for r in range(8):
            CA('v_add_f32_dpp v%d, v%d, v%d %s row_mask:0xf bank_mask:0xf' % (160 + r, 160 + r, 160 + r, m))
    for r in range(8): CA(f'v_mov_b32 v{168+r}, v{160+r}')
    for r in range(8): CA(f'v_permlane16_swap_b32 v{160+r}, v{168+r}')
    for r in range(8): CA(f'v_add_f32 v{160+r}, v{160+r}, v{168+r}')
    for r in range(8): CA(f'v_mov_b32 v{168+r}, v{160+r}')
    for r in range(8): CA(f'v_permlane32_swap_b32 v{160+r}, v{168+r}')
    for r in range(8): CA(f'v_add_f32 v{160+r}, v{160+r}, v{168+r}')
    exec_set(CA, '1')
    CA('ds_write_b128 v18, v[160:163]\nds_write_b128 v18, v[164:167] offset:16')
    exec_restore(CA)
    CA.signal(12); CA.wait(12, 4)
    for w in range(4):
        CA(f'ds_read_b128 v[{168+8*w}:{171+8*w}], v19 offset:{32*w}')
        CA(f'ds_read_b128 v[{172+8*w}:{175+8*w}], v19 offset:{32*w+16}')
    CA('s_waitcnt lgkmcnt(0)')
    for r in range(0, 8, 2):
        CA(f'''
        v_pk_add_f32 v[{168+r}:{169+r}], v[{168+r}:{169+r}], v[{176+r}:{177+r}]
        v_pk_add_f32 v[{184+r}:{185+r}], v[{184+r}:{185+r}], v[{192+r}:{193+r}]
        v_pk_add_f32 v[{168+r}:{169+r}], v[{168+r}:{169+r}], v[{184+r}:{185+r}]
        ''')
    CA(f's_mov_b32 s{T1}, {fl(1.0/640)}')
    for b in range(4):
        CA(f'''
        v_mul_f32 v{168+b}, s{T1}, v{168+b}
        v_mul_f32 v{172+b}, s{T1}, v{172+b}
        v_fma_f32 v{172+b}, -v{168+b}, v{168+b}, v{172+b}
        v_add_f32 v{172+b}, {fl(1e-5)}, v{172+b}
        v_rsq_f32 v{172+b}, v{172+b}
        ''')
    CA('s_nop 0')
    for ci, (ar, off) in enumerate([(20, 0), (20, 512), (21, 0)]):
        for half in range(2):
            o = 4 * ci + 2 * half
            b0 = 2 * half; b1 = b0 + 1
            CA(f'''
            v_pk_add_f32 v[90:91], v[{144+o}:{145+o}], v[{168+b0}:{169+b0}] neg_lo:[0,1] neg_hi:[0,1]
            v_pk_mul_f32 v[90:91], v[90:91], v[{172+b0}:{173+b0}]
            v_pk_fma_f32 v[90:91], v[90:91], v[{96+o}:{97+o}], v[{234+o}:{235+o}]
            v_cvt_pk_bf16_f32 v90, v90, v91
            ds_write_b16 v{ar}, v90 offset:{off + b0*ACTP}
            ds_write_b16_d16_hi v{ar}, v90 offset:{off + b1*ACTP}
            ''')
    CA.signal(13); CA.wait(13, 8)
    gemv2(CA, 20, 8, 10, 2048, 1024, ACC, swap=True, banks=(64, 144), batch=10)
    lskip = CA.newl('p6w')
    CA(f'''
    s_cmp_lt_u32 s{S_WAVE}, 2
    s_cbranch_scc1 {lskip}
    s_nop 7
    ds_write_b128 v22, v[28:31]
    ''')
    CA.signal(14)
    CA('s_branch L_fin')
    CA.label(lskip)
    CA(f'''
    s_mov_b32 s{T0}, {fl(0.044715)}
    s_mov_b32 s{T1}, {fl(-2.0 * 0.7978845608028654 * LOG2E)}
    s_nop 6
    ''')
    for r in range(4): CA(f'v_mul_f32 v{70+r}, v{28+r}, v{28+r}')
    for r in range(4): CA(f'v_mul_f32 v{70+r}, s{T0}, v{70+r}')
    for r in range(4): CA(f'v_fma_f32 v{70+r}, v{70+r}, v{28+r}, v{28+r}')
    for r in range(4): CA(f'v_mul_f32 v{70+r}, s{T1}, v{70+r}')
    for r in range(4): CA(f'v_exp_f32 v{70+r}, v{70+r}')
    for r in range(4): CA(f'v_add_f32 v{70+r}, 1.0, v{70+r}')
    for r in range(4): CA(f'v_rcp_f32 v{70+r}, v{70+r}')
    for r in range(4): CA(f'v_mul_f32 v{28+r}, v{28+r}, v{70+r}')
    CA.wait(14, 2)
    CA('ds_read_b128 v[64:67], v22\ns_waitcnt lgkmcnt(0)')
    for r in range(4): CA(f'v_mul_f32 v{28+r}, v{28+r}, v{64+r}')
    exec_set(CA, sp(S_M4))
    store_granule(CA, 23)
    exec_restore(CA)
    CA.stamp(15)
    CA('s_branch L_fin')

    CB = Prog(stamps)
    CB.label('L_T5_c')
    red_regs(CB)
    tag_setup(CB)
    CB(f'''
    s_and_b32 s{S_K}, s{S_R}, 1
    s_lshl_b32 s{T0}, s{S_K}, 13
    s_add_u32 s{T0}, s{T0}, {W_E4}
    v_lshl_add_u32 v4, v3, 4, s{T0}
    v_add_u32 v5, 4096, v4
    ''')
    loads = []; checks = []
    for b in range(4):
        for hf in range(2):
            i = 2 * b + hf
            if b: CB(f'v_add_u32 v{10+i}, {16384*b}, v{4+hf}')
            else: CB(f'v_mov_b32 v{10+i}, v{4+hf}')
            loads.append(f'global_load_dwordx4 v[{64+4*i}:{67+4*i}], v{10+i}, {sp(P_WS)} sc1')
            checks += [(66 + 4 * i, 67 + 4 * i)]
    granaddr(CB, 20, 3, 22)
    CB(f'''
    v_add_u32 v20, {L_ACT5}, v20
    s_lshr_b32 s{T0}, s{S_WAVE}, 1
    s_lshl_b32 s{T0}, s{T0}, 11              ; kq*32*64
    ''')
    aaddr(CB, 8, L_ACT5, ACT5P, T0, 9)
    CB(f's_and_b32 s{T4}, s{S_WAVE}, 1')
    trpat(CB, 9, 64, T4, 18, 19)
    CB(f'''
    s_lshr_b32 s{T0}, s{S_WAVE}, 1
    s_lshl_b32 s{T0}, s{T0}, 16              ; kq*32*2048
    v_add_u32 v9, s{T0}, v9
    s_mul_i32 s{T0}, s{S_K}, 640
    s_lshr_b32 s{T1}, s{S_R}, 1
    s_lshl_b32 s{T1}, s{T1}, 5
    s_add_u32 s{T0}, s{T0}, s{T1}
    s_lshl_b32 s{T1}, s{T4}, 4
    s_add_u32 s{T0}, s{T0}, s{T1}
    s_lshl_b32 s{T0}, s{T0}, 4
    s_add_u32 s{T0}, s{T0}, {W_E5}
    v_lshl_add_u32 v21, v1, 4, s{T0}
    ''')
    CB.wait(10, 4, sleep=1)
    poll_loop(CB, loads, checks)
    CB.stamp(11)
    for b in range(4):
        for hf in range(2):
            i = 2 * b + hf
            CB(f'ds_write_b64 v20, v[{64+4*i}:{65+4*i}] offset:{b*ACT5P + hf*2048}')
    CB.signal(11); CB.wait(11, 4)
    CB.stamp(12)
    gemv2(CB, 32, 8, 9, 2048, 1024, ACC)
    pair_reduce(CB, 12, 'L_fin')
    exec_set(CB, '0xffff')
    store_granule(CB, 21)
    exec_restore(CB)
    CB.stamp(13)
    CB('s_branch L_fin')
    CC = Prog(stamps)
    CC.label('L_T7_c')
    CC(f's_cmp_ge_u32 s{S_J}, 20\ns_cbranch_scc1 L_fin')
    red_regs(CC)
    tag_setup(CC)
    CC(f'''
    s_lshl_b32 s{T0}, s{S_J}, 5
    s_and_b32 s{T4}, s{S_WAVE}, 1
    s_lshl_b32 s{T1}, s{T4}, 4
    s_add_u32 s{T0}, s{T0}, s{T1}
    v_add_u32 v5, s{T0}, v1                  ; col
    v_lshlrev_b32 v19, 1, v5
    ''')
    for b in range(4): CC(f'global_load_ushort v{96+b}, v19, {sp(P_X)} offset:{1280*b}')
    CC(f'''
    v_lshlrev_b32 v4, 4, v5
    v_add_u32 v11, {W_E0 + 1280*16}, v4
    v_add_u32 v12, {W_E0 + 3200*16}, v4
    v_add_u32 v13, {W_E5}, v4
    v_add_u32 v14, {W_E5 + 640*16}, v4
    v_add_u32 v5, 256, v3
    v_min_u32 v5, 431, v5
    v_lshrrev_b32 v4, 2, v3
    v_lshlrev_b32 v4, 8, v4
    v_and_b32 v6, 3, v3
    v_lshl_add_u32 v4, v6, 4, v4
    v_add_u32 v4, {W_E6}, v4
    v_lshrrev_b32 v6, 2, v5
    v_lshlrev_b32 v6, 8, v6
    v_and_b32 v7, 3, v5
    v_lshl_add_u32 v6, v7, 4, v6
    v_add_u32 v6, {W_E6}, v6
    ''')
    granaddr(CC, 20, 3, 22); CC(f'v_add_u32 v20, {L_ACT7}, v20')
    granaddr(CC, 21, 5, 22); CC(f'v_add_u32 v21, {L_ACT7}, v21')
    CC(f'''
    s_lshr_b32 s{T0}, s{S_WAVE}, 1
    s_mul_i32 s{T0}, s{T0}, {27*64}
    ''')
    aaddr(CC, 8, L_ACT7, ACT7P, T0, 9)
    trpat(CC, 9, 64, T4, 16, 17)
    CC(f'''
    s_lshr_b32 s{T0}, s{S_WAVE}, 1
    s_mul_i32 s{T0}, s{T0}, {27*2048}
    v_add_u32 v9, s{T0}, v9
    ''')
    CC.wait(10, 4, sleep=1)
    poll_loop(CC, [f'global_load_dwordx4 v[108:111], v11, {sp(P_WS)} sc1', f'global_load_dwordx4 v[240:243], v12, {sp(P_WS)} sc1',
                   f'global_load_dwordx4 v[116:119], v13, {sp(P_WS)} sc1', f'global_load_dwordx4 v[120:123], v14, {sp(P_WS)} sc1'],
              [(110, 111), (242, 243), (118, 119), (122, 123)])
    for half in range(2):
        unpack(CC, 90, 91, 116 + half)
        unpack(CC, 92, 93, 120 + half)
        unpack(CC, 94, 95, 108 + half)
        CC(f'''
        v_add_f32 v90, v90, v92
        v_add_f32 v91, v91, v93
        v_lshlrev_b32 v92, 16, v{96+2*half}
        v_lshlrev_b32 v93, 16, v{97+2*half}
        v_fma_f32 v90, v90, v94, v92
        v_fma_f32 v91, v91, v95, v93
        v_cvt_pk_bf16_f32 v90, v90, v91
        ''')
        unpack(CC, 40 + 2 * half, 41 + 2 * half, 90)
        unpack(CC, 44 + 2 * half, 45 + 2 * half, 240 + half)
    loads = []; checks = []
    for b in range(4):
        for hf in range(2):
            i = 2 * b + hf
            loads.append(f'global_load_dwordx4 v[{64+4*i}:{67+4*i}], v{4 if hf == 0 else 6}, {sp(P_WS)} offset:{64*b} sc1')
            checks += [(66 + 4 * i, 67 + 4 * i)]
    poll_loop(CC, loads, checks)
    CC.stamp(11)
    for b in range(4):
        CC(f'ds_write_b64 v20, v[{64+8*b}:{65+8*b}] offset:{b*ACT7P}')
        CC(f'ds_write_b64 v21, v[{68+8*b}:{69+8*b}] offset:{b*ACT7P}')
    CC.signal(11); CC.wait(11, 4)
    CC.stamp(12)
    gemv2(CC, 27, 8, 9, 2048, 1024, ACC)
    pair_reduce(CC, 12, 'L_fin')
    exec_set(CC, '0xffff')
    CC(f'''
    v_pk_fma_f32 v[28:29], v[28:29], v[44:45], v[40:41]
    v_pk_fma_f32 v[30:31], v[30:31], v[46:47], v[42:43]
    v_cvt_pk_bf16_f32 v64, v28, v29
    v_cvt_pk_bf16_f32 v65, v30, v31
    global_store_short v19, v64, {sp(P_OUT)}
    global_store_short_d16_hi v19, v64, {sp(P_OUT)} offset:1280
    global_store_short v19, v65, {sp(P_OUT)} offset:2560
    global_store_short_d16_hi v19, v65, {sp(P_OUT)} offset:3840
    ''')
    exec_restore(CC)
    lskip = CC.newl('p7f')
    CC(f'''
    s_cmp_lg_u32 s{S_J}, 0
    s_cbranch_scc1 {lskip}
    s_cmp_lg_u32 s{S_WAVE}, 0
    s_cbranch_scc1 {lskip}
    v_mov_b32 v4, 0
    v_mov_b32 v5, s{S_TAG}
    ''')
    exec_set(CC, '1')
    CC(f'global_store_dword v4, v5, {sp(P_WS)} sc1')
    exec_restore(CC)
    CC.label(lskip)
    CC.stamp(13)
    F = Prog(stamps)
    F.label('L_fin')
    if stamps:
        F(f'''
        s_memrealtime {sp(S_STAMP + 2*15)}
        s_waitcnt lgkmcnt(0)
        s_lshl_b32 s{T0}, s2, 10
        s_lshl_b32 s{T1}, s{S_WAVE}, 7
        s_add_u32 s{T0}, s{T0}, s{T1}
        s_add_u32 s{T0}, s{T0}, {W_STAMP}
        v_mov_b32 v4, s{T0}
        s_mov_b64 exec, 1
        ''')
        for i in range(16):
            F(f'v_mov_b32 v5, s{S_STAMP+2*i}\nglobal_store_dword v4, v5, {sp(P_WS)} offset:{4*i}')
    F('s_endpgm')
    body = H.text() + AC.text() + FC.text() + CB.text() + CC.text() + F.text() + AL.text() + FL.text()
    return body

HEADER = open('adaLN_cond__compressed_kv_cla__glu_gated_geglu__decode.s.ref').read().split('; @launch')[0]

def full(stamps=False):
    body = gen(stamps)
    return (HEADER + f'; @launch grid=(256,1,1) block=(512,1,1) lds={LDS_BYTES}\n' +
            f'''.amdgcn_target "amdgcn-amd-amdhsa--gfx950"
.text
.globl {NAME}
.p2align 8
.type {NAME},@function
{NAME}:
{body}L_end:
    s_endpgm
.section .rodata,"a"
.p2align 6
.amdhsa_kernel {NAME}
  .amdhsa_next_free_vgpr 256
  .amdhsa_next_free_sgpr 102
  .amdhsa_accum_offset 256
  .amdhsa_group_segment_fixed_size 0
  .amdhsa_kernarg_size 120
  .amdhsa_user_sgpr_count 2
  .amdhsa_user_sgpr_kernarg_segment_ptr 1
  .amdhsa_system_sgpr_workgroup_id_x 1
.end_amdhsa_kernel
''')

if __name__ == '__main__':
    stamps = len(sys.argv) > 2 and sys.argv[2] == 'stamps'
    open(sys.argv[1], 'w').write(full(stamps))
```

```python
import sys, struct

NAME = 'adaLN_cond__compressed_kv_cla__glu_gated_geglu__decode_kernel'

P_X, P_CKV, P_WQ, P_WUK, P_WUV, P_WO, P_BX, P_WG = 4, 6, 8, 10, 12, 14, 16, 18
P_WU, P_WD, P_C, P_WMOD, P_OUT, P_DBG, P_WS = 20, 22, 24, 26, 28, 30, 32
S_WAVE, S_XCD, S_IDX, S_TAG, S_TAG2, S_EP = 3, 34, 35, 36, 37, 38
S_STRIP = 39
S_LW = 40
S_J5 = 41
T0, T1, T2, T3, T4, T5 = 42, 43, 44, 45, 46, 47
S_EX = 48
S_CNT = 50
S_R = 51
S_M = 52
S_J = 54
S_K = 55
S_CB = 56
S_W = 59
S_STAMP = 60
S_SC = 92
S_EX2 = 100
S_S0 = 2
S_S0 = 0

def sp(r): return 's[%d:%d]' % (r, r + 1)
def vr(r, n=1): return 'v%d' % r if n == 1 else 'v[%d:%d]' % (r, r + n - 1)

L_CKV = 0
L_QA = 131072
L_PB = 147456
L_REDA = 155648
L_RED4 = 131072
L_CC = 147456
L_WUV = 0
L_WM = 0
L_WQ = 20480
L_WG6 = 0; L_WU6 = 40960
L_WMN = 0
L_WO = 0
L_WD = 0
L_ACT5 = 131072; ACT5P = 4160
L_ACT7 = 131072; ACT7P = 3648
L_ACT = 151552; ACTP = 1344
L_XNT = 156928
L_RED = 162048
L_CNT = 163072
LDS_BYTES = 163840

W_E0 = 0x1000
W_E1 = 0x20000
W_E2 = 0x40000
W_F3 = 0x80000
W_ST3 = 0x90000
W_E3 = 0x100000
W_E4 = 0x800000
W_E5 = 0x820000
W_E6 = 0x830000
W_STAMP = 0x900000

SPIN_CAP = 1 << 18
import os
NT = os.environ.get('NT', 'nt')
DEPTH = int(os.environ.get('DEPTH', '4'))
TAILWAIT = int(os.environ.get('TAILWAIT', '1'))
TDEPTH = int(os.environ.get('TDEPTH', '8'))
LOG2E = 1.4426950408889634
M4 = '0x000f000f'

def f2u(x): return struct.unpack('<I', struct.pack('<f', x))[0]
def fl(x): return '0x%08x' % f2u(x)

UID = [0]
class Prog:
    def __init__(self, stamps):
        self.o = []; self.stamps = stamps
    def __call__(self, s):
        for line in s.strip('\n').split('\n'):
            line = line.strip()
            if line: self.o.append('    ' + line)
    def label(self, l): self.o.append(l + ':')
    def signal(self, k):
        self(f's_mov_b64 {sp(S_EX2)}, exec\ns_mov_b64 exec, 1\nds_add_u32 v61, v62 offset:{4*k}\ns_mov_b64 exec, {sp(S_EX2)}')
    def wait(self, k, target, sleep=0):
        l0 = self.newl('lw')
        self.label(l0)
        if sleep: self(f's_sleep {sleep}')
        self(f'''
        ds_read_b32 v63, v61 offset:{4*k}
        s_waitcnt lgkmcnt(0)
        v_readfirstlane_b32 s{S_W}, v63
        s_cmp_lt_u32 s{S_W}, {target}
        s_cbranch_scc1 {l0}
        ''')
    def newl(self, p):
        UID[0] += 1; return 'L_%s_%d' % (p, UID[0])
    def stamp(self, i):
        if self.stamps: self('s_memrealtime %s' % sp(S_STAMP + 2 * i))
    def text(self): return '\n'.join(self.o) + '\n'

def rowreduce(p, v, t, op='add'):
    o = 'v_%s_f32' % op
    p(f'''
    v_mov_b32 v{t}, v{v}
    s_nop 1
    v_permlane16_swap_b32 v{v}, v{t}
    s_nop 1
    {o} v{v}, v{v}, v{t}
    v_mov_b32 v{t}, v{v}
    s_nop 1
    v_permlane32_swap_b32 v{v}, v{t}
    s_nop 1
    {o} v{v}, v{v}, v{t}
    ''')

def allreduce(p, v, t, op='add'):
    o = 'v_%s_f32' % op
    for m in ('quad_perm:[1,0,3,2]', 'quad_perm:[2,3,0,1]', 'row_half_mirror', 'row_mirror'):
        p('s_nop 1')
        p('%s_dpp v%d, v%d, v%d %s row_mask:0xf bank_mask:0xf' % (o, v, v, v, m))
    p('s_nop 0')
    rowreduce(p, v, t, op)

def unpack(p, dlo, dhi, src):
    p('v_lshlrev_b32 v%d, 16, v%d' % (dlo, src))
    p('v_and_b32 v%d, 0xffff0000, v%d' % (dhi, src))

def poll_loop(p, loads, checks):
    l0 = p.newl('poll'); l1 = p.newl('polld')
    p('s_mov_b32 s%d, 0' % S_CNT)
    p.label(l0)
    for l in loads: p(l)
    p('s_add_u32 s%d, s%d, 1' % (S_CNT, S_CNT))
    p('s_waitcnt vmcnt(0)')
    first = True
    for (a, b) in checks:
        if first:
            p(f'v_xor_b32 v58, s{S_TAG}, v{a}')
            if b is not None: p(f'v_xor_b32 v59, s{S_TAG2}, v{b}')
            else: p('v_mov_b32 v59, 0')
            first = False
        else:
            p(f'v_xor_b32 v57, s{S_TAG}, v{a}')
            if b is not None:
                p(f'v_xor_b32 v56, s{S_TAG2}, v{b}')
                p('v_or3_b32 v58, v58, v57, v56')
            else:
                p('v_or_b32 v58, v58, v57')
    p('v_or_b32 v58, v58, v59')
    p('v_cmp_ne_u32 vcc, 0, v58')
    p(f's_cmp_ge_u32 s{S_CNT}, {SPIN_CAP}')
    p('s_cbranch_scc1 %s' % l1)
    p('s_cbranch_vccnz %s' % l0)
    p.label(l1)

def gemv_steps(p, nsteps, vA, vB, acc, regs, first=True, swap=False, strideA=64, strideB=1024, offA=0, offB=0, halfB=512):
    for i in range(nsteps):
        a = regs + 8 * i; b = a + 4
        assert offB + i * strideB + halfB < 65536 and offA + i * strideA < 65536
        p('ds_read_b128 %s, v%d offset:%d' % (vr(a, 4), vA, offA + i * strideA))
        p('ds_read_b64_tr_b16 %s, v%d offset:%d' % (vr(b, 2), vB, offB + i * strideB))
        p('ds_read_b64_tr_b16 %s, v%d offset:%d' % (vr(b + 2, 2), vB, offB + i * strideB + halfB))
    for i in range(nsteps):
        a = regs + 8 * i; b = a + 4
        p('s_waitcnt lgkmcnt(%d)' % min(15, 3 * (nsteps - 1 - i)))
        c = '0' if (first and i == 0) else vr(acc, 4)
        x, y = (vr(b, 4), vr(a, 4)) if swap else (vr(a, 4), vr(b, 4))
        p('v_mfma_f32_16x16x32_bf16 %s, %s, %s, %s' % (vr(acc, 4), x, y, c))

def load_seq(p, ptr, s_off, step, count, voffs, s_lds=None, lds_const=0, dst=None, skip_last_if=None, throttle=True):
    p(f's_add_u32 s{T0}, s{ptr}, s{s_off}\ns_addc_u32 s{T1}, s{ptr+1}, 0')
    if s_lds is not None: p(f's_add_u32 m0, s{s_lds}, {lds_const}')
    for j in range(count):
        lab = None
        if skip_last_if and j == count - 1:
            lab = p.newl('dskip')
            p(skip_last_if); p('s_cbranch_scc1 %s' % lab)
        if s_lds is not None:
            p('s_nop 0')
            p('global_load_lds_dwordx4 v%d, %s %s' % (voffs[j % len(voffs)], sp(T0), NT))
        else:
            if TDEPTH and throttle and j >= TDEPTH: p(f's_waitcnt vmcnt({TDEPTH-1})')
            p('global_load_dwordx4 %s, v%d, %s %s' % (vr(dst(j), 4), voffs[j % len(voffs)], sp(T0), NT))
        if lab: p.label(lab)
        if j + 1 < count:
            p(f's_add_u32 s{T0}, s{T0}, {step}\ns_addc_u32 s{T1}, s{T1}, 0')
            if s_lds is not None: p('s_add_u32 m0, m0, 1024')

def ckv_f_const(j):
    k2 = j & 1; k3 = (j >> 1) & 1
    return (((k2 ^ k3) << 3) | k3)

def permaddr(p, dst, m, t1, t2):
    p(f'''
    v_and_b32 v{dst}, 0xffffffe0, v{m}
    v_lshlrev_b32 v{dst}, 1, v{dst}
    v_bfe_u32 v{t1}, v{m}, 2, 2
    v_lshlrev_b32 v{t1}, 4, v{t1}
    v_bfe_u32 v{t2}, v{m}, 4, 1
    v_lshlrev_b32 v{t2}, 3, v{t2}
    v_add3_u32 v{dst}, v{dst}, v{t1}, v{t2}
    v_and_b32 v{t1}, 3, v{m}
    v_lshlrev_b32 v{t1}, 1, v{t1}
    v_add_u32 v{dst}, v{dst}, v{t1}
    ''')

def granaddr(p, dst, gi, t1):
    p(f'''
    v_lshrrev_b32 v{dst}, 3, v{gi}
    v_lshlrev_b32 v{dst}, 6, v{dst}
    v_and_b32 v{t1}, 3, v{gi}
    v_lshl_add_u32 v{dst}, v{t1}, 4, v{dst}
    v_bfe_u32 v{t1}, v{gi}, 2, 1
    v_lshl_add_u32 v{dst}, v{t1}, 3, v{dst}
    ''')

def exec_set(p, mask): p(f's_mov_b64 {sp(S_EX)}, exec\ns_mov_b64 exec, {mask}')
def exec_restore(p): p(f's_mov_b64 exec, {sp(S_EX)}')
S_M4 = 96

V_REDR = 26
V_REDW = 27
V_REDR2 = 22
V_REDW2 = 23
ACC = 28

def red_write(p, rowfmt=False):
    p('s_nop 7')
    exec_set(p, sp(S_M4) if rowfmt else '0xffff')
    p(f'ds_write_b128 v{V_REDW2 if rowfmt else V_REDW}, v[28:31]')
    exec_restore(p)

def red_sum(p, rowfmt=False):
    a = V_REDR2 if rowfmt else V_REDR
    p(f'''
    ds_read_b128 v[28:31], v{a}
    ds_read_b128 v[64:67], v{a} offset:256
    ds_read_b128 v[68:71], v{a} offset:512
    ds_read_b128 v[72:75], v{a} offset:768
    s_waitcnt lgkmcnt(2)
    v_pk_add_f32 v[28:29], v[28:29], v[64:65]
    v_pk_add_f32 v[30:31], v[30:31], v[66:67]
    s_waitcnt lgkmcnt(0)
    v_pk_add_f32 v[68:69], v[68:69], v[72:73]
    v_pk_add_f32 v[70:71], v[70:71], v[74:75]
    v_pk_add_f32 v[28:29], v[28:29], v[68:69]
    v_pk_add_f32 v[30:31], v[30:31], v[70:71]
    ''')

def store_granule(p, vaddr):
    p(f'''
    v_cvt_pk_bf16_f32 v64, v28, v29
    v_cvt_pk_bf16_f32 v65, v30, v31
    v_mov_b32 v66, s{S_TAG}
    v_mov_b32 v67, s{S_TAG2}
    global_store_dwordx4 v{vaddr}, v[64:67], {sp(P_WS)} sc1
    ''')


def gemv2(p, nsteps, vA, vB, strideB, halfB, acc, swap=False, strideA=64, offA=0, offB=0, first=True, banks=(64, 160), batch=12, vtmp=(56, 57)):
    maxoff = offB + (nsteps - 1) * strideB + halfB
    nb = maxoff // 65536 + 1
    bases = [vB]
    for k in range(1, nb):
        p(f'v_add_u32 v{vtmp[k-1]}, {k*65536}, v{vB}')
        bases.append(vtmp[k - 1])
    def rd(i):
        r = banks[(i // batch) % 2] + 8 * (i % batch)
        p('ds_read_b128 %s, v%d offset:%d' % (vr(r, 4), vA, offA + i * strideA))
        for h, o in enumerate((offB + i * strideB, offB + i * strideB + halfB)):
            p('ds_read_b64_tr_b16 %s, v%d offset:%d' % (vr(r + 4 + 2 * h, 2), bases[o // 65536], o % 65536))
    issued = 0
    def issue_upto(n):
        nonlocal issued
        while issued < min(n, nsteps):
            rd(issued); issued += 1
    issue_upto(2 * batch)
    for i in range(nsteps):
        r = banks[(i // batch) % 2] + 8 * (i % batch)
        p('s_waitcnt lgkmcnt(%d)' % min(15, 3 * (issued - 1 - i)))
        c = '0' if (first and i == 0) else vr(acc, 4)
        x, y = (vr(r + 4, 4), vr(r, 4)) if swap else (vr(r, 4), vr(r + 4, 4))
        p('v_mfma_f32_16x16x32_bf16 %s, %s, %s, %s' % (vr(acc, 4), x, y, c))
        if (i + 1) % batch == 0: issue_upto(i + 1 + 2 * batch)

def trpat(p, dst, pitch, s_tile, t1, t2):
    if pitch == 64:
        p(f'''
        v_lshrrev_b32 v{t1}, 2, v1
        v_lshl_add_u32 v{t1}, v2, 2, v{t1}          ; row = 4g+r
        v_lshlrev_b32 v{dst}, 6, v{t1}
        v_bfe_u32 v{t1}, v1, 1, 1                   ; c4>>1
        v_and_b32 v{t2}, 1, v2
        v_lshlrev_b32 v{t2}, 1, v{t2}
        v_xor_b32 v{t1}, v{t1}, v{t2}
        s_lshl_b32 s{T5}, s{s_tile}, 1
        v_xor_b32 v{t1}, s{T5}, v{t1}
        v_lshl_add_u32 v{dst}, v{t1}, 4, v{dst}
        v_and_b32 v{t1}, 1, v1
        v_lshl_add_u32 v{dst}, v{t1}, 3, v{dst}
        ''')
    else:
        p(f'''
        v_lshrrev_b32 v{t1}, 2, v1
        v_lshl_add_u32 v{t1}, v2, 2, v{t1}          ; row
        v_lshlrev_b32 v{dst}, 7, v{t1}
        v_bfe_u32 v{t1}, v{t1}, 1, 2                ; (row>>1)&3
        v_lshlrev_b32 v{t1}, 1, v{t1}
        v_bfe_u32 v{t2}, v1, 1, 1
        v_xor_b32 v{t1}, v{t1}, v{t2}
        s_lshl_b32 s{T5}, s{s_tile}, 1
        v_xor_b32 v{t1}, s{T5}, v{t1}
        v_lshl_add_u32 v{dst}, v{t1}, 4, v{dst}
        v_and_b32 v{t1}, 1, v1
        v_lshl_add_u32 v{dst}, v{t1}, 3, v{dst}
        ''')

def dma_voff(p, dst, seg, pitch, t1, t2):
    if seg == 64:
        p(f'''
        v_lshrrev_b32 v{t1}, 2, v0                  ; row
        v_and_b32 v{t2}, 3, v0
        v_bfe_u32 v{dst}, v0, 4, 1
        v_lshlrev_b32 v{dst}, 1, v{dst}
        v_xor_b32 v{t2}, v{t2}, v{dst}
        v_lshlrev_b32 v{t2}, 4, v{t2}
        s_mov_b32 s{T5}, {pitch}
        v_mul_lo_u32 v{dst}, v{t1}, s{T5}
        v_add_u32 v{dst}, v{dst}, v{t2}
        ''')
    else:
        p(f'''
        v_lshrrev_b32 v{t1}, 3, v0                  ; row
        v_and_b32 v{t2}, 7, v0
        v_bfe_u32 v{dst}, v0, 4, 2                  ; (row>>1)&3
        v_lshlrev_b32 v{dst}, 1, v{dst}
        v_xor_b32 v{t2}, v{t2}, v{dst}
        v_lshlrev_b32 v{t2}, 4, v{t2}
        s_mov_b32 s{T5}, {pitch}
        v_mul_lo_u32 v{dst}, v{t1}, s{T5}
        v_add_u32 v{dst}, v{dst}, v{t2}
        ''')

def act_prep(C, do_silu=True, do_ln=True, pre=None, cnt=0):
    C(f'''
    s_mul_i32 s{T0}, s{S_WAVE}, 1280
    v_lshlrev_b32 v4, 2, v0
    v_add_u32 v4, s{T0}, v4
    ''')
    if do_silu:
        for i in range(5): C(f'global_load_dword v{10+i}, v4, {sp(P_C)} offset:{256*i}')
    if do_ln:
        for i in range(5): C(f'global_load_dword v{15+i}, v4, {sp(P_X)} offset:{256*i}')
    C(f'''
    v_lshlrev_b32 v6, 6, v2
    v_bfe_u32 v7, v0, 1, 2
    v_lshlrev_b32 v7, 4, v7
    v_bfe_u32 v8, v0, 3, 1
    v_lshlrev_b32 v8, 3, v8
    v_and_b32 v9, 1, v0
    v_lshlrev_b32 v9, 2, v9
    v_add3_u32 v6, v6, v7, v8
    s_mul_i32 s{T0}, s{S_WAVE}, {ACTP}
    s_add_u32 s{T0}, s{T0}, {L_ACT}
    v_add3_u32 v6, v6, v9, s{T0}
    s_mov_b32 s{T1}, {fl(-LOG2E)}
    ''')
    if do_silu:
        C(f's_waitcnt vmcnt({5 if do_ln else 0})')
        for i in range(5):
            unpack(C, 20, 21, 10 + i)
            C(f'''
            v_mul_f32 v22, s{T1}, v20
            v_mul_f32 v23, s{T1}, v21
            v_exp_f32 v22, v22
            v_exp_f32 v23, v23
            s_nop 0
            v_add_f32 v22, 1.0, v22
            v_add_f32 v23, 1.0, v23
            v_rcp_f32 v22, v22
            v_rcp_f32 v23, v23
            s_nop 0
            v_mul_f32 v20, v20, v22
            v_mul_f32 v21, v21, v23
            v_cvt_pk_bf16_f32 v20, v20, v21
            ds_write_b32 v6, v20 offset:{256*i}
            ''')
        C.signal(cnt)
    if do_ln:
        C('s_waitcnt vmcnt(0)')
        for i in range(5): unpack(C, 40 + 2 * i, 41 + 2 * i, 15 + i)
        C('v_add_f32 v20, v40, v41\nv_mul_f32 v21, v40, v40\nv_fmac_f32 v21, v41, v41')
        for i in range(2, 10):
            C(f'v_add_f32 v20, v20, v{40+i}\nv_fmac_f32 v21, v{40+i}, v{40+i}')
        allreduce(C, 20, 18); allreduce(C, 21, 18)
        C(f'''
        s_mov_b32 s{T1}, {fl(1.0/640)}
        v_mul_f32 v20, s{T1}, v20
        v_mul_f32 v21, s{T1}, v21
        v_fma_f32 v21, -v20, v20, v21
        v_add_f32 v21, {fl(1e-5)}, v21
        v_rsq_f32 v21, v21
        s_lshl_b32 s{T0}, s{S_WAVE}, 1
        s_add_u32 s{T0}, s{T0}, {L_XNT}
        v_lshlrev_b32 v7, 4, v0
        v_add_u32 v7, s{T0}, v7
        ''')
        for i in range(5):
            C(f'''
            v_sub_f32 v18, v{40+2*i}, v20
            v_sub_f32 v19, v{41+2*i}, v20
            v_mul_f32 v18, v18, v21
            v_mul_f32 v19, v19, v21
            v_cvt_pk_bf16_f32 v18, v18, v19
            ds_write_b16 v7, v18 offset:{1024*i}
            ds_write_b16_d16_hi v7, v18 offset:{1024*i+8}
            ''')
        C.signal(15)

def aaddr(C, dst, lbase, pitch, s_extra, t1):
    C(f'''
    v_and_b32 v{dst}, 3, v0
    v_mul_u32_u24 v{dst}, {pitch}, v{dst}
    v_lshlrev_b32 v{t1}, 4, v2
    s_add_u32 s{T5}, s{s_extra}, {lbase}
    v_add3_u32 v{dst}, v{dst}, v{t1}, s{T5}
    ''')

def tag_setup(C):
    C(f'''
    s_waitcnt lgkmcnt(0)
    s_add_u32 s{S_TAG}, s{S_EP}, 1
    s_not_b32 s{S_TAG2}, s{S_TAG}
    ''')

def pair_reduce(C, cnt, lab_done):
    lk = C.newl('pr')
    C(f's_cmp_lt_u32 s{S_WAVE}, 2\ns_cbranch_scc1 {lk}')
    red_write(C)
    C.signal(cnt)
    C(f's_branch {lab_done}')
    C.label(lk)
    C.wait(cnt, 2)
    C(f'''
    ds_read_b128 v[64:67], v27 offset:512
    s_waitcnt lgkmcnt(0)
    v_pk_add_f32 v[28:29], v[28:29], v[64:65]
    v_pk_add_f32 v[30:31], v[30:31], v[66:67]
    ''')

def red_regs(C):
    C(f'''
    v_lshlrev_b32 v26, 4, v1
    v_add_u32 v26, {L_RED}, v26
    s_lshl_b32 s{T0}, s{S_WAVE}, 8
    v_add_u32 v27, s{T0}, v26
    ''')

def prewt(p, nsteps, vB, strideB, halfB, wbase, vtmp=(56, 57)):
    maxoff = (nsteps - 1) * strideB + halfB
    nb = maxoff // 65536 + 1
    bases = [vB]
    for k in range(1, nb):
        p(f'v_add_u32 v{vtmp[k-1]}, {k*65536}, v{vB}')
        bases.append(vtmp[k - 1])
    for i in range(nsteps):
        for hh, o in enumerate((i * strideB, i * strideB + halfB)):
            p('ds_read_b64_tr_b16 %s, v%d offset:%d' % (vr(wbase + 4 * i + 2 * hh, 2), bases[o // 65536], o % 65536))
    p('s_waitcnt lgkmcnt(0)')

def gemv3(p, nsteps, vA, wbase, abase, acc, swap=False, strideA=64, nacc=1, acc2=None):
    for i in range(nsteps):
        p('ds_read_b128 %s, v%d offset:%d' % (vr(abase + 4 * i, 4), vA, i * strideA))
    for i in range(nsteps):
        p('s_waitcnt lgkmcnt(%d)' % min(15, nsteps - 1 - i))
        a = acc if (acc2 is None or i % 2 == 0) else acc2
        c = '0' if i < (1 if acc2 is None else 2) else vr(a, 4)
        x, y = (vr(wbase + 4 * i, 4), vr(abase + 4 * i, 4)) if swap else (vr(abase + 4 * i, 4), vr(wbase + 4 * i, 4))
        p('v_mfma_f32_16x16x32_bf16 %s, %s, %s, %s' % (vr(a, 4), x, y, c))
ADEPTH = int(os.environ.get('ADEPTH', '8'))
TTRIG = int(os.environ.get('TTRIG', '1'))
ATRIG = int(os.environ.get('ATRIG', '0'))
LIGHT = int(os.environ.get('LIGHT', '0'))
WUVWAIT = int(os.environ.get('WUVWAIT', '1'))
CODEPF = int(os.environ.get('CODEPF', '1'))
AWARM = int(os.environ.get('AWARM', '2'))
DBGOUT = int(os.environ.get('DBGOUT', '0'))
ZWARM = int(os.environ.get('ZWARM', '1'))

def trig(p, off, en=True):
    if not en: return
    l0 = p.newl('tg'); l1 = p.newl('tgd')
    p(f'''
    s_load_dword s{S_EP}, {sp(P_WS)}, 0
    v_mov_b32 v20, {off}
    s_mov_b32 s{S_CNT}, 0
    s_waitcnt lgkmcnt(0)
    s_add_u32 s{S_TAG}, s{S_EP}, 1
    {l0}:
    global_load_dword v21, v20, {sp(P_WS)} offset:8 sc1
    s_add_u32 s{S_CNT}, s{S_CNT}, 1
    s_waitcnt vmcnt(0)
    v_readfirstlane_b32 s{S_W}, v21
    s_cmp_ge_u32 s{S_CNT}, {SPIN_CAP}
    s_cbranch_scc1 {l1}
    s_cmp_eq_u32 s{S_W}, s{S_TAG}
    s_cbranch_scc1 {l1}
    s_sleep 2
    s_branch {l0}
    {l1}:
    ''')

def gen(stamps=False):
    UID[0] = 0
    H = Prog(stamps)
    H(f'''
    s_cmp_ge_u32 s2, 256
    s_cbranch_scc1 L_end
    s_load_dwordx16 s[4:19], s[0:1], 0
    s_load_dwordx8 s[20:27], s[0:1], 64
    s_load_dwordx4 s[28:31], s[0:1], 96
    s_load_dwordx2 s[32:33], s[0:1], 112
    v_lshrrev_b32 v1, 6, v0
    v_and_b32 v0, 63, v0
    s_and_b32 s{S_XCD}, s2, 7
    v_readfirstlane_b32 s{S_WAVE}, v1
    s_lshr_b32 s{S_IDX}, s2, 3
    v_and_b32 v1, 15, v0
    v_lshrrev_b32 v2, 4, v0
    ''')
    H.stamp(0)
    H(f'''
    v_mov_b32 v61, {L_CNT}
    v_mov_b32 v62, 1
    v_mov_b32 v63, 0
    v_lshl_add_u32 v3, v0, 2, v61
    s_cmp_lg_u32 s{S_WAVE}, 0
    s_cbranch_scc1 L_noinit
    ds_write_b32 v3, v63
    L_noinit:
    s_mov_b32 s{S_M4}, 0x000f000f
    s_mov_b32 s{S_M4+1}, 0x000f000f
    s_and_b32 s{S_LW}, s{S_WAVE}, 3
    s_lshl_b32 s{T0}, s{S_LW}, 6
    v_add_u32 v3, s{T0}, v0
    s_waitcnt lgkmcnt(0)
    s_barrier
    s_cmp_ge_u32 s{S_WAVE}, 4
    s_cbranch_scc1 L_loader
    s_load_dword s{S_EP}, {sp(P_WS)}, 0
    s_cmp_lt_u32 s{S_IDX}, 16
    s_cbranch_scc1 L_A_c
    s_branch L_F_c
    L_loader:
    s_cmp_lt_u32 s{S_IDX}, 16
    s_cbranch_scc1 L_A_l
    ''')
    if CODEPF:
        H(f'''
        s_cmp_lg_u32 s{S_IDX}, 31
        s_cbranch_scc1 L_F_l
        s_cmp_lg_u32 s{S_WAVE}, 7
        s_cbranch_scc1 L_F_l
        s_getpc_b64 s[{T0}:{T1}]
        L_pcref:
        v_lshlrev_b32 v20, 4, v0
        s_mov_b32 s{T2}, 0
        L_pf:
        global_load_dwordx4 v[24:27], v20, s[{T0}:{T1}]
        v_add_u32 v20, 1024, v20
        s_add_u32 s{T2}, s{T2}, 1024
        s_cmp_lt_u32 s{T2}, (L_codeend - L_pcref - 1024)
        s_cbranch_scc1 L_pf
        ''')
    H(f'''
    s_branch L_F_l
    ''')
    def dump_regs(p, base_reg, count, vaddr, step=1024):
        off = 0
        for j in range(count):
            if off + 0 > 65535 - 0 or off > 60000:
                p(f'v_add_u32 v{vaddr}, {off}, v{vaddr}'); off = 0
            p(f'ds_write_b128 v{vaddr}, {vr(base_reg(j), 4)} offset:{off}')
            off += step

    AL = Prog(stamps); AC = Prog(stamps)
    AL.label('L_A_l')
    AL(f'''
    s_lshl_b32 s{T5}, s{S_XCD}, 4
    s_add_u32 s{T4}, s{T5}, s{S_IDX}         ; cid
    s_lshl_b32 s{T4}, s{T4}, 17
    s_lshl_b32 s{T5}, s{S_LW}, 10
    s_add_u32 s{T4}, s{T4}, s{T5}
    s_add_u32 s56, s{P_CKV}, s{T4}
    s_addc_u32 s57, s{P_CKV+1}, 0
    s_mov_b32 s58, s{T5}
    s_lshl_b32 s{T5}, s{S_LW}, 1
    v_xor_b32 v7, s{T5}, v0
    ''')
    for q in range(4):
        AL(f'v_xor_b32 v{8+q}, {ckv_f_const(q)}, v7')
        AL(f'v_lshlrev_b32 v{8+q}, 4, v{8+q}')
    trig(AL, W_E0 + 639 * 16, en=ATRIG)
    for j in range(32):
        if AWARM and j == AWARM: AL('s_waitcnt vmcnt(0)')
        if j >= ADEPTH: AL(f's_waitcnt vmcnt({ADEPTH-1})')
        AL(f'''
        s_add_u32 m0, s58, {j*4096}
        s_nop 0
        global_load_lds_dwordx4 v{8+(j%4)}, s[56:57] {NT}
        s_add_u32 s56, s56, 4096
        s_addc_u32 s57, s57, 0
        ''')
    AL(f'''
    s_lshl_b32 s{T4}, s{S_XCD}, 2
    s_lshr_b32 s{T5}, s{S_IDX}, 2
    s_add_u32 s{T4}, s{T4}, s{T5}
    s_lshl_b32 s{T4}, s{T4}, 8
    s_lshl_b32 s{T5}, s{S_LW}, 20
    s_add_u32 s{T4}, s{T4}, s{T5}
    v_lshrrev_b32 v3, 4, v0
    v_and_b32 v4, 15, v0
    v_lshlrev_b32 v5, 1, v3
    v_xor_b32 v5, v5, v4
    v_xor_b32 v6, 8, v5
    v_lshlrev_b32 v5, 4, v5
    v_lshlrev_b32 v6, 4, v6
    v_lshl_add_u32 v5, v3, 13, v5
    v_lshl_add_u32 v6, v3, 13, v6
    s_waitcnt vmcnt(0)
    ''')
    AL.signal(6); AL.stamp(3)
    load_seq(AL, P_WUV, T4, 4 * 8192, 32, [5, 6], dst=lambda j: 64 + 4 * j)
    AL(f's_lshl_b32 s{T5}, s{S_LW}, 15\nv_lshl_add_u32 v12, v0, 4, s{T5}')
    AL('s_waitcnt vmcnt(0)')
    AL.signal(20)
    AL.stamp(4)
    AL.wait(9, 4, sleep=1)
    dump_regs(AL, lambda j: 64 + 4 * j, 32, 12)
    AL.signal(10); AL.stamp(5)
    AL('s_branch L_fin')

    C = AC
    C.label('L_A_c')
    C(f'''
    s_lshr_b32 s{T0}, s{S_XCD}, 1            ; b
    s_lshl_b32 s{T0}, s{T0}, 16              ; b*32*2048
    s_add_u32 s{T0}, s{T0}, {W_E2}
    v_lshl_add_u32 v4, v3, 4, s{T0}
    v_and_b32 v5, 127, v3
    v_lshrrev_b32 v6, 7, v3
    v_lshrrev_b32 v7, 1, v5
    v_lshlrev_b32 v10, 1, v6
    v_xor_b32 v7, v7, v10
    v_lshlrev_b32 v7, 4, v7
    v_and_b32 v10, 1, v5
    v_lshl_add_u32 v7, v10, 3, v7
    v_lshl_add_u32 v7, v6, 10, v7
    v_add_u32 v7, {L_QA}, v7
    ''')
    for i in range(8):
        k1 = i & 1; k2 = (i >> 1) & 1; k3 = i >> 2
        fc = (k1 << 2) | ((k2 ^ k3) << 3) | k3
        C(f'v_xor_b32 v{40+i}, {fc*16}, v7')
    for i in range(16):
        if i: C(f'v_add_u32 v{10+i}, {4096*i}, v4')
        else: C('v_mov_b32 v10, v4')
    C(f'''
    v_and_b32 v4, 3, v1
    v_lshlrev_b32 v4, 1, v4
    v_bfe_u32 v5, v1, 3, 1
    v_bfe_u32 v6, v1, 2, 1
    v_xor_b32 v6, v6, v5
    v_lshlrev_b32 v6, 3, v6
    v_or3_b32 v4, v4, v5, v6
    v_xor_b32 v4, v4, v2
    v_lshlrev_b32 v4, 4, v4
    v_lshl_add_u32 v4, v1, 10, v4
    s_lshl_b32 s{T0}, s{S_WAVE}, 15
    v_add_u32 v5, s{T0}, v4
    v_add_u32 v4, {L_QA}, v4
    ''')
    for q in range(4):
        C(f'v_xor_b32 v{48+q}, {q*64}, v4')
        C(f'v_xor_b32 v{52+q}, {q*64}, v5')
    tag_setup(C)
    C.stamp(1)
    C.wait(6, 4, sleep=1)
    if WUVWAIT: C.wait(20, 4, sleep=1)
    C.stamp(2)
    C(f'''
    s_lshr_b32 s{T0}, s{S_XCD}, 1
    s_lshl_b32 s{T0}, s{T0}, 16
    s_add_u32 s{T0}, s{T0}, {W_E2}
    v_lshlrev_b32 v26, 8, v3
    v_add_u32 v26, s{T0}, v26
    ''')
    if LIGHT: poll_loop(C, [f'global_load_dwordx2 v[64:65], v26, {sp(P_WS)} offset:8 sc1'], [(64, 65)])
    C.stamp(3)
    loads = [f'global_load_dwordx4 {vr(192+4*i, 4)}, v{10+i}, {sp(P_WS)} sc1' for i in range(16)]
    poll_loop(C, loads, [(194 + 4 * i, 195 + 4 * i) for i in range(16)])
    C.stamp(7)
    for i in range(8):
        C(f'ds_write_b64 v{40+i}, {vr(192+4*i, 2)} offset:{2048*i}')
    C.signal(11)
    C(f'''
    v_lshrrev_b32 v4, 2, v1
    v_lshlrev_b32 v5, 1, v4
    v_lshrrev_b32 v6, 1, v2
    v_and_b32 v7, 1, v2
    v_xor_b32 v7, v7, v6
    v_lshlrev_b32 v7, 3, v7
    v_or3_b32 v5, v5, v6, v7
    v_bfe_u32 v6, v1, 1, 1
    v_xor_b32 v5, v5, v6
    v_lshlrev_b32 v5, 4, v5
    v_and_b32 v6, 1, v1
    v_lshlrev_b32 v6, 3, v6
    v_lshl_add_u32 v7, v2, 2, v4
    v_lshlrev_b32 v7, 10, v7
    v_add3_u32 v5, v5, v6, v7
    s_lshl_b32 s{T0}, s{S_WAVE}, 8
    v_add_u32 v5, s{T0}, v5
    v_lshlrev_b32 v18, 2, v1
    v_add_u32 v18, {L_REDA}, v18
    s_lshl_b32 s{T0}, s{S_WAVE}, 7
    v_add_u32 v19, s{T0}, v18
    v_lshlrev_b32 v20, 4, v0
    v_add_u32 v20, {L_PB}, v20
    s_lshl_b32 s{T0}, s{S_WAVE}, 11
    v_add_u32 v21, s{T0}, v20
    ''')
    for t in range(8): C(f'v_xor_b32 v{8+t}, {t*32}, v5')
    C.wait(11, 4)
    def afrag(ks, t): return 128 + ((ks % 4) * 2 + t) * 4 + (32 if (ks // 4) % 2 else 0)
    def issueA(ks):
        for t in range(2):
            C(f'ds_read_b128 {vr(afrag(ks, t), 4)}, v{52+ks%4} offset:{(ks//4)*256 + t*16384}')
    for hg in range(2):
        if hg == 1: C.wait(13, 4)
        for ks in range(16):
            C(f'ds_read_b128 v[{64+4*ks}:{67+4*ks}], v{48+ks%4} offset:{(ks//4)*256}')
        for ks in range(8): issueA(ks)
        if hg == 0:
            C('s_waitcnt lgkmcnt(15)')
            C('s_waitcnt lgkmcnt(14)')
            C.signal(12)
            C.stamp(8)
        for ks in range(16):
            issued = min(16, (ks // 4) * 4 + 8)
            C(f's_waitcnt lgkmcnt({min(15, 2*(issued - ks - 1))})')
            for t in range(2):
                a = 28 + 8 * hg + 4 * t
                c = '0' if ks == 0 else vr(a, 4)
                C(f'v_mfma_f32_16x16x32_bf16 {vr(a, 4)}, {vr(afrag(ks, t), 4)}, {vr(64+4*ks, 4)}, {c}')
            if ks % 4 == 3 and ks + 5 < 16:
                for k2 in range(ks + 5, ks + 9): issueA(k2)
            if hg == 0 and ks == 7:
                C.wait(12, 4)
                for i in range(8):
                    C(f'ds_write_b64 v{40+i}, {vr(192+4*(8+i), 2)} offset:{2048*i}')
                C.signal(13)
        C.stamp(4 + hg)
    C(f'''
    s_lshr_b32 s{T0}, s{S_XCD}, 1
    s_lshl_b32 s{T0}, s{T0}, 5               ; b*32
    s_and_b32 s{T1}, s{S_XCD}, 1
    s_lshl_b32 s{T1}, s{T1}, 4
    s_add_u32 s{T1}, s{T1}, s{S_IDX}         ; chunk
    s_lshl_b32 s{T2}, s{T0}, 15
    s_lshl_b32 s{T3}, s{T1}, 10
    s_add_u32 s{T2}, s{T2}, s{T3}
    s_lshl_b32 s{T3}, s{S_WAVE}, 8
    s_add_u32 s{T2}, s{T2}, s{T3}
    s_add_u32 s{T2}, s{T2}, {W_E3}
    v_and_b32 v4, 7, v1
    v_lshlrev_b32 v4, 15, v4
    v_lshlrev_b32 v5, 4, v2
    v_add3_u32 v4, v4, v5, s{T2}             ; (l16&7)*32768 + g*16
    v_lshrrev_b32 v5, 3, v1
    v_lshlrev_b32 v5, 6, v5                  ; (l16>>3)*64
    v_xor_b32 v6, 64, v5
    v_add_u32 v6, v6, v4
    v_add_u32 v6, {8*32768}, v6
    v_add_u32 v4, v5, v4
    v_add_u32 v5, {16*32768}, v4
    v_add_u32 v7, {16*32768}, v6
    ''')
    for hg in range(2):
        a = 28 + 8 * hg
        C(f'''
        v_max3_f32 v{16+hg}, v{a}, v{a+1}, v{a+2}
        v_max3_f32 v{16+hg}, v{16+hg}, v{a+3}, v{a+4}
        v_max3_f32 v{16+hg}, v{16+hg}, v{a+5}, v{a+6}
        v_max_f32 v{16+hg}, v{16+hg}, v{a+7}
        ''')
    def rowreduce2(p, va, vb, ta, tb, op):
        o = 'v_%s_f32' % op
        p(f'''
        v_mov_b32 v{ta}, v{va}
        v_mov_b32 v{tb}, v{vb}
        s_nop 0
        v_permlane16_swap_b32 v{va}, v{ta}
        v_permlane16_swap_b32 v{vb}, v{tb}
        s_nop 0
        {o} v{va}, v{va}, v{ta}
        {o} v{vb}, v{vb}, v{tb}
        v_mov_b32 v{ta}, v{va}
        v_mov_b32 v{tb}, v{vb}
        s_nop 0
        v_permlane32_swap_b32 v{va}, v{ta}
        v_permlane32_swap_b32 v{vb}, v{tb}
        s_nop 0
        {o} v{va}, v{va}, v{ta}
        {o} v{vb}, v{vb}, v{tb}
        ''')
    rowreduce2(C, 16, 17, 22, 23, 'max')
    C('ds_write_b32 v19, v16\nds_write_b32 v19, v17 offset:64')
    C.signal(7)
    for t in range(8): C(f'v_add_u32 v{48+t}, 0x10000, v{8+t}')
    lq = []
    def pvfrag(pr, tt, j): return 192 + (pr % 2) * 32 + (tt * 4 + j) * 4
    def pvread(pr):
        for j in range(4):
            for tt in range(2):
                t = 2 * pr + tt
                va = (8 + t) if j < 2 else (48 + t)
                o = (j % 2) * 32768
                C(f'ds_read_b64_tr_b16 {vr(pvfrag(pr, tt, j), 2)}, v{va} offset:{o}')
                C(f'ds_read_b64_tr_b16 {vr(pvfrag(pr, tt, j)+2, 2)}, v{va} offset:{o + 16384}')
                lq.append(('a', pr, tt, j)); lq.append(('a', pr, tt, j))
    def waitfor(ids):
        last = max(i for i, x in enumerate(lq) if x in ids)
        C(f's_waitcnt lgkmcnt({min(15, len(lq) - 1 - last)})')
    pvread(0)
    C.wait(7, 4)
    C.stamp(6)
    for hg in range(2):
        for w in range(4): C(f'ds_read_b32 v{64+4*hg+w}, v18 offset:{128*w + 64*hg}')
    C('s_waitcnt lgkmcnt(0)')
    for hg in range(2):
        C(f'v_max3_f32 v{16+hg}, v{64+4*hg}, v{65+4*hg}, v{66+4*hg}\nv_max_f32 v{16+hg}, v{16+hg}, v{67+4*hg}')
    for hg in range(2):
        for i in range(8): C(f'v_sub_f32 v{28+8*hg+i}, v{28+8*hg+i}, v{16+hg}')
    for i in range(16): C(f'v_exp_f32 v{28+i}, v{28+i}')
    C('s_nop 0')
    for hg in range(2):
        for q in range(4): C(f'v_cvt_pk_bf16_f32 v{64+4*hg+q}, v{28+8*hg+2*q}, v{29+8*hg+2*q}')
        C(f'ds_write_b128 v21, {vr(64+4*hg, 4)} offset:{1024*hg}')
    C.signal(8)
    for hg in range(2):
        a = 28 + 8 * hg
        C(f'''
        v_add_f32 v{22+hg}, v{a}, v{a+1}
        v_add_f32 v{24+hg}, v{a+2}, v{a+3}
        v_add_f32 v{44+hg}, v{a+4}, v{a+5}
        v_add_f32 v{46+hg}, v{a+6}, v{a+7}
        v_add_f32 v{22+hg}, v{22+hg}, v{24+hg}
        v_add_f32 v{44+hg}, v{44+hg}, v{46+hg}
        v_add_f32 v{22+hg}, v{22+hg}, v{44+hg}
        ''')
    rowreduce2(C, 22, 23, 24, 25, 'add')
    C('ds_write_b32 v19, v22 offset:512\nds_write_b32 v19, v23 offset:576')
    C.signal(16)
    C.wait(8, 4)
    C.stamp(14)
    lq.clear()
    for j in range(4):
        for hg in range(2):
            C(f'ds_read_b128 {vr(64+(j*2+hg)*4, 4)}, v20 offset:{(j*2+hg)*1024}'); lq.append(('p', j))
    pvread(1)
    def pack_store(pp):
        for hg in range(2):
            X1 = 96 + hg * 12; X2 = X1 + 4; Bq = X1 + 8
            for (dst, pr) in ((X1, 2 * pp), (Bq, 2 * pp + 1)):
                a0 = 128 + ((2 * pr) * 2 + hg) * 4; a1 = 128 + ((2 * pr + 1) * 2 + hg) * 4
                C(f'''
                v_cvt_pk_bf16_f32 v{dst}, v{a0}, v{a0+1}
                v_cvt_pk_bf16_f32 v{dst+1}, v{a0+2}, v{a0+3}
                v_cvt_pk_bf16_f32 v{dst+2}, v{a1}, v{a1+1}
                v_cvt_pk_bf16_f32 v{dst+3}, v{a1+2}, v{a1+3}
                ''')
            for k in range(4): C(f'v_mov_b32 v{X2+k}, v{X1+k}')
            for k in range(4): C(f'v_mov_b32_dpp v{X1+k}, v{Bq+k} row_ror:8 row_mask:0xf bank_mask:0xc')
            for k in range(4): C(f'v_mov_b32_dpp v{X2+k}, v{Bq+k} row_ror:8 row_mask:0xf bank_mask:0x3')
            C(f'global_store_dwordx4 v{4+hg}, {vr(X1, 4)}, {sp(P_WS)} offset:{128*pp} sc1')
            C(f'global_store_dwordx4 v{6+hg}, {vr(X2, 4)}, {sp(P_WS)} offset:{128*pp} sc1')
    for pr in range(4):
        for j in range(4):
            ids = [('p', j)] + ([('a', pr, 0, j), ('a', pr, 1, j)] if pr >= 1 else [])
            waitfor(ids)
            for tt in range(2):
                for hg in range(2):
                    t = 2 * pr + tt
                    a = 128 + (t * 2 + hg) * 4
                    c = '0' if j == 0 else vr(a, 4)
                    C(f'v_mfma_f32_16x16x32_bf16 {vr(a, 4)}, {vr(pvfrag(pr, tt, j), 4)}, {vr(64+(j*2+hg)*4, 4)}, {c}')
            if j == 1 and pr == 2: pack_store(0)
        if pr + 2 < 4: pvread(pr + 2)
        if pr == 0:
            lskip = C.newl('st3')
            C(f's_cmp_lg_u32 s{S_WAVE}, 0\ns_cbranch_scc1 {lskip}')
            C.wait(16, 4)
            for hg in range(2):
                for w in range(4): C(f'ds_read_b32 v{28+4*hg+w}, v18 offset:{512 + 128*w + 64*hg}')
            C(f'''
            s_lshl_b32 s{T2}, s{T0}, 8
            s_lshl_b32 s{T3}, s{T1}, 3
            s_add_u32 s{T2}, s{T2}, s{T3}
            s_add_u32 s{T2}, s{T2}, {W_ST3}
            v_lshl_add_u32 v24, v1, 8, s{T2}
            v_add_u32 v25, 4096, v24
            v_mov_b32 v36, v16
            v_mov_b32 v38, v17
            s_waitcnt lgkmcnt(0)
            v_add_f32 v28, v28, v29
            v_add_f32 v30, v30, v31
            v_add_f32 v37, v28, v30
            v_add_f32 v32, v32, v33
            v_add_f32 v34, v34, v35
            v_add_f32 v39, v32, v34
            ''')
            exec_set(C, '0xffff')
            C(f'global_store_dwordx2 v24, v[36:37], {sp(P_WS)} sc1\nglobal_store_dwordx2 v25, v[38:39], {sp(P_WS)} sc1')
            exec_restore(C)
            C.label(lskip)
    C.stamp(9)
    C.signal(9)
    C(f'''
    s_add_u32 s{T2}, s{T0}, s{T1}
    s_lshl_b32 s{T2}, s{T2}, 7
    s_lshl_b32 s{T3}, s{S_WAVE}, 2
    s_add_u32 s{T2}, s{T2}, s{T3}
    s_add_u32 s{T2}, s{T2}, {W_F3}
    v_mov_b32 v24, s{T2}
    v_mov_b32 v25, s{S_TAG}
    ''')
    pack_store(1)
    C('s_waitcnt vmcnt(0)')
    exec_set(C, '1')
    C(f'global_store_dword v24, v25, {sp(P_WS)} sc1')
    exec_restore(C)
    C.stamp(10)
    CA = C
    CA(f'''
    s_lshl_b32 s{S_J}, s{S_XCD}, 2
    s_lshr_b32 s{T5}, s{S_IDX}, 2
    s_add_u32 s{S_J}, s{S_J}, s{T5}
    s_and_b32 s{S_K}, s{S_IDX}, 3
    s_lshl_b32 s{T0}, s{S_K}, 12              ; b*32 flags*128B
    s_add_u32 s{T0}, s{T0}, {W_F3}
    v_and_b32 v4, 31, v0
    v_lshl_add_u32 v5, v4, 7, s{T0}
    s_lshl_b32 s{T0}, s{S_K}, 5
    s_add_u32 s{T0}, s{T0}, s{S_J}
    s_lshl_b32 s{T1}, s{T0}, 8
    s_add_u32 s{T1}, s{T1}, {W_ST3}
    v_lshl_add_u32 v6, v4, 3, s{T1}
    s_lshl_b32 s{T1}, s{T0}, 15
    s_lshl_b32 s{T2}, s{S_WAVE}, 13
    s_add_u32 s{T1}, s{T1}, s{T2}
    s_add_u32 s{T1}, s{T1}, {W_E3}
    v_lshl_add_u32 v7, v0, 4, s{T1}
    v_add_u32 v10, 4096, v7
    v_lshlrev_b32 v4, 5, v0
    v_add_u32 v4, {L_RED4}, v4
    s_lshl_b32 s{T0}, s{S_WAVE}, 11
    v_add_u32 v11, s{T0}, v4
    ''')
    CA(f'''
    v_lshrrev_b32 v12, 2, v1
    v_lshl_add_u32 v12, v2, 2, v12
    v_and_b32 v13, 7, v12
    v_lshlrev_b32 v13, 1, v13
    v_bfe_u32 v14, v1, 1, 1
    v_xor_b32 v13, v13, v14
    v_lshlrev_b32 v13, 4, v13
    v_and_b32 v14, 1, v1
    v_lshlrev_b32 v14, 3, v14
    v_lshlrev_b32 v12, 8, v12
    v_add3_u32 v12, v12, v13, v14
    s_lshl_b32 s{T0}, s{S_WAVE}, 6
    v_xor_b32 v12, s{T0}, v12
    v_xor_b32 v13, 32, v12
    v_add_u32 v14, 0x10000, v12
    v_add_u32 v15, 0x10000, v13
    ''')
    CA.wait(10, 4)
    for ks in range(16):
        for t in range(2):
            va = (12 + t) if ks < 8 else (14 + t)
            o = (ks % 8) * 8192
            r = 128 + (ks * 2 + t) * 4
            CA(f'ds_read_b64_tr_b16 {vr(r, 2)}, v{va} offset:{o}')
            CA(f'ds_read_b64_tr_b16 {vr(r+2, 2)}, v{va} offset:{o+4096}')
    CA('s_waitcnt lgkmcnt(0)')
    lk = CA.newl('f3w')
    CA(f's_cmp_lg_u32 s{S_WAVE}, 0\ns_cbranch_scc1 {lk}')
    poll_loop(CA, [f'global_load_dwordx4 v[64:67], v5, {sp(P_WS)} sc1'], [(64, None), (65, None), (66, None), (67, None)])
    CA.signal(21)
    CA.label(lk)
    CA.wait(21, 1)
    CA.stamp(11)
    CA(f'global_load_dwordx2 v[16:17], v6, {sp(P_WS)} sc1')
    for i in range(8):
        CA(f'global_load_dwordx4 v[{64+4*i}:{67+4*i}], v{7 if i < 4 else 10}, {sp(P_WS)} offset:{1024*(i%4)} sc1')
    CA('s_waitcnt vmcnt(8)')
    CA('v_mov_b32 v18, v16')
    allreduce(CA, 18, 19, 'max')
    CA(f'''
    v_sub_f32 v16, v16, v18
    v_exp_f32 v16, v16
    s_nop 0
    v_mul_f32 v17, v17, v16
    ''')
    allreduce(CA, 17, 19, 'add')
    CA(f'''
    v_rcp_f32 v17, v17
    s_nop 0
    v_mul_f32 v16, v16, v17
    v_add_f32 v16, v16, v16
    s_lshl_b32 s{T0}, s{S_WAVE}, 3
    s_nop 0
    ''')
    for i in range(8):
        CA(f's_add_u32 s{T1}, s{T0}, {i}')
        CA(f'v_readlane_b32 s{S_SC+i}, v16, s{T1}')
    for i in range(8):
        CA(f's_waitcnt vmcnt({7-i})')
        for q in range(4):
            unpack(CA, 20, 21, 64 + 4 * i + q)
            if i == 0:
                CA(f'v_mul_f32 v{32+2*q}, s{S_SC+i}, v20\nv_mul_f32 v{33+2*q}, s{S_SC+i}, v21')
            else:
                CA(f'v_fmac_f32 v{32+2*q}, s{S_SC+i}, v20\nv_fmac_f32 v{33+2*q}, s{S_SC+i}, v21')
    CA(f'''
    ds_write_b128 v11, v[32:35]
    ds_write_b128 v11, v[36:39] offset:16
    ''')
    CA.signal(17)
    CA(f'''
    s_lshl_b32 s{T0}, s{S_WAVE}, 10
    s_add_u32 s{T0}, s{T0}, {L_CC}
    v_lshl_add_u32 v5, v0, 4, s{T0}
    v_lshl_add_u32 v6, v2, 4, s{T0}
    s_lshl_b32 s{T0}, s{S_K}, 14
    s_lshl_b32 s{T1}, s{S_J}, 9
    s_add_u32 s{T0}, s{T0}, s{T1}
    s_lshl_b32 s{T1}, s{S_WAVE}, 7
    s_add_u32 s{T0}, s{T0}, s{T1}
    s_add_u32 s{T0}, s{T0}, {W_E4}
    v_lshlrev_b32 v14, 6, v1
    v_lshl_add_u32 v14, v2, 4, v14
    v_add_u32 v14, s{T0}, v14
    v_mov_b32 v38, s{S_TAG}
    v_mov_b32 v39, s{S_TAG2}
    v_cmp_gt_u32 vcc, 2, v1
    v_cmp_eq_u32 {sp(S_M)}, 1, v1
    ''')
    CA.wait(17, 4)
    CA.stamp(12)
    for w in range(4):
        CA(f'ds_read_b128 v[{64+8*w}:{67+8*w}], v4 offset:{2048*w}')
        CA(f'ds_read_b128 v[{68+8*w}:{71+8*w}], v4 offset:{2048*w+16}')
    CA('s_waitcnt lgkmcnt(0)')
    for q in range(4):
        CA(f'''
        v_pk_add_f32 v[{64+2*q}:{65+2*q}], v[{64+2*q}:{65+2*q}], v[{72+2*q}:{73+2*q}]
        v_pk_add_f32 v[{80+2*q}:{81+2*q}], v[{80+2*q}:{81+2*q}], v[{88+2*q}:{89+2*q}]
        v_pk_add_f32 v[{64+2*q}:{65+2*q}], v[{64+2*q}:{65+2*q}], v[{80+2*q}:{81+2*q}]
        v_cvt_pk_bf16_f32 v{32+q}, v{64+2*q}, v{65+2*q}
        ''')
    CA('ds_write_b128 v5, v[32:35]')
    CA('s_waitcnt lgkmcnt(0)')
    for ks in range(16): CA(f'ds_read_b128 v[{64+4*ks}:{67+4*ks}], v6 offset:{64*ks}')
    for ks in range(16):
        CA(f's_waitcnt lgkmcnt({15 - ks})')
        for t in range(2):
            c = '0' if ks == 0 else vr(28 + 4 * t, 4)
            CA(f'v_mfma_f32_16x16x32_bf16 {vr(28+4*t, 4)}, {vr(128+(ks*2+t)*4, 4)}, v[{64+4*ks}:{67+4*ks}], {c}')
    CA(f'''
    s_nop 7
    v_cvt_pk_bf16_f32 v36, v28, v29
    v_cvt_pk_bf16_f32 v37, v30, v31
    v_cvt_pk_bf16_f32 v40, v32, v33
    v_cvt_pk_bf16_f32 v41, v34, v35
    v_cndmask_b32 v36, v36, v40, {sp(S_M)}
    v_cndmask_b32 v37, v37, v41, {sp(S_M)}
    s_and_saveexec_b64 {sp(S_EX)}, vcc
    global_store_dwordx4 v14, v[36:39], {sp(P_WS)} sc1
    s_mov_b64 exec, {sp(S_EX)}
    ''')
    CA.stamp(13)
    CA('s_branch L_fin')

    FL = Prog(stamps); FC = Prog(stamps)
    FL.label('L_F_l')
    for p in (FL, FC):
        if p is FC: p.label('L_F_c')
        p(f'''
        s_sub_u32 s{S_J5}, s{S_IDX}, 16          ; j
        s_lshl_b32 s{S_STRIP}, s{S_XCD}, 3
        s_add_u32 s{S_STRIP}, s{S_STRIP}, s{S_J5}   ; Y: h*2+half
        s_lshl_b32 s{S_K}, s{S_XCD}, 2
        s_add_u32 s{S_K}, s{S_K}, s{S_J5}
        s_sub_u32 s{S_K}, s{S_K}, 8                 ; Z: h
        s_mul_i32 s{S_R}, s{S_XCD}, 3
        s_add_u32 s{S_R}, s{S_R}, s{S_J5}
        s_sub_u32 s{S_R}, s{S_R}, 12
        s_cmp_lt_u32 s{S_J5}, 8
        s_cbranch_scc1 L_Y_{'l' if p is FL else 'c'}
        s_cmp_lt_u32 s{S_J5}, 12
        s_cbranch_scc1 L_Z_{'l' if p is FL else 'c'}
        s_cmp_ge_u32 s{S_J5}, 15
        s_cbranch_scc1 L_tail_{'l' if p is FL else 'c'}
        s_cmp_ge_u32 s{S_R}, 20
        s_cbranch_scc1 L_tail_{'l' if p is FL else 'c'}
        ''')
    dma_voff(FL, 6, 128, 7680, 3, 4)
    FL(f'''
    s_lshl_b32 s{T4}, s{S_R}, 7
    s_mul_i32 s{T2}, s{S_LW}, {20*8*7680}
    s_add_u32 s{T4}, s{T4}, s{T2}
    s_mul_i32 s{T5}, s{S_LW}, 20480
    ''')
    load_seq(FL, P_WMOD, T4, 8 * 7680, 20, [6], s_lds=T5, lds_const=0)
    FL('s_waitcnt vmcnt(0)'); FL.signal(0); FL.stamp(1)
    FL.wait(5, 4, sleep=1)
    FL('s_branch L_tail_l')
    def p0tile(C, colbase_bytes, s_tile, cnt_ready, cnt_done):
        act_prep(C, True, False, cnt=cnt_ready)
        C(f's_mov_b32 s{T0}, 0')
        aaddr(C, 8, L_ACT, ACTP, T0, 9)
        trpat(C, 25, 128, S_WAVE, 9, 24)
        C(f'''
        s_lshl_b32 s{T0}, s{s_tile}, 2
        s_add_u32 s{T0}, s{T0}, s{S_WAVE}
        s_lshl_b32 s{T0}, s{T0}, 8
        s_add_u32 s{T0}, s{T0}, {W_E0 + colbase_bytes}
        v_lshl_add_u32 v21, v1, 4, s{T0}
        ''')
        tag_setup(C)
        C.stamp(1)
        C.wait(cnt_ready, 8)
        gemv2(C, 20, 8, 25, 4096, 2048, ACC, banks=(64, 144), batch=10)
        C.signal(cnt_done)
        C('s_nop 7')
        exec_set(C, '0xffff')
        store_granule(C, 21)
        exec_restore(C)
    C = FC
    p0tile(C, 0, S_R, 0, 5)
    C.stamp(2)
    C('s_branch L_tail_c')
    FL.label('L_Y_l')
    dma_voff(FL, 6, 128, 8192, 3, 4)
    FL(f'''
    s_lshl_b32 s{T4}, s{S_STRIP}, 7
    s_mul_i32 s{T2}, s{S_LW}, {20*8*8192}
    s_add_u32 s{T4}, s{T4}, s{T2}
    s_mul_i32 s{T5}, s{S_LW}, 20480
    ''')
    load_seq(FL, P_WQ, T4, 8 * 8192, 20, [6], s_lds=T5, lds_const=0)
    FL('s_waitcnt vmcnt(0)'); FL.signal(2); FL.stamp(2)
    FL.wait(5, 4, sleep=1)
    FL('s_branch L_tail_l')
    C.label('L_Y_c')
    act_prep(C, False, True)
    C(f'''
    v_lshlrev_b32 v4, 4, v3
    v_add_u32 v4, {W_E0}, v4
    v_add_u32 v5, 512, v3
    v_min_u32 v5, 639, v5
    v_lshlrev_b32 v6, 4, v5
    v_add_u32 v6, {W_E0}, v6
    v_add_u32 v7, {640*16}, v4
    v_add_u32 v10, {640*16}, v6
    v_add_u32 v11, 4096, v4
    v_add_u32 v12, 4096, v7
    ''')
    C.wait(15, 4)
    C(f'''
    v_lshlrev_b32 v13, 3, v3
    v_add_u32 v13, {L_XNT}, v13
    ds_read_b64 v[14:15], v13
    ds_read_b64 v[16:17], v13 offset:2048
    v_lshlrev_b32 v13, 3, v5
    v_add_u32 v13, {L_XNT}, v13
    ds_read_b64 v[18:19], v13
    ''')
    permaddr(C, 20, 3, 56, 57); C(f'v_add_u32 v20, {L_ACT}, v20')
    permaddr(C, 21, 5, 56, 57); C(f'v_add_u32 v21, {L_ACT}, v21')
    C('s_waitcnt lgkmcnt(0)')
    for ci in range(3):
        for half in range(2):
            unpack(C, 40 + 4 * ci + 2 * half, 41 + 4 * ci + 2 * half, 14 + 2 * ci + half)
    C(f's_mov_b32 s{T0}, 0')
    aaddr(C, 8, L_ACT, ACTP, T0, 9)
    trpat(C, 24, 128, S_WAVE, 9, 25)
    C(f'''
    s_lshl_b32 s{T0}, s{S_STRIP}, 2
    s_add_u32 s{T0}, s{T0}, s{S_WAVE}
    s_lshl_b32 s{T0}, s{T0}, 8
    s_add_u32 s{T0}, s{T0}, {W_E1}
    v_lshlrev_b32 v13, 6, v1
    v_lshlrev_b32 v14, 4, v2
    v_add3_u32 v13, v13, v14, s{T0}
    ''')
    tag_setup(C)
    C.stamp(1)
    C.wait(2, 4, sleep=1)
    prewt(C, 20, 24, 4096, 2048, 144)
    C.stamp(2)
    loads = [f'global_load_dwordx4 v[{64+4*i}:{67+4*i}], v{a}, {sp(P_WS)} sc1' for i, a in enumerate([4, 11, 6, 7, 12, 10])]
    poll_loop(C, loads, [(66 + 4 * i, 67 + 4 * i) for i in range(6)])
    C.stamp(3)
    for ci, (ar, off) in enumerate([(20, 0), (20, 512), (21, 0)]):
        sa = 64 + 4 * ci; ca = 76 + 4 * ci
        for half in range(2):
            x = 40 + 4 * ci + 2 * half
            unpack(C, 92, 93, sa + half)
            unpack(C, 94, 95, ca + half)
            C(f'''
            v_pk_fma_f32 v[90:91], v[{x}:{x+1}], v[94:95], v[{x}:{x+1}]
            v_pk_add_f32 v[90:91], v[90:91], v[92:93]
            v_cvt_pk_bf16_f32 v90, v90, v91
            ds_write_b16 v{ar}, v90 offset:{off + (2*half)*ACTP}
            ds_write_b16_d16_hi v{ar}, v90 offset:{off + (2*half+1)*ACTP}
            ''')
    C.signal(3); C.wait(3, 4)
    gemv3(C, 20, 8, 144, 64, ACC, swap=True)
    C.signal(5)
    C('s_nop 7')
    exec_set(C, sp(S_M4))
    store_granule(C, 13)
    exec_restore(C)
    C.stamp(4)
    C('s_branch L_tail_c')
    FL.label('L_Z_l')
    FL(f'''
    s_lshl_b32 s{T4}, s{S_K}, 8
    s_lshl_b32 s{T5}, s{S_LW}, 20
    s_add_u32 s{T4}, s{T4}, s{T5}
    s_lshl_b32 s{T5}, s{S_LW}, 15
    v_lshrrev_b32 v3, 4, v0
    v_and_b32 v4, 15, v0
    v_xor_b32 v4, v4, v3
    ''')
    for q in range(4):
        FL(f'v_xor_b32 v{8+q}, {4*q}, v4\nv_lshlrev_b32 v{8+q}, 4, v{8+q}\nv_lshl_add_u32 v{8+q}, v3, 13, v{8+q}')
    if ZWARM:
        load_seq(FL, P_WUK, T4, 4 * 8192, 4, [8, 9, 10, 11], s_lds=T5, lds_const=0)
        FL(f's_waitcnt vmcnt(0)\ns_add_u32 s{T4}, s{T4}, {4*4*8192}\ns_add_u32 s{T5}, s{T5}, 4096')
        load_seq(FL, P_WUK, T4, 4 * 8192, 28, [8, 9, 10, 11], s_lds=T5, lds_const=0)
    else:
        load_seq(FL, P_WUK, T4, 4 * 8192, 32, [8, 9, 10, 11], s_lds=T5, lds_const=0)
    FL('s_waitcnt vmcnt(0)'); FL.signal(2); FL.stamp(2)
    FL.wait(5, 4, sleep=1)
    FL('s_branch L_tail_l')
    C.label('L_Z_c')
    C(f'''
    v_xor_b32 v30, v1, v2
    v_lshlrev_b32 v30, 4, v30
    v_lshl_add_u32 v30, v1, 8, v30
    s_lshl_b32 s{T1}, s{S_WAVE}, 15
    v_add_u32 v30, s{T1}, v30
    ''')
    for ks in range(4): C(f'v_xor_b32 v{32+ks}, {64*ks}, v30')
    C(f'''
    s_lshl_b32 s{T0}, s{S_K}, 11
    s_add_u32 s{T0}, s{T0}, {W_E1}
    v_and_b32 v4, 3, v0
    v_lshlrev_b32 v4, 6, v4
    v_lshrrev_b32 v5, 1, v2
    v_lshl_add_u32 v4, v5, 8, v4
    v_and_b32 v5, 1, v2
    v_lshl_add_u32 v4, v5, 5, v4
    v_add_u32 v4, s{T0}, v4
    s_lshl_b32 s{T0}, s{S_K}, 11
    s_lshl_b32 s{T1}, s{S_WAVE}, 9           ; w*32 granules*16B
    s_add_u32 s{T0}, s{T0}, s{T1}
    s_add_u32 s{T0}, s{T0}, {W_E2}
    v_and_b32 v5, 3, v1
    v_lshlrev_b32 v5, 16, v5
    v_lshrrev_b32 v6, 2, v1
    v_lshl_add_u32 v5, v6, 6, v5
    v_lshl_add_u32 v5, v2, 4, v5
    v_add_u32 v5, s{T0}, v5
    ''')
    tag_setup(C)
    C(f'''
    s_mov_b32 s{T1}, {fl(LOG2E / (128 ** 0.5))}
    v_mov_b32 v18, s{S_TAG}
    v_mov_b32 v19, s{S_TAG2}
    v_mov_b32 v22, s{S_TAG}
    v_mov_b32 v23, s{S_TAG2}
    ''')
    C.wait(2, 4, sleep=1)
    for t in range(8):
        for ks in range(4):
            C(f'ds_read_b128 {vr(128+(t*4+ks)*4, 4)}, v{32+ks} offset:{4096*t}')
    C('s_waitcnt lgkmcnt(0)')
    C.stamp(2)
    loads = []
    for ks in range(4):
        for hf in range(2):
            r = 96 + 8 * ks + 4 * hf
            loads.append(f'global_load_dwordx4 {vr(r, 4)}, v4, {sp(P_WS)} offset:{512*ks + 16*hf} sc1')
    poll_loop(C, loads, [(98 + 4 * i, 99 + 4 * i) for i in range(8)])
    C.stamp(5)
    for ks in range(4):
        C(f'v_mov_b32 v{98+8*ks}, v{100+8*ks}\nv_mov_b32 v{99+8*ks}, v{101+8*ks}')
    C('s_nop 0')
    for ks in range(4):
        for t in range(8):
            c = '0' if ks == 0 else vr(28 + 4 * t if t < 7 else 64, 4)
            a = 28 + 4 * t if t < 7 else 64
            C(f'v_mfma_f32_16x16x32_bf16 {vr(a, 4)}, {vr(128+(t*4+ks)*4, 4)}, {vr(96+8*ks, 4)}, {c}')
    C('s_nop 1')
    for t in range(8):
        a = 28 + 4 * t if t < 7 else 64
        if t == 7: C('s_nop 3')
        C(f'''
        v_mul_f32 v{a}, s{T1}, v{a}
        v_mul_f32 v{a+1}, s{T1}, v{a+1}
        v_mul_f32 v{a+2}, s{T1}, v{a+2}
        v_mul_f32 v{a+3}, s{T1}, v{a+3}
        v_cvt_pk_bf16_f32 v{70+2*t}, v{a}, v{a+1}
        v_cvt_pk_bf16_f32 v{71+2*t}, v{a+2}, v{a+3}
        ''')
    for half in range(2):
        d = 16 + 4 * half
        b0 = 70 + 8 * half
        C(f'v_mov_b32 v{d}, v{b0}\nv_mov_b32 v{d+1}, v{b0+1}\ns_nop 0')
        for t in range(1, 4):
            C(f'v_mov_b32_dpp v{d}, v{b0+2*t} row_shr:{4*t} row_mask:0xf bank_mask:{hex(1<<t)}')
            C(f'v_mov_b32_dpp v{d+1}, v{b0+1+2*t} row_shr:{4*t} row_mask:0xf bank_mask:{hex(1<<t)}')
        C(f'global_store_dwordx4 v5, {vr(d, 4)}, {sp(P_WS)} offset:{256*half} sc1')
    C.signal(5)
    C.stamp(6)
    for p, sfx in ((FL, 'l'), (C, 'c')):
        p.label('L_tail_' + sfx)
        p(f'''
        s_mul_i32 s{S_R}, s{S_XCD}, 5
        s_add_u32 s{S_R}, s{S_R}, s{S_J5}           ; j<5: P0n tile
        s_mul_i32 s{S_J}, s{S_XCD}, 7
        s_add_u32 s{S_J}, s{S_J}, s{S_J5}           ; j<7: j6
        s_cmp_lt_u32 s{S_J5}, 7
        s_cbranch_scc1 L_T6_{sfx}
        s_cmp_lt_u32 s{S_J5}, 8
        s_cbranch_scc1 L_fin
        s_sub_u32 s{S_R}, s{S_R}, 11                ; j>=11: unit5
        s_mul_i32 s{S_J}, s{S_XCD}, 3
        s_add_u32 s{S_J}, s{S_J}, s{S_J5}
        s_sub_u32 s{S_J}, s{S_J}, 8                 ; 8<=j<11: unit7
        s_cmp_lt_u32 s{S_J5}, 11
        s_cbranch_scc1 L_T7_{sfx}
        s_branch L_T5_{sfx}
        ''')
        p.label('L_T6_' + sfx)
        p(f's_cmp_ge_u32 s{S_J}, 54\ns_cbranch_scc1 L_fin')
    dma_voff(FL, 6, 128, 7680, 3, 4)
    dma_voff(FL, 5, 64, 3456, 3, 4)
    FL(f'''
    s_cmp_ge_u32 s{S_J5}, 5
    s_cbranch_scc1 L_F_no0n
    s_lshl_b32 s{T4}, s{S_R}, 7
    s_add_u32 s{T4}, s{T4}, {1280*2}
    s_mul_i32 s{T2}, s{S_LW}, {20*8*7680}
    s_add_u32 s{T4}, s{T4}, s{T2}
    s_mul_i32 s{T5}, s{S_LW}, 20480
    ''')
    load_seq(FL, P_WMOD, T4, 8 * 7680, 20, [6], s_lds=T5, lds_const=L_WMN)
    FL('s_waitcnt vmcnt(0)'); FL.signal(18); FL.stamp(3)
    FL.wait(19, 4, sleep=1)
    FL.label('L_F_no0n')
    FL(f'''
    s_lshl_b32 s{T4}, s{S_J}, 6
    s_and_b32 s{T2}, s{S_LW}, 1
    s_mul_i32 s{T2}, s{T2}, {20*16*3456}
    s_add_u32 s{T4}, s{T4}, s{T2}
    s_cmp_ge_u32 s{S_LW}, 2
    s_cselect_b32 s{S_CB}, s{P_WU}, s{P_WG}
    s_cselect_b32 s{S_CB+1}, s{P_WU+1}, s{P_WG+1}
    s_mul_i32 s{T5}, s{S_LW}, 20480
    ''')
    load_seq(FL, S_CB, T4, 16 * 3456, 20, [5], s_lds=T5, lds_const=L_WG6)
    FL('s_waitcnt vmcnt(0)'); FL.signal(13); FL.stamp(5)
    FL('s_branch L_fin')
    FL.label('L_T5_l')
    dma_voff(FL, 5, 64, 1280, 3, 4)
    FL(f'''
    s_lshr_b32 s{T4}, s{S_R}, 1
    s_lshl_b32 s{T4}, s{T4}, 6
    s_and_b32 s{T2}, s{S_R}, 1
    s_mul_i32 s{T2}, s{T2}, {2048*1280}
    s_add_u32 s{T4}, s{T4}, s{T2}
    s_mul_i32 s{T2}, s{S_LW}, {512*1280}
    s_add_u32 s{T4}, s{T4}, s{T2}
    s_lshl_b32 s{T5}, s{S_LW}, 15
    ''')
    load_seq(FL, P_WO, T4, 16 * 1280, 32, [5], s_lds=T5, lds_const=L_WO)
    FL('s_waitcnt vmcnt(0)'); FL.signal(10); FL.stamp(4)
    FL('s_branch L_fin')
    FL.label('L_T7_l')
    FL(f's_cmp_ge_u32 s{S_J}, 20\ns_cbranch_scc1 L_fin')
    dma_voff(FL, 5, 64, 1280, 3, 4)
    FL(f'''
    s_lshl_b32 s{T4}, s{S_J}, 6
    s_mul_i32 s{T2}, s{S_LW}, {27*16*1280}
    s_add_u32 s{T4}, s{T4}, s{T2}
    s_mul_i32 s{T5}, s{S_LW}, {27*1024}
    ''')
    load_seq(FL, P_WD, T4, 16 * 1280, 27, [5], s_lds=T5, lds_const=L_WD)
    FL('s_waitcnt vmcnt(0)'); FL.signal(10); FL.stamp(4)
    FL('s_branch L_fin')
    C(f's_cmp_ge_u32 s{S_J5}, 5\ns_cbranch_scc1 L_B_no0n')
    C.wait(5, 4)
    p0tile(C, 1280 * 16, S_R, 18, 19)
    C.label('L_B_no0n')
    C(f's_mov_b32 s{T0}, 0')
    aaddr(C, 8, L_ACT, ACTP, T0, 9)
    CA = C
    CA(f'''
    v_add_u32 v5, 512, v3
    v_min_u32 v5, 639, v5
    v_lshlrev_b32 v4, 4, v3
    v_lshlrev_b32 v6, 4, v5
    v_add_u32 v7, 4096, v4
    v_lshlrev_b32 v10, 1, v3
    v_lshlrev_b32 v11, 1, v5
    v_add_u32 v12, 512, v10
    ''')
    for b in range(4):
        CA(f'global_load_ushort v{96+b}, v10, {sp(P_X)} offset:{1280*b}')
        CA(f'global_load_ushort v{100+b}, v12, {sp(P_X)} offset:{1280*b}')
        CA(f'global_load_ushort v{104+b}, v11, {sp(P_X)} offset:{1280*b}')
    CA(f'''
    v_add_u32 v12, {W_E0}, v4
    v_add_u32 v13, {W_E0}, v7
    v_add_u32 v14, {W_E0}, v6
    ''')
    loads = []; checks = []
    for k, base in enumerate((1280, 1920, 2560)):
        for ci in range(3):
            CA(f'v_add_u32 v{200+3*k+ci}, {base*16}, v{12+ci}')
            r = 108 + 12 * k + 4 * ci
            loads.append(f'global_load_dwordx4 v[{r}:{r+3}], v{200+3*k+ci}, {sp(P_WS)} sc1')
            checks += [(r + 2, r + 3)]
    poll_loop(CA, loads, checks)
    CA(f'''
    v_add_u32 v12, {W_E5}, v4
    v_add_u32 v13, {W_E5}, v7
    v_add_u32 v14, {W_E5}, v6
    v_add_u32 v15, {640*16}, v12
    v_add_u32 v16, {640*16}, v13
    v_add_u32 v17, {640*16}, v14
    ''')
    permaddr(CA, 20, 3, 56, 57); CA(f'v_add_u32 v20, {L_ACT}, v20')
    permaddr(CA, 21, 5, 56, 57); CA(f'v_add_u32 v21, {L_ACT}, v21')
    for ci in range(3):
        for b in range(4): CA(f'v_lshlrev_b32 v{210+4*ci+b}, 16, v{96+4*ci+b}')
        for half in range(2):
            unpack(CA, 222 + 4 * ci + 2 * half, 223 + 4 * ci + 2 * half, 108 + 4 * ci + half)
            unpack(CA, 234 + 4 * ci + 2 * half, 235 + 4 * ci + 2 * half, 120 + 4 * ci + half)
            unpack(CA, 96 + 4 * ci + 2 * half, 97 + 4 * ci + 2 * half, 132 + 4 * ci + half)
            CA(f'v_add_f32 v{96+4*ci+2*half}, 1.0, v{96+4*ci+2*half}\nv_add_f32 v{97+4*ci+2*half}, 1.0, v{97+4*ci+2*half}')
    CA(f's_and_b32 s{T4}, s{S_WAVE}, 1')
    trpat(CA, 10, 64, T4, 18, 19)
    CA(f'''
    s_lshr_b32 s{T0}, s{S_WAVE}, 1
    s_mul_i32 s{T0}, s{T0}, 40960
    v_add_u32 v10, s{T0}, v10
    s_lshl_b32 s{T0}, s{S_WAVE}, 5
    s_add_u32 s{T0}, s{T0}, {L_RED}
    v_mov_b32 v18, s{T0}
    v_mov_b32 v19, {L_RED}
    v_cmp_gt_u32 vcc, 128, v3
    s_and_b32 s{T0}, s{S_WAVE}, 1
    s_lshl_b32 s{T1}, s{T0}, 10
    s_add_u32 s{T1}, s{T1}, {L_RED4}
    v_lshl_add_u32 v22, v0, 4, s{T1}
    s_lshl_b32 s{T1}, s{S_J}, 1
    s_add_u32 s{T0}, s{T0}, s{T1}
    s_lshl_b32 s{T0}, s{T0}, 8
    s_add_u32 s{T0}, s{T0}, {W_E6}
    v_lshlrev_b32 v23, 6, v1
    v_lshl_add_u32 v23, v2, 4, v23
    v_add_u32 v23, s{T0}, v23
    s_mov_b64 {sp(S_M)}, vcc
    ''')
    loads = [f'global_load_dwordx4 v[{64+4*i}:{67+4*i}], v{12+i}, {sp(P_WS)} sc1' for i in range(6)]
    poll_loop(CA, loads, [(66 + 4 * i, 67 + 4 * i) for i in range(6)])
    CA.stamp(14)
    for ci in range(3):
        for half in range(2):
            o = 4 * ci + 2 * half
            unpack(CA, 90, 91, 64 + 4 * ci + half)
            unpack(CA, 92, 93, 76 + 4 * ci + half)
            CA(f'''
            v_pk_add_f32 v[90:91], v[90:91], v[92:93]
            v_pk_fma_f32 v[90:91], v[90:91], v[{222+o}:{223+o}], v[{210+o}:{211+o}]
            v_cvt_pk_bf16_f32 v90, v90, v91
            ''')
            unpack(CA, 144 + o, 145 + o, 90)
    for b in range(4):
        CA(f'''
        v_cndmask_b32 v90, 0, v{152+b}, {sp(S_M)}
        v_add_f32 v{160+b}, v{144+b}, v{148+b}
        v_add_f32 v{160+b}, v{160+b}, v90
        v_mul_f32 v{164+b}, v{144+b}, v{144+b}
        v_fmac_f32 v{164+b}, v{148+b}, v{148+b}
        v_fmac_f32 v{164+b}, v90, v90
        ''')
    for m in ('quad_perm:[1,0,3,2]', 'quad_perm:[2,3,0,1]', 'row_half_mirror', 'row_mirror'):
        for r in range(8):
            CA('v_add_f32_dpp v%d, v%d, v%d %s row_mask:0xf bank_mask:0xf' % (160 + r, 160 + r, 160 + r, m))
    for r in range(8): CA(f'v_mov_b32 v{168+r}, v{160+r}')
    for r in range(8): CA(f'v_permlane16_swap_b32 v{160+r}, v{168+r}')
    for r in range(8): CA(f'v_add_f32 v{160+r}, v{160+r}, v{168+r}')
    for r in range(8): CA(f'v_mov_b32 v{168+r}, v{160+r}')
    for r in range(8): CA(f'v_permlane32_swap_b32 v{160+r}, v{168+r}')
    for r in range(8): CA(f'v_add_f32 v{160+r}, v{160+r}, v{168+r}')
    exec_set(CA, '1')
    CA('ds_write_b128 v18, v[160:163]\nds_write_b128 v18, v[164:167] offset:16')
    exec_restore(CA)
    CA.signal(12); CA.wait(12, 4)
    for w in range(4):
        CA(f'ds_read_b128 v[{168+8*w}:{171+8*w}], v19 offset:{32*w}')
        CA(f'ds_read_b128 v[{172+8*w}:{175+8*w}], v19 offset:{32*w+16}')
    CA('s_waitcnt lgkmcnt(0)')
    for r in range(0, 8, 2):
        CA(f'''
        v_pk_add_f32 v[{168+r}:{169+r}], v[{168+r}:{169+r}], v[{176+r}:{177+r}]
        v_pk_add_f32 v[{184+r}:{185+r}], v[{184+r}:{185+r}], v[{192+r}:{193+r}]
        v_pk_add_f32 v[{168+r}:{169+r}], v[{168+r}:{169+r}], v[{184+r}:{185+r}]
        ''')
    CA(f's_mov_b32 s{T1}, {fl(1.0/640)}')
    for b in range(4):
        CA(f'''
        v_mul_f32 v{168+b}, s{T1}, v{168+b}
        v_mul_f32 v{172+b}, s{T1}, v{172+b}
        v_fma_f32 v{172+b}, -v{168+b}, v{168+b}, v{172+b}
        v_add_f32 v{172+b}, {fl(1e-5)}, v{172+b}
        v_rsq_f32 v{172+b}, v{172+b}
        ''')
    CA('s_nop 0')
    for ci, (ar, off) in enumerate([(20, 0), (20, 512), (21, 0)]):
        for half in range(2):
            o = 4 * ci + 2 * half
            b0 = 2 * half; b1 = b0 + 1
            CA(f'''
            v_pk_add_f32 v[90:91], v[{144+o}:{145+o}], v[{168+b0}:{169+b0}] neg_lo:[0,1] neg_hi:[0,1]
            v_pk_mul_f32 v[90:91], v[90:91], v[{172+b0}:{173+b0}]
            v_pk_fma_f32 v[90:91], v[90:91], v[{96+o}:{97+o}], v[{234+o}:{235+o}]
            v_cvt_pk_bf16_f32 v90, v90, v91
            ds_write_b16 v{ar}, v90 offset:{off + b0*ACTP}
            ds_write_b16_d16_hi v{ar}, v90 offset:{off + b1*ACTP}
            ''')
    CA.signal(13); CA.wait(13, 8)
    gemv2(CA, 20, 8, 10, 2048, 1024, ACC, swap=True, banks=(64, 144), batch=10)
    lskip = CA.newl('p6w')
    CA(f'''
    s_cmp_lt_u32 s{S_WAVE}, 2
    s_cbranch_scc1 {lskip}
    s_nop 7
    ds_write_b128 v22, v[28:31]
    ''')
    CA.signal(14)
    CA('s_branch L_fin')
    CA.label(lskip)
    CA(f'''
    s_mov_b32 s{T0}, {fl(0.044715)}
    s_mov_b32 s{T1}, {fl(-2.0 * 0.7978845608028654 * LOG2E)}
    s_nop 6
    ''')
    for r in range(4): CA(f'v_mul_f32 v{70+r}, v{28+r}, v{28+r}')
    for r in range(4): CA(f'v_mul_f32 v{70+r}, s{T0}, v{70+r}')
    for r in range(4): CA(f'v_fma_f32 v{70+r}, v{70+r}, v{28+r}, v{28+r}')
    for r in range(4): CA(f'v_mul_f32 v{70+r}, s{T1}, v{70+r}')
    for r in range(4): CA(f'v_exp_f32 v{70+r}, v{70+r}')
    for r in range(4): CA(f'v_add_f32 v{70+r}, 1.0, v{70+r}')
    for r in range(4): CA(f'v_rcp_f32 v{70+r}, v{70+r}')
    for r in range(4): CA(f'v_mul_f32 v{28+r}, v{28+r}, v{70+r}')
    CA.wait(14, 2)
    CA('ds_read_b128 v[64:67], v22\ns_waitcnt lgkmcnt(0)')
    for r in range(4): CA(f'v_mul_f32 v{28+r}, v{28+r}, v{64+r}')
    exec_set(CA, sp(S_M4))
    store_granule(CA, 23)
    exec_restore(CA)
    CA.stamp(15)
    CA('s_branch L_fin')

    CB = Prog(stamps)
    CB.label('L_T5_c')
    red_regs(CB)
    tag_setup(CB)
    CB(f'''
    s_and_b32 s{S_K}, s{S_R}, 1
    s_lshl_b32 s{T0}, s{S_K}, 13
    s_add_u32 s{T0}, s{T0}, {W_E4}
    v_lshl_add_u32 v4, v3, 4, s{T0}
    v_add_u32 v5, 4096, v4
    ''')
    loads = []; checks = []
    for b in range(4):
        for hf in range(2):
            i = 2 * b + hf
            if b: CB(f'v_add_u32 v{10+i}, {16384*b}, v{4+hf}')
            else: CB(f'v_mov_b32 v{10+i}, v{4+hf}')
            loads.append(f'global_load_dwordx4 v[{64+4*i}:{67+4*i}], v{10+i}, {sp(P_WS)} sc1')
            checks += [(66 + 4 * i, 67 + 4 * i)]
    granaddr(CB, 20, 3, 22)
    CB(f'''
    v_add_u32 v20, {L_ACT5}, v20
    s_lshr_b32 s{T0}, s{S_WAVE}, 1
    s_lshl_b32 s{T0}, s{T0}, 11              ; kq*32*64
    ''')
    aaddr(CB, 8, L_ACT5, ACT5P, T0, 9)
    CB(f's_and_b32 s{T4}, s{S_WAVE}, 1')
    trpat(CB, 9, 64, T4, 18, 19)
    CB(f'''
    s_lshr_b32 s{T0}, s{S_WAVE}, 1
    s_lshl_b32 s{T0}, s{T0}, 16              ; kq*32*2048
    v_add_u32 v9, s{T0}, v9
    s_mul_i32 s{T0}, s{S_K}, 640
    s_lshr_b32 s{T1}, s{S_R}, 1
    s_lshl_b32 s{T1}, s{T1}, 5
    s_add_u32 s{T0}, s{T0}, s{T1}
    s_lshl_b32 s{T1}, s{T4}, 4
    s_add_u32 s{T0}, s{T0}, s{T1}
    s_lshl_b32 s{T0}, s{T0}, 4
    s_add_u32 s{T0}, s{T0}, {W_E5}
    v_lshl_add_u32 v21, v1, 4, s{T0}
    ''')
    CB.wait(10, 4, sleep=1)
    prewt(CB, 32, 9, 2048, 1024, 128)
    poll_loop(CB, loads, checks)
    CB.stamp(11)
    for b in range(4):
        for hf in range(2):
            i = 2 * b + hf
            CB(f'ds_write_b64 v20, v[{64+4*i}:{65+4*i}] offset:{b*ACT5P + hf*2048}')
    CB.signal(11); CB.wait(11, 4)
    CB.stamp(12)
    for hb in range(2):
        for i in range(16): CB('ds_read_b128 %s, v8 offset:%d' % (vr(64 + 4 * i, 4), (16 * hb + i) * 64))
        for i in range(16):
            CB('s_waitcnt lgkmcnt(%d)' % min(15, 15 - i))
            c = '0' if (hb == 0 and i == 0) else vr(ACC, 4)
            CB('v_mfma_f32_16x16x32_bf16 %s, %s, %s, %s' % (vr(ACC, 4), vr(64 + 4 * i, 4), vr(128 + 4 * (16 * hb + i), 4), c))
    pair_reduce(CB, 12, 'L_fin')
    exec_set(CB, '0xffff')
    store_granule(CB, 21)
    exec_restore(CB)
    CB.stamp(13)
    CB('s_branch L_fin')
    CC = Prog(stamps)
    CC.label('L_T7_c')
    CC(f's_cmp_ge_u32 s{S_J}, 20\ns_cbranch_scc1 L_fin')
    red_regs(CC)
    tag_setup(CC)
    CC(f'''
    s_lshl_b32 s{T0}, s{S_J}, 5
    s_and_b32 s{T4}, s{S_WAVE}, 1
    s_lshl_b32 s{T1}, s{T4}, 4
    s_add_u32 s{T0}, s{T0}, s{T1}
    v_add_u32 v5, s{T0}, v1                  ; col
    v_lshlrev_b32 v19, 1, v5
    ''')
    for b in range(4): CC(f'global_load_ushort v{96+b}, v19, {sp(P_X)} offset:{1280*b}')
    CC(f'''
    v_lshlrev_b32 v4, 4, v5
    v_add_u32 v11, {W_E0 + 1280*16}, v4
    v_add_u32 v12, {W_E0 + 3200*16}, v4
    v_add_u32 v13, {W_E5}, v4
    v_add_u32 v14, {W_E5 + 640*16}, v4
    v_add_u32 v5, 256, v3
    v_min_u32 v5, 431, v5
    v_lshrrev_b32 v4, 2, v3
    v_lshlrev_b32 v4, 8, v4
    v_and_b32 v6, 3, v3
    v_lshl_add_u32 v4, v6, 4, v4
    v_add_u32 v4, {W_E6}, v4
    v_lshrrev_b32 v6, 2, v5
    v_lshlrev_b32 v6, 8, v6
    v_and_b32 v7, 3, v5
    v_lshl_add_u32 v6, v7, 4, v6
    v_add_u32 v6, {W_E6}, v6
    ''')
    granaddr(CC, 20, 3, 22); CC(f'v_add_u32 v20, {L_ACT7}, v20')
    granaddr(CC, 21, 5, 22); CC(f'v_add_u32 v21, {L_ACT7}, v21')
    CC(f'''
    s_lshr_b32 s{T0}, s{S_WAVE}, 1
    s_mul_i32 s{T0}, s{T0}, {27*64}
    ''')
    aaddr(CC, 8, L_ACT7, ACT7P, T0, 9)
    trpat(CC, 9, 64, T4, 16, 17)
    CC(f'''
    s_lshr_b32 s{T0}, s{S_WAVE}, 1
    s_mul_i32 s{T0}, s{T0}, {27*2048}
    v_add_u32 v9, s{T0}, v9
    ''')
    CC.wait(10, 4, sleep=1)
    prewt(CC, 27, 9, 2048, 1024, 128)
    poll_loop(CC, [f'global_load_dwordx4 v[108:111], v11, {sp(P_WS)} sc1', f'global_load_dwordx4 v[240:243], v12, {sp(P_WS)} sc1',
                   f'global_load_dwordx4 v[116:119], v13, {sp(P_WS)} sc1', f'global_load_dwordx4 v[120:123], v14, {sp(P_WS)} sc1'],
              [(110, 111), (242, 243), (118, 119), (122, 123)])
    for half in range(2):
        unpack(CC, 90, 91, 116 + half)
        unpack(CC, 92, 93, 120 + half)
        unpack(CC, 94, 95, 108 + half)
        CC(f'''
        v_add_f32 v90, v90, v92
        v_add_f32 v91, v91, v93
        v_lshlrev_b32 v92, 16, v{96+2*half}
        v_lshlrev_b32 v93, 16, v{97+2*half}
        v_fma_f32 v90, v90, v94, v92
        v_fma_f32 v91, v91, v95, v93
        v_cvt_pk_bf16_f32 v90, v90, v91
        ''')
        unpack(CC, 40 + 2 * half, 41 + 2 * half, 90)
        unpack(CC, 44 + 2 * half, 45 + 2 * half, 240 + half)
    loads = []; checks = []
    for b in range(4):
        for hf in range(2):
            i = 2 * b + hf
            loads.append(f'global_load_dwordx4 v[{64+4*i}:{67+4*i}], v{4 if hf == 0 else 6}, {sp(P_WS)} offset:{64*b} sc1')
            checks += [(66 + 4 * i, 67 + 4 * i)]
    poll_loop(CC, loads, checks)
    CC.stamp(11)
    for b in range(4):
        CC(f'ds_write_b64 v20, v[{64+8*b}:{65+8*b}] offset:{b*ACT7P}')
        CC(f'ds_write_b64 v21, v[{68+8*b}:{69+8*b}] offset:{b*ACT7P}')
    CC.signal(11); CC.wait(11, 4)
    CC.stamp(12)
    for (s0, n) in ((0, 14), (14, 13)):
        for i in range(n): CC('ds_read_b128 %s, v8 offset:%d' % (vr(64 + 4 * i, 4), (s0 + i) * 64))
        for i in range(n):
            CC('s_waitcnt lgkmcnt(%d)' % min(15, n - 1 - i))
            c = '0' if (s0 == 0 and i == 0) else vr(ACC, 4)
            CC('v_mfma_f32_16x16x32_bf16 %s, %s, %s, %s' % (vr(ACC, 4), vr(64 + 4 * i, 4), vr(128 + 4 * (s0 + i), 4), c))
    pair_reduce(CC, 12, 'L_fin')
    exec_set(CC, '0xffff')
    CC(f'''
    v_pk_fma_f32 v[28:29], v[28:29], v[44:45], v[40:41]
    v_pk_fma_f32 v[30:31], v[30:31], v[46:47], v[42:43]
    v_cvt_pk_bf16_f32 v64, v28, v29
    v_cvt_pk_bf16_f32 v65, v30, v31
    global_store_short v19, v64, {sp(P_OUT)}
    global_store_short_d16_hi v19, v64, {sp(P_OUT)} offset:1280
    global_store_short v19, v65, {sp(P_OUT)} offset:2560
    global_store_short_d16_hi v19, v65, {sp(P_OUT)} offset:3840
    ''')
    exec_restore(CC)
    lskip = CC.newl('p7f')
    CC(f'''
    s_cmp_lg_u32 s{S_J}, 0
    s_cbranch_scc1 {lskip}
    s_cmp_lg_u32 s{S_WAVE}, 0
    s_cbranch_scc1 {lskip}
    v_mov_b32 v4, 0
    v_mov_b32 v5, s{S_TAG}
    ''')
    exec_set(CC, '1')
    CC(f'global_store_dword v4, v5, {sp(P_WS)} sc1')
    exec_restore(CC)
    CC.label(lskip)
    CC.stamp(13)
    F = Prog(stamps)
    F.label('L_fin')
    if stamps:
        F(f'''
        s_memrealtime {sp(S_STAMP + 2*15)}
        s_waitcnt lgkmcnt(0)
        s_lshl_b32 s{T0}, s2, 10
        s_lshl_b32 s{T1}, s{S_WAVE}, 7
        s_add_u32 s{T0}, s{T0}, s{T1}
        s_add_u32 s{T0}, s{T0}, {W_STAMP}
        v_mov_b32 v4, s{T0}
        s_mov_b64 exec, 1
        ''')
        for i in range(16):
            F(f'v_mov_b32 v5, s{S_STAMP+2*i}\nglobal_store_dword v4, v5, {sp(P_WS)} offset:{4*i}')
        if DBGOUT:
            sel = [(0, 0), (248, 0), (16 * 8, 3), (16 * 8, 4), (24 * 8, 5), (24 * 8, 6), (0, 7), (0, 9), (0, 10), (0, 11), (0, 13), (27 * 8, 13), (16 * 8, 14), (16 * 8, 15), (24 * 8, 13), (28 * 8, 2)]
            F(f's_cmp_lg_u32 s{S_WAVE}, 0\ns_cbranch_scc1 L_dbgdone\nv_mov_b32 v4, 0')
            for slot, (wg, si) in enumerate(sel):
                lab = F.newl('dg')
                F(f's_cmp_lg_u32 s2, {wg}\ns_cbranch_scc1 {lab}\nv_mov_b32 v5, s{S_STAMP+2*si}\nglobal_store_dword v4, v5, {sp(P_DBG)} offset:{4*slot}')
                F.label(lab)
            F.label('L_dbgdone')
    F('s_endpgm')
    body = H.text() + AC.text() + FC.text() + CB.text() + CC.text() + F.text() + AL.text() + FL.text() + 'L_codeend:\n'
    return body

HEADER = open('adaLN_cond__compressed_kv_cla__glu_gated_geglu__decode.s.ref').read().split('; @launch')[0]

def full(stamps=False):
    body = gen(stamps)
    return (HEADER + f'; @launch grid=(256,1,1) block=(512,1,1) lds={LDS_BYTES}\n' +
            f'''.amdgcn_target "amdgcn-amd-amdhsa--gfx950"
.text
.globl {NAME}
.p2align 8
.type {NAME},@function
{NAME}:
{body}L_end:
    s_endpgm
.section .rodata,"a"
.p2align 6
.amdhsa_kernel {NAME}
  .amdhsa_next_free_vgpr 256
  .amdhsa_next_free_sgpr 102
  .amdhsa_accum_offset 256
  .amdhsa_group_segment_fixed_size 0
  .amdhsa_kernarg_size 120
  .amdhsa_user_sgpr_count 2
  .amdhsa_user_sgpr_kernarg_segment_ptr 1
  .amdhsa_system_sgpr_workgroup_id_x 1
.end_amdhsa_kernel
''')

if __name__ == '__main__':
    stamps = len(sys.argv) > 2 and sys.argv[2] == 'stamps'
    open(sys.argv[1], 'w').write(full(stamps))
```

```python
import sys, struct

NAME = 'adaLN_cond__compressed_kv_cla__glu_gated_geglu__decode_kernel'

P_X, P_CKV, P_WQ, P_WUK, P_WUV, P_WO, P_BX, P_WG = 4, 6, 8, 10, 12, 14, 16, 18
P_WU, P_WD, P_C, P_WMOD, P_OUT, P_DBG, P_WS = 20, 22, 24, 26, 28, 30, 32
S_WAVE, S_XCD, S_IDX, S_TAG, S_TAG2, S_EP = 3, 34, 35, 36, 37, 38
S_STRIP = 39
S_LW = 40
S_J5 = 41
T0, T1, T2, T3, T4, T5 = 42, 43, 44, 45, 46, 47
S_EX = 48
S_CNT = 50
S_R = 51
S_M = 52
S_J = 54
S_K = 55
S_CB = 56
S_W = 59
S_STAMP = 60
S_SC = 92
S_EX2 = 100
S_S0 = 2
S_S0 = 0

def sp(r): return 's[%d:%d]' % (r, r + 1)
def vr(r, n=1): return 'v%d' % r if n == 1 else 'v[%d:%d]' % (r, r + n - 1)

L_CKV = 0
L_QA = 131072
L_PB = 147456
L_REDA = 155648
L_RED4 = 131072
L_CC = 147456
L_WUV = 0
L_WUK = 81920
L_WM = 0
L_WQ = 20480
L_WG6 = 0; L_WU6 = 40960
L_WMN = 0
L_WO = 0
L_WD = 0
L_ACT5 = 131072; ACT5P = 4160
L_ACT7 = 131072; ACT7P = 3648
L_ACT = 151552; ACTP = 1344
L_XNT = 156928
L_RED = 162048
L_CNT = 163072
LDS_BYTES = 163840

W_E0 = 0x1000
W_E0B = 0x11000
W_E1 = 0x20000
W_E2 = 0x40000
W_F3 = 0x80000
W_ST3 = 0x90000
W_E3 = 0x100000
W_E4 = 0x800000
W_E5 = 0x820000
W_E6 = 0x830000
W_STAMP = 0x900000

SPIN_CAP = 1 << 18
import os
NT = os.environ.get('NT', 'nt')
POLL2 = int(os.environ.get('POLL2', '0'))
PSLEEP = int(os.environ.get('PSLEEP', '0'))
DEPTH = int(os.environ.get('DEPTH', '4'))
TAILWAIT = int(os.environ.get('TAILWAIT', '1'))
TDEPTH = int(os.environ.get('TDEPTH', '8'))
LOG2E = 1.4426950408889634
M4 = '0x000f000f'

def f2u(x): return struct.unpack('<I', struct.pack('<f', x))[0]
def fl(x): return '0x%08x' % f2u(x)

UID = [0]
class Prog:
    def __init__(self, stamps):
        self.o = []; self.stamps = stamps
    def __call__(self, s):
        for line in s.strip('\n').split('\n'):
            line = line.strip()
            if line: self.o.append('    ' + line)
    def label(self, l): self.o.append(l + ':')
    def signal(self, k):
        self(f's_mov_b64 {sp(S_EX2)}, exec\ns_mov_b64 exec, 1\nds_add_u32 v61, v62 offset:{4*k}\ns_mov_b64 exec, {sp(S_EX2)}')
    def wait(self, k, target, sleep=0):
        l0 = self.newl('lw')
        self.label(l0)
        if sleep: self(f's_sleep {sleep}')
        self(f'''
        ds_read_b32 v63, v61 offset:{4*k}
        s_waitcnt lgkmcnt(0)
        v_readfirstlane_b32 s{S_W}, v63
        s_cmp_lt_u32 s{S_W}, {target}
        s_cbranch_scc1 {l0}
        ''')
    def newl(self, p):
        UID[0] += 1; return 'L_%s_%d' % (p, UID[0])
    def stamp(self, i):
        if self.stamps: self('s_memrealtime %s' % sp(S_STAMP + 2 * i))
    def text(self): return '\n'.join(self.o) + '\n'

def rowreduce(p, v, t, op='add'):
    o = 'v_%s_f32' % op
    p(f'''
    v_mov_b32 v{t}, v{v}
    s_nop 1
    v_permlane16_swap_b32 v{v}, v{t}
    s_nop 1
    {o} v{v}, v{v}, v{t}
    v_mov_b32 v{t}, v{v}
    s_nop 1
    v_permlane32_swap_b32 v{v}, v{t}
    s_nop 1
    {o} v{v}, v{v}, v{t}
    ''')

def allreduce(p, v, t, op='add'):
    o = 'v_%s_f32' % op
    for m in ('quad_perm:[1,0,3,2]', 'quad_perm:[2,3,0,1]', 'row_half_mirror', 'row_mirror'):
        p('s_nop 1')
        p('%s_dpp v%d, v%d, v%d %s row_mask:0xf bank_mask:0xf' % (o, v, v, v, m))
    p('s_nop 0')
    rowreduce(p, v, t, op)

def unpack(p, dlo, dhi, src):
    p('v_lshlrev_b32 v%d, 16, v%d' % (dlo, src))
    p('v_and_b32 v%d, 0xffff0000, v%d' % (dhi, src))

def poll_loop(p, loads, checks):
    l0 = p.newl('poll'); l1 = p.newl('polld')
    p('s_mov_b32 s%d, 0' % S_CNT)
    p.label(l0)
    for l in loads: p(l)
    p('s_add_u32 s%d, s%d, 1' % (S_CNT, S_CNT))
    p('s_waitcnt vmcnt(0)')
    first = True
    for (a, b) in checks:
        if first:
            p(f'v_xor_b32 v58, s{S_TAG}, v{a}')
            if b is not None: p(f'v_xor_b32 v59, s{S_TAG2}, v{b}')
            else: p('v_mov_b32 v59, 0')
            first = False
        else:
            p(f'v_xor_b32 v57, s{S_TAG}, v{a}')
            if b is not None:
                p(f'v_xor_b32 v56, s{S_TAG2}, v{b}')
                p('v_or3_b32 v58, v58, v57, v56')
            else:
                p('v_or_b32 v58, v58, v57')
    p('v_or_b32 v58, v58, v59')
    p('v_cmp_ne_u32 vcc, 0, v58')
    p(f's_cmp_ge_u32 s{S_CNT}, {SPIN_CAP}')
    p('s_cbranch_scc1 %s' % l1)
    if PSLEEP:
        p('s_cbranch_vccz %s' % l1)
        p(f's_sleep {PSLEEP}')
        p('s_branch %s' % l0)
    else:
        p('s_cbranch_vccnz %s' % l0)
    p.label(l1)

def gemv_steps(p, nsteps, vA, vB, acc, regs, first=True, swap=False, strideA=64, strideB=1024, offA=0, offB=0, halfB=512):
    for i in range(nsteps):
        a = regs + 8 * i; b = a + 4
        assert offB + i * strideB + halfB < 65536 and offA + i * strideA < 65536
        p('ds_read_b128 %s, v%d offset:%d' % (vr(a, 4), vA, offA + i * strideA))
        p('ds_read_b64_tr_b16 %s, v%d offset:%d' % (vr(b, 2), vB, offB + i * strideB))
        p('ds_read_b64_tr_b16 %s, v%d offset:%d' % (vr(b + 2, 2), vB, offB + i * strideB + halfB))
    for i in range(nsteps):
        a = regs + 8 * i; b = a + 4
        p('s_waitcnt lgkmcnt(%d)' % min(15, 3 * (nsteps - 1 - i)))
        c = '0' if (first and i == 0) else vr(acc, 4)
        x, y = (vr(b, 4), vr(a, 4)) if swap else (vr(a, 4), vr(b, 4))
        p('v_mfma_f32_16x16x32_bf16 %s, %s, %s, %s' % (vr(acc, 4), x, y, c))

def load_seq(p, ptr, s_off, step, count, voffs, s_lds=None, lds_const=0, dst=None, skip_last_if=None, throttle=True):
    p(f's_add_u32 s{T0}, s{ptr}, s{s_off}\ns_addc_u32 s{T1}, s{ptr+1}, 0')
    if s_lds is not None: p(f's_add_u32 m0, s{s_lds}, {lds_const}')
    for j in range(count):
        lab = None
        if skip_last_if and j == count - 1:
            lab = p.newl('dskip')
            p(skip_last_if); p('s_cbranch_scc1 %s' % lab)
        if s_lds is not None:
            p('s_nop 0')
            p('global_load_lds_dwordx4 v%d, %s %s' % (voffs[j % len(voffs)], sp(T0), NT))
        else:
            if TDEPTH and throttle and j >= TDEPTH: p(f's_waitcnt vmcnt({TDEPTH-1})')
            p('global_load_dwordx4 %s, v%d, %s %s' % (vr(dst(j), 4), voffs[j % len(voffs)], sp(T0), NT))
        if lab: p.label(lab)
        if j + 1 < count:
            p(f's_add_u32 s{T0}, s{T0}, {step}\ns_addc_u32 s{T1}, s{T1}, 0')
            if s_lds is not None: p('s_add_u32 m0, m0, 1024')

def ckv_f_const(j):
    k2 = j & 1; k3 = (j >> 1) & 1
    return (((k2 ^ k3) << 3) | k3)

def permaddr(p, dst, m, t1, t2):
    p(f'''
    v_and_b32 v{dst}, 0xffffffe0, v{m}
    v_lshlrev_b32 v{dst}, 1, v{dst}
    v_bfe_u32 v{t1}, v{m}, 2, 2
    v_lshlrev_b32 v{t1}, 4, v{t1}
    v_bfe_u32 v{t2}, v{m}, 4, 1
    v_lshlrev_b32 v{t2}, 3, v{t2}
    v_add3_u32 v{dst}, v{dst}, v{t1}, v{t2}
    v_and_b32 v{t1}, 3, v{m}
    v_lshlrev_b32 v{t1}, 1, v{t1}
    v_add_u32 v{dst}, v{dst}, v{t1}
    ''')

def granaddr(p, dst, gi, t1):
    p(f'''
    v_lshrrev_b32 v{dst}, 3, v{gi}
    v_lshlrev_b32 v{dst}, 6, v{dst}
    v_and_b32 v{t1}, 3, v{gi}
    v_lshl_add_u32 v{dst}, v{t1}, 4, v{dst}
    v_bfe_u32 v{t1}, v{gi}, 2, 1
    v_lshl_add_u32 v{dst}, v{t1}, 3, v{dst}
    ''')

def exec_set(p, mask): p(f's_mov_b64 {sp(S_EX)}, exec\ns_mov_b64 exec, {mask}')
def exec_restore(p): p(f's_mov_b64 exec, {sp(S_EX)}')
S_M4 = 96

V_REDR = 26
V_REDW = 27
V_REDR2 = 22
V_REDW2 = 23
ACC = 28

def red_write(p, rowfmt=False):
    p('s_nop 7')
    exec_set(p, sp(S_M4) if rowfmt else '0xffff')
    p(f'ds_write_b128 v{V_REDW2 if rowfmt else V_REDW}, v[28:31]')
    exec_restore(p)

def red_sum(p, rowfmt=False):
    a = V_REDR2 if rowfmt else V_REDR
    p(f'''
    ds_read_b128 v[28:31], v{a}
    ds_read_b128 v[64:67], v{a} offset:256
    ds_read_b128 v[68:71], v{a} offset:512
    ds_read_b128 v[72:75], v{a} offset:768
    s_waitcnt lgkmcnt(2)
    v_pk_add_f32 v[28:29], v[28:29], v[64:65]
    v_pk_add_f32 v[30:31], v[30:31], v[66:67]
    s_waitcnt lgkmcnt(0)
    v_pk_add_f32 v[68:69], v[68:69], v[72:73]
    v_pk_add_f32 v[70:71], v[70:71], v[74:75]
    v_pk_add_f32 v[28:29], v[28:29], v[68:69]
    v_pk_add_f32 v[30:31], v[30:31], v[70:71]
    ''')

def store_granule(p, vaddr):
    p(f'''
    v_cvt_pk_bf16_f32 v64, v28, v29
    v_cvt_pk_bf16_f32 v65, v30, v31
    v_mov_b32 v66, s{S_TAG}
    v_mov_b32 v67, s{S_TAG2}
    global_store_dwordx4 v{vaddr}, v[64:67], {sp(P_WS)} sc1
    ''')


def gemv2(p, nsteps, vA, vB, strideB, halfB, acc, swap=False, strideA=64, offA=0, offB=0, first=True, banks=(64, 160), batch=12, vtmp=(56, 57)):
    maxoff = offB + (nsteps - 1) * strideB + halfB
    nb = maxoff // 65536 + 1
    bases = [vB]
    for k in range(1, nb):
        p(f'v_add_u32 v{vtmp[k-1]}, {k*65536}, v{vB}')
        bases.append(vtmp[k - 1])
    def rd(i):
        r = banks[(i // batch) % 2] + 8 * (i % batch)
        p('ds_read_b128 %s, v%d offset:%d' % (vr(r, 4), vA, offA + i * strideA))
        for h, o in enumerate((offB + i * strideB, offB + i * strideB + halfB)):
            p('ds_read_b64_tr_b16 %s, v%d offset:%d' % (vr(r + 4 + 2 * h, 2), bases[o // 65536], o % 65536))
    issued = 0
    def issue_upto(n):
        nonlocal issued
        while issued < min(n, nsteps):
            rd(issued); issued += 1
    issue_upto(2 * batch)
    for i in range(nsteps):
        r = banks[(i // batch) % 2] + 8 * (i % batch)
        p('s_waitcnt lgkmcnt(%d)' % min(15, 3 * (issued - 1 - i)))
        c = '0' if (first and i == 0) else vr(acc, 4)
        x, y = (vr(r + 4, 4), vr(r, 4)) if swap else (vr(r, 4), vr(r + 4, 4))
        p('v_mfma_f32_16x16x32_bf16 %s, %s, %s, %s' % (vr(acc, 4), x, y, c))
        if (i + 1) % batch == 0: issue_upto(i + 1 + 2 * batch)

def trpat(p, dst, pitch, s_tile, t1, t2):
    if pitch == 64:
        p(f'''
        v_lshrrev_b32 v{t1}, 2, v1
        v_lshl_add_u32 v{t1}, v2, 2, v{t1}          ; row = 4g+r
        v_lshlrev_b32 v{dst}, 6, v{t1}
        v_bfe_u32 v{t1}, v1, 1, 1                   ; c4>>1
        v_and_b32 v{t2}, 1, v2
        v_lshlrev_b32 v{t2}, 1, v{t2}
        v_xor_b32 v{t1}, v{t1}, v{t2}
        s_lshl_b32 s{T5}, s{s_tile}, 1
        v_xor_b32 v{t1}, s{T5}, v{t1}
        v_lshl_add_u32 v{dst}, v{t1}, 4, v{dst}
        v_and_b32 v{t1}, 1, v1
        v_lshl_add_u32 v{dst}, v{t1}, 3, v{dst}
        ''')
    else:
        p(f'''
        v_lshrrev_b32 v{t1}, 2, v1
        v_lshl_add_u32 v{t1}, v2, 2, v{t1}          ; row
        v_lshlrev_b32 v{dst}, 7, v{t1}
        v_bfe_u32 v{t1}, v{t1}, 1, 2                ; (row>>1)&3
        v_lshlrev_b32 v{t1}, 1, v{t1}
        v_bfe_u32 v{t2}, v1, 1, 1
        v_xor_b32 v{t1}, v{t1}, v{t2}
        s_lshl_b32 s{T5}, s{s_tile}, 1
        v_xor_b32 v{t1}, s{T5}, v{t1}
        v_lshl_add_u32 v{dst}, v{t1}, 4, v{dst}
        v_and_b32 v{t1}, 1, v1
        v_lshl_add_u32 v{dst}, v{t1}, 3, v{dst}
        ''')

def dma_voff(p, dst, seg, pitch, t1, t2):
    if seg == 64:
        p(f'''
        v_lshrrev_b32 v{t1}, 2, v0                  ; row
        v_and_b32 v{t2}, 3, v0
        v_bfe_u32 v{dst}, v0, 4, 1
        v_lshlrev_b32 v{dst}, 1, v{dst}
        v_xor_b32 v{t2}, v{t2}, v{dst}
        v_lshlrev_b32 v{t2}, 4, v{t2}
        s_mov_b32 s{T5}, {pitch}
        v_mul_lo_u32 v{dst}, v{t1}, s{T5}
        v_add_u32 v{dst}, v{dst}, v{t2}
        ''')
    else:
        p(f'''
        v_lshrrev_b32 v{t1}, 3, v0                  ; row
        v_and_b32 v{t2}, 7, v0
        v_bfe_u32 v{dst}, v0, 4, 2                  ; (row>>1)&3
        v_lshlrev_b32 v{dst}, 1, v{dst}
        v_xor_b32 v{t2}, v{t2}, v{dst}
        v_lshlrev_b32 v{t2}, 4, v{t2}
        s_mov_b32 s{T5}, {pitch}
        v_mul_lo_u32 v{dst}, v{t1}, s{T5}
        v_add_u32 v{dst}, v{dst}, v{t2}
        ''')

def act_prep(C, do_silu=True, do_ln=True, pre=None, cnt=0):
    C(f'''
    s_mul_i32 s{T0}, s{S_WAVE}, 1280
    v_lshlrev_b32 v4, 2, v0
    v_add_u32 v4, s{T0}, v4
    ''')
    if do_silu:
        for i in range(5): C(f'global_load_dword v{10+i}, v4, {sp(P_C)} offset:{256*i}')
    if do_ln:
        for i in range(5): C(f'global_load_dword v{15+i}, v4, {sp(P_X)} offset:{256*i}')
    C(f'''
    v_lshlrev_b32 v6, 6, v2
    v_bfe_u32 v7, v0, 1, 2
    v_lshlrev_b32 v7, 4, v7
    v_bfe_u32 v8, v0, 3, 1
    v_lshlrev_b32 v8, 3, v8
    v_and_b32 v9, 1, v0
    v_lshlrev_b32 v9, 2, v9
    v_add3_u32 v6, v6, v7, v8
    s_mul_i32 s{T0}, s{S_WAVE}, {ACTP}
    s_add_u32 s{T0}, s{T0}, {L_ACT}
    v_add3_u32 v6, v6, v9, s{T0}
    s_mov_b32 s{T1}, {fl(-LOG2E)}
    ''')
    if do_silu:
        C(f's_waitcnt vmcnt({5 if do_ln else 0})')
        for i in range(5):
            unpack(C, 20, 21, 10 + i)
            C(f'''
            v_mul_f32 v22, s{T1}, v20
            v_mul_f32 v23, s{T1}, v21
            v_exp_f32 v22, v22
            v_exp_f32 v23, v23
            s_nop 0
            v_add_f32 v22, 1.0, v22
            v_add_f32 v23, 1.0, v23
            v_rcp_f32 v22, v22
            v_rcp_f32 v23, v23
            s_nop 0
            v_mul_f32 v20, v20, v22
            v_mul_f32 v21, v21, v23
            v_cvt_pk_bf16_f32 v20, v20, v21
            ds_write_b32 v6, v20 offset:{256*i}
            ''')
        C.signal(cnt)
    if do_ln:
        C('s_waitcnt vmcnt(0)')
        for i in range(5): unpack(C, 40 + 2 * i, 41 + 2 * i, 15 + i)
        C('v_add_f32 v20, v40, v41\nv_mul_f32 v21, v40, v40\nv_fmac_f32 v21, v41, v41')
        for i in range(2, 10):
            C(f'v_add_f32 v20, v20, v{40+i}\nv_fmac_f32 v21, v{40+i}, v{40+i}')
        allreduce(C, 20, 18); allreduce(C, 21, 18)
        C(f'''
        s_mov_b32 s{T1}, {fl(1.0/640)}
        v_mul_f32 v20, s{T1}, v20
        v_mul_f32 v21, s{T1}, v21
        v_fma_f32 v21, -v20, v20, v21
        v_add_f32 v21, {fl(1e-5)}, v21
        v_rsq_f32 v21, v21
        s_lshl_b32 s{T0}, s{S_WAVE}, 1
        s_add_u32 s{T0}, s{T0}, {L_XNT}
        v_lshlrev_b32 v7, 4, v0
        v_add_u32 v7, s{T0}, v7
        ''')
        for i in range(5):
            C(f'''
            v_sub_f32 v18, v{40+2*i}, v20
            v_sub_f32 v19, v{41+2*i}, v20
            v_mul_f32 v18, v18, v21
            v_mul_f32 v19, v19, v21
            v_cvt_pk_bf16_f32 v18, v18, v19
            ds_write_b16 v7, v18 offset:{1024*i}
            ds_write_b16_d16_hi v7, v18 offset:{1024*i+8}
            ''')
        C.signal(15)

def aaddr(C, dst, lbase, pitch, s_extra, t1):
    C(f'''
    v_and_b32 v{dst}, 3, v0
    v_mul_u32_u24 v{dst}, {pitch}, v{dst}
    v_lshlrev_b32 v{t1}, 4, v2
    s_add_u32 s{T5}, s{s_extra}, {lbase}
    v_add3_u32 v{dst}, v{dst}, v{t1}, s{T5}
    ''')

def tag_setup(C):
    C(f'''
    s_waitcnt lgkmcnt(0)
    s_add_u32 s{S_TAG}, s{S_EP}, 1
    s_not_b32 s{S_TAG2}, s{S_TAG}
    ''')

def pair_reduce(C, cnt, lab_done):
    lk = C.newl('pr')
    C(f's_cmp_lt_u32 s{S_WAVE}, 2\ns_cbranch_scc1 {lk}')
    red_write(C)
    C.signal(cnt)
    C(f's_branch {lab_done}')
    C.label(lk)
    C.wait(cnt, 2)
    C(f'''
    ds_read_b128 v[64:67], v27 offset:512
    s_waitcnt lgkmcnt(0)
    v_pk_add_f32 v[28:29], v[28:29], v[64:65]
    v_pk_add_f32 v[30:31], v[30:31], v[66:67]
    ''')

def red_regs(C):
    C(f'''
    v_lshlrev_b32 v26, 4, v1
    v_add_u32 v26, {L_RED}, v26
    s_lshl_b32 s{T0}, s{S_WAVE}, 8
    v_add_u32 v27, s{T0}, v26
    ''')

def prewt(p, nsteps, vB, strideB, halfB, wbase, vtmp=(56, 57)):
    maxoff = (nsteps - 1) * strideB + halfB
    nb = maxoff // 65536 + 1
    bases = [vB]
    for k in range(1, nb):
        p(f'v_add_u32 v{vtmp[k-1]}, {k*65536}, v{vB}')
        bases.append(vtmp[k - 1])
    for i in range(nsteps):
        for hh, o in enumerate((i * strideB, i * strideB + halfB)):
            p('ds_read_b64_tr_b16 %s, v%d offset:%d' % (vr(wbase + 4 * i + 2 * hh, 2), bases[o // 65536], o % 65536))
    p('s_waitcnt lgkmcnt(0)')

def gemv3(p, nsteps, vA, wbase, abase, acc, swap=False, strideA=64, nacc=1, acc2=None):
    for i in range(nsteps):
        p('ds_read_b128 %s, v%d offset:%d' % (vr(abase + 4 * i, 4), vA, i * strideA))
    for i in range(nsteps):
        p('s_waitcnt lgkmcnt(%d)' % min(15, nsteps - 1 - i))
        a = acc if (acc2 is None or i % 2 == 0) else acc2
        c = '0' if i < (1 if acc2 is None else 2) else vr(a, 4)
        x, y = (vr(wbase + 4 * i, 4), vr(abase + 4 * i, 4)) if swap else (vr(abase + 4 * i, 4), vr(wbase + 4 * i, 4))
        p('v_mfma_f32_16x16x32_bf16 %s, %s, %s, %s' % (vr(a, 4), x, y, c))

import re as _re
def _chk(p, checks, delta):
    first = True
    for (a, b) in checks:
        a += delta; b = None if b is None else b + delta
        if first:
            p(f'v_xor_b32 v58, s{S_TAG}, v{a}')
            if b is not None: p(f'v_xor_b32 v59, s{S_TAG2}, v{b}')
            else: p('v_mov_b32 v59, 0')
            first = False
        else:
            p(f'v_xor_b32 v57, s{S_TAG}, v{a}')
            if b is not None:
                p(f'v_xor_b32 v56, s{S_TAG2}, v{b}')
                p('v_or3_b32 v58, v58, v57, v56')
            else:
                p('v_or_b32 v58, v58, v57')
    p('v_or_b32 v58, v58, v59')
    p('v_cmp_ne_u32 vcc, 0, v58')

def poll2(p, loads, checks, delta, payload=2):
    if not POLL2: return poll_loop(p, loads, checks)
    def shift(l):
        m = _re.match(r'(global_load_dword\w*) v\[(\d+):(\d+)\](.*)', l)
        return '%s v[%d:%d]%s' % (m.group(1), int(m.group(2)) + delta, int(m.group(3)) + delta, m.group(4))
    loadsB = [shift(l) for l in loads]
    n = len(loads)
    l0 = p.newl('p2'); lA = p.newl('p2a'); lB = p.newl('p2b');
    p('s_mov_b32 s%d, 0' % S_CNT)
    for l in loads: p(l)
    p.label(l0)
    for l in loadsB: p(l)
    p('s_add_u32 s%d, s%d, 1' % (S_CNT, S_CNT))
    p(f's_waitcnt vmcnt({n})')
    _chk(p, checks, 0)
    p(f's_cmp_ge_u32 s{S_CNT}, {SPIN_CAP}')
    p('s_cbranch_scc1 %s' % lA)
    p('s_cbranch_vccz %s' % lA)
    for l in loads: p(l)
    p(f's_waitcnt vmcnt({n})')
    _chk(p, checks, delta)
    p('s_cbranch_vccnz %s' % l0)
    for l in loads:
        m = _re.match(r'global_load_dword\w* v\[(\d+):(\d+)\]', l)
        a = int(m.group(1))
        for k in range(payload): p(f'v_mov_b32 v{a+k}, v{a+k+delta}')
    p.label(lA)
ADEPTH = int(os.environ.get('ADEPTH', '8'))
TTRIG = int(os.environ.get('TTRIG', '1'))
ATRIG = int(os.environ.get('ATRIG', '0'))
LIGHT = int(os.environ.get('LIGHT', '0'))
WUVWAIT = int(os.environ.get('WUVWAIT', '1'))
CODEPF = int(os.environ.get('CODEPF', '1'))
AWARM = int(os.environ.get('AWARM', '2'))
ORDER = int(os.environ.get('ORDER', '1'))
UKLATE = int(os.environ.get('UKLATE', '1'))
UKE = int(os.environ.get('UKE', '4'))
UKPF = int(os.environ.get('UKPF', '1'))
PFPOL = os.environ.get('PFPOL', 'nt')
ATCOL = int(os.environ.get('ATCOL', '0'))
FTRIG = int(os.environ.get('FTRIG', '1'))
WUV1 = int(os.environ.get('WUV1', '12'))
REMAP = int(os.environ.get('REMAP', '1'))
DBGOUT = int(os.environ.get('DBGOUT', '0'))
ZWARM = int(os.environ.get('ZWARM', '1'))

def trig(p, off, en=True):
    if not en: return
    l0 = p.newl('tg'); l1 = p.newl('tgd')
    p(f'''
    s_load_dword s{S_EP}, {sp(P_WS)}, 0
    v_mov_b32 v20, {off}
    s_mov_b32 s{S_CNT}, 0
    s_waitcnt lgkmcnt(0)
    s_add_u32 s{S_TAG}, s{S_EP}, 1
    {l0}:
    global_load_dword v21, v20, {sp(P_WS)} offset:8 sc1
    s_add_u32 s{S_CNT}, s{S_CNT}, 1
    s_waitcnt vmcnt(0)
    v_readfirstlane_b32 s{S_W}, v21
    s_cmp_ge_u32 s{S_CNT}, {SPIN_CAP}
    s_cbranch_scc1 {l1}
    s_cmp_eq_u32 s{S_W}, s{S_TAG}
    s_cbranch_scc1 {l1}
    s_sleep 2
    s_branch {l0}
    {l1}:
    ''')

def gen(stamps=False):
    UID[0] = 0
    H = Prog(stamps)
    H(f'''
    s_cmp_ge_u32 s2, 256
    s_cbranch_scc1 L_end
    s_load_dwordx16 s[4:19], s[0:1], 0
    s_load_dwordx8 s[20:27], s[0:1], 64
    s_load_dwordx4 s[28:31], s[0:1], 96
    s_load_dwordx2 s[32:33], s[0:1], 112
    v_lshrrev_b32 v1, 6, v0
    v_and_b32 v0, 63, v0
    s_and_b32 s{S_XCD}, s2, 7
    v_readfirstlane_b32 s{S_WAVE}, v1
    s_lshr_b32 s{S_IDX}, s2, 3
    ''')
    if REMAP:
        H(f'''
        s_add_u32 s{T0}, s{S_IDX}, 24
        s_add_u32 s{T1}, s{S_IDX}, 11
        s_cmp_lt_u32 s{S_IDX}, 5
        s_cselect_b32 s{T0}, s{T0}, s{T1}
        s_add_u32 s{T1}, s{S_IDX}, 16
        s_cmp_ge_u32 s{S_IDX}, 13
        s_cselect_b32 s{T0}, s{T1}, s{T0}
        s_sub_u32 s{T1}, s{S_IDX}, 16
        s_cmp_ge_u32 s{S_IDX}, 16
        s_cselect_b32 s{S_IDX}, s{T1}, s{T0}
        ''')
    H(f'''
    v_and_b32 v1, 15, v0
    v_lshrrev_b32 v2, 4, v0
    ''')
    H.stamp(0)
    H(f'''
    v_mov_b32 v61, {L_CNT}
    v_mov_b32 v62, 1
    v_mov_b32 v63, 0
    v_lshl_add_u32 v3, v0, 2, v61
    s_cmp_lg_u32 s{S_WAVE}, 0
    s_cbranch_scc1 L_noinit
    ds_write_b32 v3, v63
    L_noinit:
    s_mov_b32 s{S_M4}, 0x000f000f
    s_mov_b32 s{S_M4+1}, 0x000f000f
    s_and_b32 s{S_LW}, s{S_WAVE}, 3
    s_lshl_b32 s{T0}, s{S_LW}, 6
    v_add_u32 v3, s{T0}, v0
    s_waitcnt lgkmcnt(0)
    s_barrier
    s_cmp_ge_u32 s{S_WAVE}, 4
    s_cbranch_scc1 L_loader
    s_load_dword s{S_EP}, {sp(P_WS)}, 0
    s_cmp_lt_u32 s{S_IDX}, 16
    s_cbranch_scc1 L_A_c
    s_branch L_F_c
    L_loader:
    s_cmp_lt_u32 s{S_IDX}, 16
    s_cbranch_scc1 L_A_l
    ''')
    if CODEPF:
        H(f'''
        s_cmp_lg_u32 s{S_IDX}, 31
        s_cbranch_scc1 L_F_l
        s_cmp_lg_u32 s{S_WAVE}, 7
        s_cbranch_scc1 L_F_l
        s_getpc_b64 s[{T0}:{T1}]
        L_pcref:
        v_lshlrev_b32 v20, 4, v0
        s_mov_b32 s{T2}, 0
        L_pf:
        global_load_dwordx4 v[24:27], v20, s[{T0}:{T1}]
        v_add_u32 v20, 1024, v20
        s_add_u32 s{T2}, s{T2}, 1024
        s_cmp_lt_u32 s{T2}, (L_codeend - L_pcref - 1024)
        s_cbranch_scc1 L_pf
        ''')
    H(f'''
    s_branch L_F_l
    ''')
    def dump_regs(p, base_reg, count, vaddr, step=1024):
        off = 0
        for j in range(count):
            if off + 0 > 65535 - 0 or off > 60000:
                p(f'v_add_u32 v{vaddr}, {off}, v{vaddr}'); off = 0
            p(f'ds_write_b128 v{vaddr}, {vr(base_reg(j), 4)} offset:{off}')
            off += step

    AL = Prog(stamps); AC = Prog(stamps)
    AL.label('L_A_l')
    AL(f'''
    s_lshl_b32 s{T5}, s{S_XCD}, 4
    s_add_u32 s{T4}, s{T5}, s{S_IDX}         ; cid
    s_lshl_b32 s{T4}, s{T4}, 17
    s_lshl_b32 s{T5}, s{S_LW}, 10
    s_add_u32 s{T4}, s{T4}, s{T5}
    s_add_u32 s56, s{P_CKV}, s{T4}
    s_addc_u32 s57, s{P_CKV+1}, 0
    s_mov_b32 s58, s{T5}
    s_lshl_b32 s{T5}, s{S_LW}, 1
    v_xor_b32 v7, s{T5}, v0
    ''')
    for q in range(4):
        AL(f'v_xor_b32 v{8+q}, {ckv_f_const(q)}, v7')
        AL(f'v_lshlrev_b32 v{8+q}, 4, v{8+q}')
    trig(AL, W_E0 + ATCOL * 16, en=ATRIG)
    for j in range(32):
        if AWARM and j == AWARM: AL('s_waitcnt vmcnt(0)')
        if j >= ADEPTH: AL(f's_waitcnt vmcnt({ADEPTH-1})')
        AL(f'''
        s_add_u32 m0, s58, {j*4096}
        s_nop 0
        global_load_lds_dwordx4 v{8+(j%4)}, s[56:57] {NT}
        s_add_u32 s56, s56, 4096
        s_addc_u32 s57, s57, 0
        ''')
    AL(f'''
    s_lshl_b32 s{T4}, s{S_XCD}, 2
    s_lshr_b32 s{T5}, s{S_IDX}, 2
    s_add_u32 s{T4}, s{T4}, s{T5}
    s_lshl_b32 s{T4}, s{T4}, 8
    s_lshl_b32 s{T5}, s{S_LW}, 20
    s_add_u32 s{T4}, s{T4}, s{T5}
    v_lshrrev_b32 v3, 4, v0
    v_and_b32 v4, 15, v0
    v_lshlrev_b32 v5, 1, v3
    v_xor_b32 v5, v5, v4
    v_xor_b32 v6, 8, v5
    v_lshlrev_b32 v5, 4, v5
    v_lshlrev_b32 v6, 4, v6
    v_lshl_add_u32 v5, v3, 13, v5
    v_lshl_add_u32 v6, v3, 13, v6
    s_waitcnt vmcnt(0)
    ''')
    AL.signal(6); AL.stamp(3)
    load_seq(AL, P_WUV, T4, 4 * 8192, WUV1, [5, 6], dst=lambda j: 64 + 4 * j)
    AL(f's_lshl_b32 s{T5}, s{S_LW}, 15\nv_lshl_add_u32 v12, v0, 4, s{T5}')
    AL('s_waitcnt vmcnt(0)')
    AL.signal(20)
    AL.stamp(4)
    if WUV1 < 32:
        AL.wait(11, 4, sleep=1)
        AL(f's_add_u32 s{T4}, s{T4}, {WUV1*4*8192}')
        load_seq(AL, P_WUV, T4, 4 * 8192, 32 - WUV1, [5, 6], dst=lambda j: 64 + 4 * (WUV1 + j))
        AL('s_waitcnt vmcnt(0)')
    AL.wait(9, 4, sleep=1)
    dump_regs(AL, lambda j: 64 + 4 * j, 32, 12)
    AL.signal(10); AL.stamp(5)
    AL('s_branch L_fin')

    C = AC
    C.label('L_A_c')
    C(f'''
    s_lshr_b32 s{T0}, s{S_XCD}, 1            ; b
    s_lshl_b32 s{T0}, s{T0}, 16
    s_add_u32 s{T0}, s{T0}, {W_E2}
    s_lshl_b32 s{T1}, s{S_WAVE}, 11          ; hsel*2048
    s_add_u32 s{T0}, s{T0}, s{T1}
    v_lshl_add_u32 v4, v0, 4, s{T0}          ; + gi'*16
    v_lshrrev_b32 v7, 1, v0
    s_lshl_b32 s{T1}, s{S_WAVE}, 1
    v_xor_b32 v7, s{T1}, v7
    v_lshlrev_b32 v7, 4, v7
    v_and_b32 v10, 1, v0
    v_lshl_add_u32 v7, v10, 3, v7
    s_lshl_b32 s{T1}, s{S_WAVE}, 9
    s_add_u32 s{T1}, s{T1}, {L_QA}
    v_add_u32 v7, s{T1}, v7
    ''')
    for q4 in range(4): C(f'v_xor_b32 v{44+q4}, {ckv_f_const(q4)*16}, v7')
    for i in range(8):
        if i: C(f'v_add_u32 v{10+i}, {8192*i}, v4')
        else: C('v_mov_b32 v10, v4')
    C(f'''
    v_and_b32 v4, 3, v1
    v_lshlrev_b32 v4, 1, v4
    v_bfe_u32 v5, v1, 3, 1
    v_bfe_u32 v6, v1, 2, 1
    v_xor_b32 v6, v6, v5
    v_lshlrev_b32 v6, 3, v6
    v_or3_b32 v4, v4, v5, v6                 ; f(l16)
    v_lshrrev_b32 v5, 5, v0
    v_xor_b32 v4, v4, v5                     ; f ^ hh
    v_lshlrev_b32 v4, 4, v4
    v_and_b32 v5, 31, v0
    v_lshl_add_u32 v6, v5, 9, v4
    v_add_u32 v6, {L_QA}, v6
    v_lshl_add_u32 v5, v5, 10, v4
    s_lshl_b32 s{T0}, s{S_WAVE}, 15
    v_add_u32 v5, s{T0}, v5
    ''')
    for q8 in range(8):
        C(f'v_xor_b32 v{48+q8}, {q8*32}, v6')
        C(f'v_xor_b32 v{18+q8}, {q8*32}, v5')
    tag_setup(C)
    C.stamp(1)
    C.wait(6, 4, sleep=1)
    if WUVWAIT: C.wait(20, 4, sleep=1)
    C.stamp(2)
    C(f'''
    s_lshr_b32 s{T0}, s{S_XCD}, 1
    s_lshl_b32 s{T0}, s{T0}, 16
    s_add_u32 s{T0}, s{T0}, {W_E2}
    v_lshlrev_b32 v26, 8, v3
    v_add_u32 v26, s{T0}, v26
    ''')
    if LIGHT: poll_loop(C, [f'global_load_dwordx2 v[64:65], v26, {sp(P_WS)} offset:8 sc1'], [(64, 65)])
    C.stamp(3)
    loads = [f'global_load_dwordx4 {vr(192+4*i, 4)}, v{10+i%8}, {sp(P_WS)} offset:{1024*(i//8)} sc1' for i in range(16)]
    poll_loop(C, loads, [(194 + 4 * i, 195 + 4 * i) for i in range(16)])
    C.stamp(7)
    for i in range(8):
        C(f'ds_write_b64 v{44+i%4}, {vr(192+4*i, 2)} offset:{2048*i}')
    C.signal(11)
    C.wait(11, 4)
    for ks in range(16):
        C(f'ds_read_b128 {vr(64+4*ks, 4)}, v{48+ks%8} offset:{(ks//8)*256}')
    def issueA(ks):
        C(f'ds_read_b128 {vr(192+4*(ks%8), 4)}, v{18+ks%8} offset:{(ks//8)*256}')
    for ks in range(8): issueA(ks)
    C('s_waitcnt lgkmcnt(8)')
    C.signal(12)
    C.stamp(8)
    for ks in range(32):
        if ks == 16:
            C.wait(13, 4)
            for k2 in range(16, 32):
                C(f'ds_read_b128 {vr(64+4*k2, 4)}, v{48+k2%8} offset:{((k2-16)//8)*256}')
            C('s_waitcnt lgkmcnt(14)')
        elif ks < 16: C(f's_waitcnt lgkmcnt({min(7, 15 - ks) if ks >= 8 else 7})')
        else: C(f's_waitcnt lgkmcnt({min(15, max(0, 31 - ks) if ks >= 24 else 15)})')
        c = '0' if ks == 0 else 'v[28:43]'
        C(f'v_mfma_f32_32x32x16_bf16 v[28:43], {vr(192+4*(ks%8), 4)}, {vr(64+4*ks, 4)}, {c}')
        if ks + 8 < 32: issueA(ks + 8)
        if ks == 5:
            C.wait(12, 4)
            for i in range(8):
                C(f'ds_write_b64 v{44+i%4}, {vr(192+4*(8+i), 2)} offset:{2048*i}')
            C.signal(13)
    C.stamp(5)
    C(f'''
    v_lshrrev_b32 v4, 2, v1
    v_lshlrev_b32 v5, 1, v4
    v_lshrrev_b32 v6, 1, v2
    v_and_b32 v7, 1, v2
    v_xor_b32 v7, v7, v6
    v_lshlrev_b32 v7, 3, v7
    v_or3_b32 v5, v5, v6, v7
    v_bfe_u32 v6, v1, 1, 1
    v_xor_b32 v5, v5, v6
    v_lshlrev_b32 v5, 4, v5
    v_and_b32 v6, 1, v1
    v_lshlrev_b32 v6, 3, v6
    v_lshl_add_u32 v7, v2, 2, v4
    v_lshlrev_b32 v7, 10, v7
    v_add3_u32 v5, v5, v6, v7
    s_lshl_b32 s{T0}, s{S_WAVE}, 8
    v_add_u32 v5, s{T0}, v5
    v_and_b32 v18, 31, v0
    v_lshlrev_b32 v18, 2, v18
    v_add_u32 v18, {L_REDA}, v18
    s_lshl_b32 s{T0}, s{S_WAVE}, 7
    v_add_u32 v19, s{T0}, v18
    v_lshlrev_b32 v20, 4, v0
    v_add_u32 v20, {L_PB}, v20
    v_bfe_u32 v21, v0, 4, 1
    v_lshlrev_b32 v21, 10, v21
    v_lshrrev_b32 v22, 5, v0
    v_lshl_add_u32 v21, v22, 8, v21
    v_lshl_add_u32 v21, v1, 4, v21
    s_lshl_b32 s{T0}, s{S_WAVE}, 11
    s_add_u32 s{T0}, s{T0}, {L_PB}
    v_add_u32 v21, s{T0}, v21
    ''')
    for t in range(8): C(f'v_xor_b32 v{8+t}, {t*32}, v5')
    C(f'''
    s_lshr_b32 s{T0}, s{S_XCD}, 1
    s_lshl_b32 s{T0}, s{T0}, 5               ; b*32
    s_and_b32 s{T1}, s{S_XCD}, 1
    s_lshl_b32 s{T1}, s{T1}, 4
    s_add_u32 s{T1}, s{T1}, s{S_IDX}         ; chunk
    s_lshl_b32 s{T2}, s{T0}, 15
    s_lshl_b32 s{T3}, s{T1}, 10
    s_add_u32 s{T2}, s{T2}, s{T3}
    s_lshl_b32 s{T3}, s{S_WAVE}, 8
    s_add_u32 s{T2}, s{T2}, s{T3}
    s_add_u32 s{T2}, s{T2}, {W_E3}
    v_and_b32 v4, 7, v1
    v_lshlrev_b32 v4, 15, v4
    v_lshlrev_b32 v5, 4, v2
    v_add3_u32 v4, v4, v5, s{T2}             ; (l16&7)*32768 + g*16
    v_lshrrev_b32 v5, 3, v1
    v_lshlrev_b32 v5, 6, v5                  ; (l16>>3)*64
    v_xor_b32 v6, 64, v5
    v_add_u32 v6, v6, v4
    v_add_u32 v6, {8*32768}, v6
    v_add_u32 v4, v5, v4
    v_add_u32 v5, {16*32768}, v4
    v_add_u32 v7, {16*32768}, v6
    ''')
    C('''
    v_max3_f32 v16, v28, v29, v30
    v_max3_f32 v17, v31, v32, v33
    v_max3_f32 v16, v16, v34, v35
    v_max3_f32 v17, v17, v36, v37
    v_max3_f32 v16, v16, v38, v39
    v_max3_f32 v17, v17, v40, v41
    v_max3_f32 v16, v16, v42, v43
    v_max_f32 v16, v16, v17
    v_mov_b32 v17, v16
    s_nop 1
    v_permlane32_swap_b32 v16, v17
    s_nop 1
    v_max_f32 v16, v16, v17
    ds_write_b32 v19, v16
    ''')
    C.signal(7)
    for t in range(8): C(f'v_add_u32 v{48+t}, 0x10000, v{8+t}')
    lq = []
    def pvfrag(pr, tt, j): return 192 + (pr % 2) * 32 + (tt * 4 + j) * 4
    def pvread(pr):
        for j in range(4):
            for tt in range(2):
                t = 2 * pr + tt
                va = (8 + t) if j < 2 else (48 + t)
                o = (j % 2) * 32768
                C(f'ds_read_b64_tr_b16 {vr(pvfrag(pr, tt, j), 2)}, v{va} offset:{o}')
                C(f'ds_read_b64_tr_b16 {vr(pvfrag(pr, tt, j)+2, 2)}, v{va} offset:{o + 16384}')
                lq.append(('a', pr, tt, j)); lq.append(('a', pr, tt, j))
    def waitfor(ids):
        last = max(i for i, x in enumerate(lq) if x in ids)
        C(f's_waitcnt lgkmcnt({min(15, len(lq) - 1 - last)})')
    pvread(0)
    C.wait(7, 4)
    C.stamp(6)
    for w in range(4): C(f'ds_read_b32 v{64+w}, v18 offset:{128*w}')
    C('s_waitcnt lgkmcnt(0)')
    C('v_max3_f32 v16, v64, v65, v66\nv_max_f32 v16, v16, v67')
    for i in range(16): C(f'v_sub_f32 v{28+i}, v{28+i}, v16')
    for i in range(16): C(f'v_exp_f32 v{28+i}, v{28+i}')
    C('s_nop 0')
    for pc, (qa, qb) in enumerate(((0, 2), (1, 3))):
        C(f'''
        v_cvt_pk_bf16_f32 v{64+4*pc}, v{28+4*qa}, v{29+4*qa}
        v_cvt_pk_bf16_f32 v{65+4*pc}, v{30+4*qa}, v{31+4*qa}
        v_cvt_pk_bf16_f32 v{66+4*pc}, v{28+4*qb}, v{29+4*qb}
        v_cvt_pk_bf16_f32 v{67+4*pc}, v{30+4*qb}, v{31+4*qb}
        ds_write_b128 v21, {vr(64+4*pc, 4)} offset:{512*pc}
        ''')
    C.signal(8)
    for i in range(8): C(f'v_add_f32 v{72+i}, v{28+2*i}, v{29+2*i}')
    for i in range(4): C(f'v_add_f32 v{72+i}, v{72+i}, v{76+i}')
    C('''
    v_add_f32 v72, v72, v74
    v_add_f32 v73, v73, v75
    v_add_f32 v22, v72, v73
    v_mov_b32 v23, v22
    s_nop 1
    v_permlane32_swap_b32 v22, v23
    s_nop 1
    v_add_f32 v22, v22, v23
    ds_write_b32 v19, v22 offset:512
    ''')
    C.signal(16)
    C.wait(8, 4)
    C.stamp(14)
    lq.clear()
    for j in range(4):
        for hg in range(2):
            C(f'ds_read_b128 {vr(64+(j*2+hg)*4, 4)}, v20 offset:{(j*2+hg)*1024}'); lq.append(('p', j))
    pvread(1)
    def pack_store(pp):
        for hg in range(2):
            X1 = 96 + hg * 12; X2 = X1 + 4; Bq = X1 + 8
            for (dst, pr) in ((X1, 2 * pp), (Bq, 2 * pp + 1)):
                a0 = 128 + ((2 * pr) * 2 + hg) * 4; a1 = 128 + ((2 * pr + 1) * 2 + hg) * 4
                C(f'''
                v_cvt_pk_bf16_f32 v{dst}, v{a0}, v{a0+1}
                v_cvt_pk_bf16_f32 v{dst+1}, v{a0+2}, v{a0+3}
                v_cvt_pk_bf16_f32 v{dst+2}, v{a1}, v{a1+1}
                v_cvt_pk_bf16_f32 v{dst+3}, v{a1+2}, v{a1+3}
                ''')
            for k in range(4): C(f'v_mov_b32 v{X2+k}, v{X1+k}')
            for k in range(4): C(f'v_mov_b32_dpp v{X1+k}, v{Bq+k} row_ror:8 row_mask:0xf bank_mask:0xc')
            for k in range(4): C(f'v_mov_b32_dpp v{X2+k}, v{Bq+k} row_ror:8 row_mask:0xf bank_mask:0x3')
            C(f'global_store_dwordx4 v{4+hg}, {vr(X1, 4)}, {sp(P_WS)} offset:{128*pp} sc1')
            C(f'global_store_dwordx4 v{6+hg}, {vr(X2, 4)}, {sp(P_WS)} offset:{128*pp} sc1')
    for pr in range(4):
        for j in range(4):
            ids = [('p', j)] + ([('a', pr, 0, j), ('a', pr, 1, j)] if pr >= 1 else [])
            waitfor(ids)
            for tt in range(2):
                for hg in range(2):
                    t = 2 * pr + tt
                    a = 128 + (t * 2 + hg) * 4
                    c = '0' if j == 0 else vr(a, 4)
                    C(f'v_mfma_f32_16x16x32_bf16 {vr(a, 4)}, {vr(pvfrag(pr, tt, j), 4)}, {vr(64+(j*2+hg)*4, 4)}, {c}')
            if j == 1 and pr == 2: pack_store(0)
        if pr + 2 < 4: pvread(pr + 2)
        if pr == 0:
            lskip = C.newl('st3')
            C(f's_cmp_lg_u32 s{S_WAVE}, 0\ns_cbranch_scc1 {lskip}')
            C.wait(16, 4)
            for w in range(4): C(f'ds_read_b32 v{28+w}, v18 offset:{512 + 128*w}')
            C(f'''
            s_lshl_b32 s{T2}, s{T0}, 8
            s_lshl_b32 s{T3}, s{T1}, 3
            s_add_u32 s{T2}, s{T2}, s{T3}
            s_add_u32 s{T2}, s{T2}, {W_ST3}
            v_and_b32 v24, 31, v0
            v_lshl_add_u32 v24, v24, 8, s{T2}
            v_mov_b32 v36, v16
            s_waitcnt lgkmcnt(0)
            v_add_f32 v28, v28, v29
            v_add_f32 v30, v30, v31
            v_add_f32 v37, v28, v30
            ''')
            exec_set(C, '0xffffffff')
            C(f'global_store_dwordx2 v24, v[36:37], {sp(P_WS)} sc1')
            exec_restore(C)
            C.label(lskip)
    C.stamp(9)
    C.signal(9)
    C(f'''
    s_add_u32 s{T2}, s{T0}, s{T1}
    s_lshl_b32 s{T2}, s{T2}, 7
    s_lshl_b32 s{T3}, s{S_WAVE}, 2
    s_add_u32 s{T2}, s{T2}, s{T3}
    s_add_u32 s{T2}, s{T2}, {W_F3}
    v_mov_b32 v24, s{T2}
    v_mov_b32 v25, s{S_TAG}
    ''')
    pack_store(1)
    C('s_waitcnt vmcnt(0)')
    exec_set(C, '1')
    C(f'global_store_dword v24, v25, {sp(P_WS)} sc1')
    exec_restore(C)
    C.stamp(10)
    CA = C
    CA(f'''
    s_lshl_b32 s{S_J}, s{S_XCD}, 2
    s_lshr_b32 s{T5}, s{S_IDX}, 2
    s_add_u32 s{S_J}, s{S_J}, s{T5}
    s_and_b32 s{S_K}, s{S_IDX}, 3
    s_lshl_b32 s{T0}, s{S_K}, 12              ; b*32 flags*128B
    s_add_u32 s{T0}, s{T0}, {W_F3}
    v_and_b32 v4, 31, v0
    v_lshl_add_u32 v5, v4, 7, s{T0}
    s_lshl_b32 s{T0}, s{S_K}, 5
    s_add_u32 s{T0}, s{T0}, s{S_J}
    s_lshl_b32 s{T1}, s{T0}, 8
    s_add_u32 s{T1}, s{T1}, {W_ST3}
    v_lshl_add_u32 v6, v4, 3, s{T1}
    s_lshl_b32 s{T1}, s{T0}, 15
    s_lshl_b32 s{T2}, s{S_WAVE}, 13
    s_add_u32 s{T1}, s{T1}, s{T2}
    s_add_u32 s{T1}, s{T1}, {W_E3}
    v_lshl_add_u32 v7, v0, 4, s{T1}
    v_add_u32 v10, 4096, v7
    v_lshlrev_b32 v4, 5, v0
    v_add_u32 v4, {L_RED4}, v4
    s_lshl_b32 s{T0}, s{S_WAVE}, 11
    v_add_u32 v11, s{T0}, v4
    ''')
    CA(f'''
    v_lshrrev_b32 v12, 2, v1
    v_lshl_add_u32 v12, v2, 2, v12
    v_and_b32 v13, 7, v12
    v_lshlrev_b32 v13, 1, v13
    v_bfe_u32 v14, v1, 1, 1
    v_xor_b32 v13, v13, v14
    v_lshlrev_b32 v13, 4, v13
    v_and_b32 v14, 1, v1
    v_lshlrev_b32 v14, 3, v14
    v_lshlrev_b32 v12, 8, v12
    v_add3_u32 v12, v12, v13, v14
    s_lshl_b32 s{T0}, s{S_WAVE}, 6
    v_xor_b32 v12, s{T0}, v12
    v_xor_b32 v13, 32, v12
    v_add_u32 v14, 0x10000, v12
    v_add_u32 v15, 0x10000, v13
    ''')
    CA.wait(10, 4)
    for ks in range(16):
        for t in range(2):
            va = (12 + t) if ks < 8 else (14 + t)
            o = (ks % 8) * 8192
            r = 128 + (ks * 2 + t) * 4
            CA(f'ds_read_b64_tr_b16 {vr(r, 2)}, v{va} offset:{o}')
            CA(f'ds_read_b64_tr_b16 {vr(r+2, 2)}, v{va} offset:{o+4096}')
    CA('s_waitcnt lgkmcnt(0)')
    lk = CA.newl('f3w')
    CA(f's_cmp_lg_u32 s{S_WAVE}, 0\ns_cbranch_scc1 {lk}')
    poll2(CA, [f'global_load_dwordx4 v[96:99], v5, {sp(P_WS)} sc1'], [(96, None), (97, None), (98, None), (99, None)], 4, payload=0)
    CA.signal(21)
    CA.label(lk)
    CA.wait(21, 1)
    CA.stamp(11)
    CA(f'global_load_dwordx2 v[16:17], v6, {sp(P_WS)} sc1')
    for i in range(8):
        CA(f'global_load_dwordx4 v[{64+4*i}:{67+4*i}], v{7 if i < 4 else 10}, {sp(P_WS)} offset:{1024*(i%4)} sc1')
    CA('s_waitcnt vmcnt(8)')
    CA('v_mov_b32 v18, v16')
    allreduce(CA, 18, 19, 'max')
    CA(f'''
    v_sub_f32 v16, v16, v18
    v_exp_f32 v16, v16
    s_nop 0
    v_mul_f32 v17, v17, v16
    ''')
    allreduce(CA, 17, 19, 'add')
    CA(f'''
    v_rcp_f32 v17, v17
    s_nop 0
    v_mul_f32 v16, v16, v17
    v_add_f32 v16, v16, v16
    s_lshl_b32 s{T0}, s{S_WAVE}, 3
    s_nop 0
    ''')
    for i in range(8):
        CA(f's_add_u32 s{T1}, s{T0}, {i}')
        CA(f'v_readlane_b32 s{S_SC+i}, v16, s{T1}')
    for i in range(8):
        CA(f's_waitcnt vmcnt({7-i})')
        for q in range(4):
            unpack(CA, 20, 21, 64 + 4 * i + q)
            if i == 0:
                CA(f'v_mul_f32 v{32+2*q}, s{S_SC+i}, v20\nv_mul_f32 v{33+2*q}, s{S_SC+i}, v21')
            else:
                CA(f'v_fmac_f32 v{32+2*q}, s{S_SC+i}, v20\nv_fmac_f32 v{33+2*q}, s{S_SC+i}, v21')
    CA(f'''
    ds_write_b128 v11, v[32:35]
    ds_write_b128 v11, v[36:39] offset:16
    ''')
    CA.signal(17)
    CA(f'''
    s_lshl_b32 s{T0}, s{S_WAVE}, 10
    s_add_u32 s{T0}, s{T0}, {L_CC}
    v_lshl_add_u32 v5, v0, 4, s{T0}
    v_lshl_add_u32 v6, v2, 4, s{T0}
    s_lshl_b32 s{T0}, s{S_K}, 14
    s_lshl_b32 s{T1}, s{S_J}, 9
    s_add_u32 s{T0}, s{T0}, s{T1}
    s_lshl_b32 s{T1}, s{S_WAVE}, 7
    s_add_u32 s{T0}, s{T0}, s{T1}
    s_add_u32 s{T0}, s{T0}, {W_E4}
    v_lshlrev_b32 v14, 6, v1
    v_lshl_add_u32 v14, v2, 4, v14
    v_add_u32 v14, s{T0}, v14
    v_mov_b32 v38, s{S_TAG}
    v_mov_b32 v39, s{S_TAG2}
    v_cmp_gt_u32 vcc, 2, v1
    v_cmp_eq_u32 {sp(S_M)}, 1, v1
    ''')
    CA.wait(17, 4)
    CA.stamp(12)
    for w in range(4):
        CA(f'ds_read_b128 v[{64+8*w}:{67+8*w}], v4 offset:{2048*w}')
        CA(f'ds_read_b128 v[{68+8*w}:{71+8*w}], v4 offset:{2048*w+16}')
    CA('s_waitcnt lgkmcnt(0)')
    for q in range(4):
        CA(f'''
        v_pk_add_f32 v[{64+2*q}:{65+2*q}], v[{64+2*q}:{65+2*q}], v[{72+2*q}:{73+2*q}]
        v_pk_add_f32 v[{80+2*q}:{81+2*q}], v[{80+2*q}:{81+2*q}], v[{88+2*q}:{89+2*q}]
        v_pk_add_f32 v[{64+2*q}:{65+2*q}], v[{64+2*q}:{65+2*q}], v[{80+2*q}:{81+2*q}]
        v_cvt_pk_bf16_f32 v{32+q}, v{64+2*q}, v{65+2*q}
        ''')
    CA('ds_write_b128 v5, v[32:35]')
    CA('s_waitcnt lgkmcnt(0)')
    for ks in range(16): CA(f'ds_read_b128 v[{64+4*ks}:{67+4*ks}], v6 offset:{64*ks}')
    for ks in range(16):
        CA(f's_waitcnt lgkmcnt({15 - ks})')
        for t in range(2):
            c = '0' if ks == 0 else vr(28 + 4 * t, 4)
            CA(f'v_mfma_f32_16x16x32_bf16 {vr(28+4*t, 4)}, {vr(128+(ks*2+t)*4, 4)}, v[{64+4*ks}:{67+4*ks}], {c}')
    CA(f'''
    s_nop 7
    v_cvt_pk_bf16_f32 v36, v28, v29
    v_cvt_pk_bf16_f32 v37, v30, v31
    v_cvt_pk_bf16_f32 v40, v32, v33
    v_cvt_pk_bf16_f32 v41, v34, v35
    v_cndmask_b32 v36, v36, v40, {sp(S_M)}
    v_cndmask_b32 v37, v37, v41, {sp(S_M)}
    s_and_saveexec_b64 {sp(S_EX)}, vcc
    global_store_dwordx4 v14, v[36:39], {sp(P_WS)} sc1
    s_mov_b64 exec, {sp(S_EX)}
    ''')
    CA.stamp(13)
    CA('s_branch L_fin')

    FL = Prog(stamps); FC = Prog(stamps)
    FL.label('L_F_l')
    for p in (FL, FC):
        if p is FC: p.label('L_F_c')
        p(f'''
        s_sub_u32 s{S_J5}, s{S_IDX}, 16          ; j
        s_lshl_b32 s{S_STRIP}, s{S_XCD}, 3
        s_add_u32 s{S_STRIP}, s{S_STRIP}, s{S_J5}   ; Y: h*2+half
        s_mul_i32 s{S_R}, s{S_XCD}, 5
        s_add_u32 s{S_R}, s{S_R}, s{S_J5}
        s_sub_u32 s{S_R}, s{S_R}, 8
        s_cmp_lt_u32 s{S_J5}, 8
        s_cbranch_scc1 L_Y_{'l' if p is FL else 'c'}
        s_cmp_ge_u32 s{S_J5}, 13
        s_cbranch_scc1 L_tail_{'l' if p is FL else 'c'}
        ''')
    dma_voff(FL, 6, 128, 7680, 3, 4)
    FL(f'''
    s_lshr_b32 s{T4}, s{S_R}, 1
    s_lshl_b32 s{T4}, s{T4}, 7
    s_and_b32 s{T2}, s{S_R}, 1
    s_mul_i32 s{T2}, s{T2}, {320*7680}
    s_add_u32 s{T4}, s{T4}, s{T2}
    s_mul_i32 s{T2}, s{S_LW}, {10*8*7680}
    s_add_u32 s{T4}, s{T4}, s{T2}
    s_mul_i32 s{T5}, s{S_LW}, 10240
    ''')
    load_seq(FL, P_WMOD, T4, 8 * 7680, 10, [6], s_lds=T5, lds_const=0)
    FL('s_waitcnt vmcnt(0)'); FL.signal(0); FL.stamp(1)
    FL.wait(5, 4, sleep=1)
    FL('s_branch L_tail_l')
    def p0tile(C, colbase_bytes, s_tile, cnt_ready, cnt_done, half=False):
        act_prep(C, True, False, cnt=cnt_ready)
        if half:
            C(f's_and_b32 s{T0}, s{s_tile}, 1\ns_mul_i32 s{T0}, s{T0}, 640')
        else:
            C(f's_mov_b32 s{T0}, 0')
        aaddr(C, 8, L_ACT, ACTP, T0, 9)
        trpat(C, 25, 128, S_WAVE, 9, 24)
        C(f'''
        ''')
        if half:
            C(f'''
            s_lshr_b32 s{T0}, s{s_tile}, 1
            s_lshl_b32 s{T0}, s{T0}, 2
            s_add_u32 s{T0}, s{T0}, s{S_WAVE}
            s_lshl_b32 s{T0}, s{T0}, 8
            s_and_b32 s{T1}, s{s_tile}, 1
            s_mul_i32 s{T1}, s{T1}, {W_E0B - W_E0}
            s_add_u32 s{T0}, s{T0}, s{T1}
            ''')
        else:
            C(f'''
            s_lshl_b32 s{T0}, s{s_tile}, 2
            s_add_u32 s{T0}, s{T0}, s{S_WAVE}
            s_lshl_b32 s{T0}, s{T0}, 8
            ''')
        C(f'''
        s_add_u32 s{T0}, s{T0}, {W_E0 + colbase_bytes}
        v_lshl_add_u32 v21, v1, 4, s{T0}
        ''')
        tag_setup(C)
        C.stamp(1)
        C.wait(cnt_ready, 8)
        gemv2(C, 10 if half else 20, 8, 25, 4096, 2048, ACC, banks=(64, 144), batch=10)
        C.signal(cnt_done)
        C('s_nop 7')
        exec_set(C, '0xffff')
        store_granule(C, 21)
        exec_restore(C)
    C = FC
    p0tile(C, 0, S_R, 0, 5, half=True)
    C.stamp(2)
    C('s_branch L_tail_c')
    FL.label('L_Y_l')
    dma_voff(FL, 6, 128, 8192, 3, 4)
    FL(f'''
    s_lshl_b32 s{T4}, s{S_STRIP}, 7
    s_mul_i32 s{T2}, s{S_LW}, {20*8*8192}
    s_add_u32 s{T4}, s{T4}, s{T2}
    s_mul_i32 s{T5}, s{S_LW}, 20480
    ''')
    load_seq(FL, P_WQ, T4, 8 * 8192, 20, [6], s_lds=T5, lds_const=0)
    FL(f'''
    s_lshr_b32 s{T4}, s{S_STRIP}, 1
    s_lshl_b32 s{T4}, s{T4}, 8               ; h*256
    s_and_b32 s{T2}, s{S_STRIP}, 1
    s_lshl_b32 s{T2}, s{T2}, 21
    s_add_u32 s{T4}, s{T4}, s{T2}
    s_lshl_b32 s{T2}, s{S_LW}, 19
    s_add_u32 s{T4}, s{T4}, s{T2}
    s_lshl_b32 s{T5}, s{S_LW}, 14
    v_lshrrev_b32 v3, 4, v0
    v_and_b32 v4, 15, v0
    v_xor_b32 v4, v4, v3
    ''')
    for q in range(4):
        FL(f'v_xor_b32 v{8+q}, {4*q}, v4\nv_lshlrev_b32 v{8+q}, 4, v{8+q}\nv_lshl_add_u32 v{8+q}, v3, 13, v{8+q}')
    if UKLATE:
        if UKE:
            load_seq(FL, P_WUK, T4, 4 * 8192, UKE, [8, 9, 10, 11], s_lds=T5, lds_const=L_WUK)
            FL(f's_add_u32 s{T4}, s{T4}, {UKE*4*8192}\ns_add_u32 s{T5}, s{T5}, {UKE*1024}')
        FL(f's_waitcnt vmcnt({UKE})'); FL.signal(2); FL.stamp(2)
        FL.wait(23, 4, sleep=1)
        load_seq(FL, P_WUK, T4, 4 * 8192, 16 - UKE, [8, 9, 10, 11], s_lds=T5, lds_const=L_WUK)
    else:
        load_seq(FL, P_WUK, T4, 4 * 8192, 16, [8, 9, 10, 11], s_lds=T5, lds_const=L_WUK)
        FL('s_waitcnt vmcnt(16)'); FL.signal(2); FL.stamp(2)
    FL('s_waitcnt vmcnt(0)'); FL.signal(4); FL.stamp(4)
    FL.wait(22, 4, sleep=1)
    FL('s_branch L_tail_l')
    C.label('L_Y_c')
    act_prep(C, False, True)
    C(f'''
    v_lshlrev_b32 v4, 4, v3
    v_add_u32 v4, {W_E0}, v4
    v_add_u32 v5, 512, v3
    v_min_u32 v5, 639, v5
    v_lshlrev_b32 v6, 4, v5
    v_add_u32 v6, {W_E0}, v6
    v_add_u32 v7, {640*16}, v4
    v_add_u32 v10, {640*16}, v6
    v_add_u32 v11, 4096, v4
    v_add_u32 v12, 4096, v7
    ''')
    C.wait(15, 4)
    C(f'''
    v_lshlrev_b32 v13, 3, v3
    v_add_u32 v13, {L_XNT}, v13
    ds_read_b64 v[14:15], v13
    ds_read_b64 v[16:17], v13 offset:2048
    v_lshlrev_b32 v13, 3, v5
    v_add_u32 v13, {L_XNT}, v13
    ds_read_b64 v[18:19], v13
    ''')
    permaddr(C, 20, 3, 56, 57); C(f'v_add_u32 v20, {L_ACT}, v20')
    permaddr(C, 21, 5, 56, 57); C(f'v_add_u32 v21, {L_ACT}, v21')
    C('s_waitcnt lgkmcnt(0)')
    for ci in range(3):
        for half in range(2):
            unpack(C, 40 + 4 * ci + 2 * half, 41 + 4 * ci + 2 * half, 14 + 2 * ci + half)
    C(f's_mov_b32 s{T0}, 0')
    aaddr(C, 8, L_ACT, ACTP, T0, 9)
    trpat(C, 24, 128, S_WAVE, 9, 25)
    C(f'''
    s_lshl_b32 s{T0}, s{S_STRIP}, 2
    s_add_u32 s{T0}, s{T0}, s{S_WAVE}
    s_lshl_b32 s{T0}, s{T0}, 8
    s_add_u32 s{T0}, s{T0}, {W_E1}
    v_lshlrev_b32 v13, 6, v1
    v_lshlrev_b32 v14, 4, v2
    v_add3_u32 v13, v13, v14, s{T0}
    ''')
    tag_setup(C)
    C.stamp(1)
    C.wait(2, 4, sleep=1)
    prewt(C, 20, 24, 4096, 2048, 144)
    C.stamp(2)
    for i, a in enumerate([4, 11, 6, 7, 12, 10]): C(f'v_add_u32 v{26+i}, {W_E0B - W_E0}, v{a}')
    loads = [f'global_load_dwordx4 v[{64+4*i}:{67+4*i}], v{a}, {sp(P_WS)} sc1' for i, a in enumerate([4, 11, 6, 7, 12, 10, 26, 27, 28, 29, 30, 31])]
    poll_loop(C, loads, [(66 + 4 * i, 67 + 4 * i) for i in range(12)])
    C.signal(23)
    C.stamp(3)
    for ci, (ar, off) in enumerate([(20, 0), (20, 512), (21, 0)]):
        sa = 64 + 4 * ci; ca = 76 + 4 * ci
        for half in range(2):
            x = 40 + 4 * ci + 2 * half
            unpack(C, 122, 123, sa + half)
            unpack(C, 124, 125, ca + half)
            unpack(C, 116, 117, sa + 24 + half)
            unpack(C, 118, 119, ca + 24 + half)
            C(f'''
            v_pk_add_f32 v[124:125], v[124:125], v[118:119]
            v_pk_add_f32 v[122:123], v[122:123], v[116:117]
            v_pk_fma_f32 v[120:121], v[{x}:{x+1}], v[124:125], v[{x}:{x+1}]
            v_pk_add_f32 v[120:121], v[120:121], v[122:123]
            v_cvt_pk_bf16_f32 v120, v120, v121
            ds_write_b16 v{ar}, v120 offset:{off + (2*half)*ACTP}
            ds_write_b16_d16_hi v{ar}, v120 offset:{off + (2*half+1)*ACTP}
            ''')
    C.signal(3); C.wait(3, 4)
    C('s_waitcnt vmcnt(0)')
    gemv3(C, 20, 8, 144, 64, ACC, swap=True)
    C('s_nop 7')
    exec_set(C, sp(S_M4))
    store_granule(C, 13)
    exec_restore(C)
    C.stamp(4)
    C(f'''
    v_xor_b32 v30, v1, v2
    v_lshlrev_b32 v30, 4, v30
    v_lshl_add_u32 v30, v1, 8, v30
    s_lshl_b32 s{T1}, s{S_WAVE}, 14
    s_add_u32 s{T1}, s{T1}, {L_WUK}
    v_add_u32 v30, s{T1}, v30
    ''')
    for ks in range(4): C(f'v_xor_b32 v{32+ks}, {64*ks}, v30')
    C(f'''
    s_lshr_b32 s{S_K}, s{S_STRIP}, 1         ; h
    s_lshl_b32 s{T0}, s{S_K}, 11
    s_add_u32 s{T0}, s{T0}, {W_E1}
    v_and_b32 v4, 3, v0
    v_lshlrev_b32 v4, 6, v4
    v_lshrrev_b32 v5, 1, v2
    v_lshl_add_u32 v4, v5, 8, v4
    v_and_b32 v5, 1, v2
    v_lshl_add_u32 v4, v5, 5, v4
    v_add_u32 v4, s{T0}, v4
    s_lshl_b32 s{T0}, s{S_K}, 11
    s_and_b32 s{T1}, s{S_STRIP}, 1
    s_lshl_b32 s{T1}, s{T1}, 2
    s_add_u32 s{T1}, s{T1}, s{S_WAVE}
    s_lshl_b32 s{T1}, s{T1}, 8
    s_add_u32 s{T0}, s{T0}, s{T1}
    s_add_u32 s{T0}, s{T0}, {W_E2}
    v_and_b32 v5, 3, v1
    v_lshlrev_b32 v5, 16, v5
    v_lshrrev_b32 v6, 2, v1
    v_lshl_add_u32 v5, v6, 6, v5
    v_lshl_add_u32 v5, v2, 4, v5
    v_add_u32 v5, s{T0}, v5
    s_mov_b32 s{T1}, {fl(LOG2E / (128 ** 0.5))}
    v_mov_b32 v74, s{S_TAG}
    v_mov_b32 v75, s{S_TAG2}
    ''')
    C.wait(4, 4)
    for t in range(4):
        for ks in range(4):
            C(f'ds_read_b128 {vr(128+(t*4+ks)*4, 4)}, v{32+ks} offset:{4096*t}')
    C('s_waitcnt lgkmcnt(0)')
    C.signal(5)
    loads = []
    for ks in range(4):
        for hf in range(2):
            r = 96 + 8 * ks + 4 * hf
            loads.append(f'global_load_dwordx4 {vr(r, 4)}, v4, {sp(P_WS)} offset:{512*ks + 16*hf} sc1')
    poll_loop(C, loads, [(98 + 4 * i, 99 + 4 * i) for i in range(8)])
    C.stamp(5)
    for ks in range(4):
        C(f'v_mov_b32 v{98+8*ks}, v{100+8*ks}\nv_mov_b32 v{99+8*ks}, v{101+8*ks}')
    C('s_nop 0')
    for ks in range(4):
        for t in range(4):
            c = '0' if ks == 0 else vr(28 + 4 * t, 4)
            C(f'v_mfma_f32_16x16x32_bf16 {vr(28+4*t, 4)}, {vr(128+(t*4+ks)*4, 4)}, {vr(96+8*ks, 4)}, {c}')
    C('s_nop 4')
    for t in range(4):
        a_ = 28 + 4 * t
        C(f'''
        v_mul_f32 v{a_}, s{T1}, v{a_}
        v_mul_f32 v{a_+1}, s{T1}, v{a_+1}
        v_mul_f32 v{a_+2}, s{T1}, v{a_+2}
        v_mul_f32 v{a_+3}, s{T1}, v{a_+3}
        v_cvt_pk_bf16_f32 v{64+2*t}, v{a_}, v{a_+1}
        v_cvt_pk_bf16_f32 v{65+2*t}, v{a_+2}, v{a_+3}
        ''')
    C('v_mov_b32 v72, v64\nv_mov_b32 v73, v65\ns_nop 0')
    for t in range(1, 4):
        C(f'v_mov_b32_dpp v72, v{64+2*t} row_shr:{4*t} row_mask:0xf bank_mask:{hex(1<<t)}')
        C(f'v_mov_b32_dpp v73, v{65+2*t} row_shr:{4*t} row_mask:0xf bank_mask:{hex(1<<t)}')
    C(f'global_store_dwordx4 v5, v[72:75], {sp(P_WS)} sc1')
    C.signal(22)
    C.stamp(6)
    for p, sfx in ((FL, 'l'), (C, 'c')):
        p.label('L_tail_' + sfx)
        if p is FL and UKPF:
            lb = p.newl('pf'); l2 = p.newl('pf2')
            p(f'''
            s_cmp_lt_u32 s{S_J5}, 13
            s_cbranch_scc1 {lb}
            s_sub_u32 s{T2}, s{S_J5}, 13             ; 0,1,2
            s_cmp_eq_u32 s{T2}, 0
            s_cselect_b32 s{T3}, 1, 0
            s_cmp_eq_u32 s{T2}, 2
            s_cselect_b32 s{T3}, 2, s{T3}
            s_lshl_b32 s{T4}, s{S_XCD}, 2
            s_add_u32 s{T4}, s{T4}, s{T3}
            s_lshl_b32 s{T4}, s{T4}, 8
            s_lshl_b32 s{T5}, s{S_LW}, 20
            s_add_u32 s{T4}, s{T4}, s{T5}
            s_lshl_b32 s{T5}, s{S_LW}, 15
            v_lshrrev_b32 v3, 4, v0
            v_and_b32 v4, 15, v0
            v_lshlrev_b32 v4, 4, v4
            v_lshl_add_u32 v8, v3, 13, v4
            ''')
            NTs = NT
            globals()['NT'] = PFPOL
            load_seq(p, P_WUK, T4, 4 * 8192, 32, [8], s_lds=T5, lds_const=0)
            p(f'''
            s_cmp_eq_u32 s{S_J5}, 13
            s_cbranch_scc1 {l2}
            s_lshl_b32 s{T4}, s{S_XCD}, 2
            s_add_u32 s{T4}, s{T4}, 3
            s_lshl_b32 s{T4}, s{T4}, 8
            s_sub_u32 s{T2}, s{S_J5}, 14
            s_lshl_b32 s{T2}, s{T2}, 21
            s_add_u32 s{T4}, s{T4}, s{T2}
            s_lshl_b32 s{T2}, s{S_LW}, 19
            s_add_u32 s{T4}, s{T4}, s{T2}
            s_lshl_b32 s{T5}, s{S_LW}, 14
            ''')
            load_seq(p, P_WUK, T4, 4 * 8192, 16, [8], s_lds=T5, lds_const=0)
            globals()['NT'] = NTs
            p.label(l2)
            p('s_waitcnt vmcnt(0)')
            p.label(lb)
        if p is FL and FTRIG:
            lb = p.newl('ft')
            p(f's_cmp_lt_u32 s{S_J5}, 8\ns_cbranch_scc1 {lb}')
            trig(p, W_E1 + 100 * 256, en=True)
            p.label(lb)
        p(f'''
        s_mul_i32 s{S_R}, s{S_XCD}, 5
        s_add_u32 s{S_R}, s{S_R}, s{S_J5}           ; j<5: P0n tile
        s_mul_i32 s{S_J}, s{S_XCD}, 7
        s_add_u32 s{S_J}, s{S_J}, s{S_J5}           ; j<7: j6
        s_cmp_lt_u32 s{S_J5}, 7
        s_cbranch_scc1 L_T6_{sfx}
        s_cmp_lt_u32 s{S_J5}, 8
        s_cbranch_scc1 L_fin
        s_sub_u32 s{S_R}, s{S_R}, 11                ; j>=11: unit5
        s_mul_i32 s{S_J}, s{S_XCD}, 3
        s_add_u32 s{S_J}, s{S_J}, s{S_J5}
        s_sub_u32 s{S_J}, s{S_J}, 8                 ; 8<=j<11: unit7
        s_cmp_lt_u32 s{S_J5}, 11
        s_cbranch_scc1 L_T7_{sfx}
        s_branch L_T5_{sfx}
        ''')
        p.label('L_T6_' + sfx)
        p(f's_cmp_ge_u32 s{S_J}, 54\ns_cbranch_scc1 L_fin')
    dma_voff(FL, 6, 128, 7680, 3, 4)
    dma_voff(FL, 5, 64, 3456, 3, 4)
    FL(f'''
    s_cmp_ge_u32 s{S_J5}, 5
    s_cbranch_scc1 L_F_no0n
    s_lshl_b32 s{T4}, s{S_R}, 7
    s_add_u32 s{T4}, s{T4}, {1280*2}
    s_mul_i32 s{T2}, s{S_LW}, {20*8*7680}
    s_add_u32 s{T4}, s{T4}, s{T2}
    s_mul_i32 s{T5}, s{S_LW}, 20480
    ''')
    load_seq(FL, P_WMOD, T4, 8 * 7680, 20, [6], s_lds=T5, lds_const=L_WMN)
    FL('s_waitcnt vmcnt(0)'); FL.signal(18); FL.stamp(3)
    FL.wait(19, 4, sleep=1)
    FL.label('L_F_no0n')
    FL(f'''
    s_lshl_b32 s{T4}, s{S_J}, 6
    s_and_b32 s{T2}, s{S_LW}, 1
    s_mul_i32 s{T2}, s{T2}, {20*16*3456}
    s_add_u32 s{T4}, s{T4}, s{T2}
    s_cmp_ge_u32 s{S_LW}, 2
    s_cselect_b32 s{S_CB}, s{P_WU}, s{P_WG}
    s_cselect_b32 s{S_CB+1}, s{P_WU+1}, s{P_WG+1}
    s_mul_i32 s{T5}, s{S_LW}, 20480
    ''')
    load_seq(FL, S_CB, T4, 16 * 3456, 20, [5], s_lds=T5, lds_const=L_WG6)
    FL('s_waitcnt vmcnt(0)'); FL.signal(13); FL.stamp(5)
    FL('s_branch L_fin')
    FL.label('L_T5_l')
    dma_voff(FL, 5, 64, 1280, 3, 4)
    FL(f'''
    s_lshr_b32 s{T4}, s{S_R}, 1
    s_lshl_b32 s{T4}, s{T4}, 6
    s_and_b32 s{T2}, s{S_R}, 1
    s_mul_i32 s{T2}, s{T2}, {2048*1280}
    s_add_u32 s{T4}, s{T4}, s{T2}
    s_mul_i32 s{T2}, s{S_LW}, {512*1280}
    s_add_u32 s{T4}, s{T4}, s{T2}
    s_lshl_b32 s{T5}, s{S_LW}, 15
    ''')
    load_seq(FL, P_WO, T4, 16 * 1280, 32, [5], s_lds=T5, lds_const=L_WO)
    FL('s_waitcnt vmcnt(0)'); FL.signal(10); FL.stamp(4)
    FL('s_branch L_fin')
    FL.label('L_T7_l')
    FL(f's_cmp_ge_u32 s{S_J}, 20\ns_cbranch_scc1 L_fin')
    dma_voff(FL, 5, 64, 1280, 3, 4)
    FL(f'''
    s_lshl_b32 s{T4}, s{S_J}, 6
    s_mul_i32 s{T2}, s{S_LW}, {27*16*1280}
    s_add_u32 s{T4}, s{T4}, s{T2}
    s_mul_i32 s{T5}, s{S_LW}, {27*1024}
    ''')
    load_seq(FL, P_WD, T4, 16 * 1280, 27, [5], s_lds=T5, lds_const=L_WD)
    FL('s_waitcnt vmcnt(0)'); FL.signal(10); FL.stamp(4)
    FL('s_branch L_fin')
    C(f's_cmp_ge_u32 s{S_J5}, 5\ns_cbranch_scc1 L_B_no0n')
    C.wait(5, 4)
    p0tile(C, 1280 * 16, S_R, 18, 19)
    C.label('L_B_no0n')
    C(f's_mov_b32 s{T0}, 0')
    aaddr(C, 8, L_ACT, ACTP, T0, 9)
    CA = C
    L_A12 = 98304; A12P = ACTP
    CA(f'''
    v_add_u32 v5, 512, v3
    v_min_u32 v5, 639, v5
    v_lshlrev_b32 v4, 4, v3
    v_lshlrev_b32 v6, 4, v5
    v_add_u32 v7, 4096, v4
    v_lshlrev_b32 v10, 1, v3
    v_lshlrev_b32 v11, 1, v5
    v_add_u32 v12, 512, v10
    ''')
    for b_ in range(4):
        CA(f'global_load_ushort v{108+b_}, v10, {sp(P_X)} offset:{1280*b_}')
        CA(f'global_load_ushort v{112+b_}, v12, {sp(P_X)} offset:{1280*b_}')
        CA(f'global_load_ushort v{116+b_}, v11, {sp(P_X)} offset:{1280*b_}')
    CA(f'''
    v_add_u32 v12, {W_E0}, v4
    v_add_u32 v13, {W_E0}, v7
    v_add_u32 v14, {W_E0}, v6
    ''')
    loads = []; checks = []
    for k, base in enumerate((1280, 1920, 2560)):
        for ci in range(3):
            CA(f'v_add_u32 v{200+3*k+ci}, {base*16}, v{12+ci}')
            r = 160 + 12 * k + 4 * ci
            loads.append(f'global_load_dwordx4 v[{r}:{r+3}], v{200+3*k+ci}, {sp(P_WS)} sc1')
            checks += [(r + 2, r + 3)]
    poll_loop(CA, loads, checks)
    CA(f'''
    v_add_u32 v12, {W_E5}, v4
    v_add_u32 v13, {W_E5}, v7
    v_add_u32 v14, {W_E5}, v6
    v_add_u32 v15, {640*16}, v12
    v_add_u32 v16, {640*16}, v13
    v_add_u32 v17, {640*16}, v14
    ''')
    permaddr(CA, 20, 3, 56, 57); CA(f'v_add_u32 v20, {L_A12}, v20')
    permaddr(CA, 21, 5, 56, 57); CA(f'v_add_u32 v21, {L_A12}, v21')
    for ci, (ar, off) in enumerate([(20, 0), (20, 512), (21, 0)]):
        for b_ in range(4): CA(f'v_lshlrev_b32 v{108+4*ci+b_}, 16, v{108+4*ci+b_}')
        for half in range(2):
            o = 4 * ci + 2 * half
            unpack(CA, 120 + o, 121 + o, 160 + 4 * ci + half)
            unpack(CA, 96 + o, 97 + o, 184 + 4 * ci + half)
            CA(f'''
            v_add_f32 v{96+o}, 1.0, v{96+o}
            v_add_f32 v{97+o}, 1.0, v{97+o}
            v_cvt_pk_bf16_f32 v90, v{96+o}, v{97+o}
            ds_write_b16 v{ar}, v90 offset:{off + (4+2*half)*A12P}
            ds_write_b16_d16_hi v{ar}, v90 offset:{off + (5+2*half)*A12P}
            ds_write_b16 v{ar}, v{172+4*ci+half} offset:{off + (8+2*half)*A12P}
            ds_write_b16_d16_hi v{ar}, v{172+4*ci+half} offset:{off + (9+2*half)*A12P}
            ''')
            unpack(CA, 96 + o, 97 + o, 90)
    CA(f's_and_b32 s{T4}, s{S_WAVE}, 1')
    trpat(CA, 10, 64, T4, 18, 19)
    CA(f'''
    s_lshr_b32 s{T0}, s{S_WAVE}, 1
    s_mul_i32 s{T0}, s{T0}, 40960
    v_add_u32 v10, s{T0}, v10
    s_lshl_b32 s{T0}, s{S_WAVE}, 5
    s_add_u32 s{T0}, s{T0}, {L_RED}
    v_mov_b32 v18, s{T0}
    v_and_b32 v19, 3, v1
    v_lshlrev_b32 v19, 2, v19
    v_add_u32 v19, {L_RED}, v19
    v_cmp_gt_u32 vcc, 128, v3
    s_and_b32 s{T0}, s{S_WAVE}, 1
    s_lshl_b32 s{T1}, s{T0}, 10
    s_add_u32 s{T1}, s{T1}, {L_RED4}
    v_lshl_add_u32 v22, v0, 4, s{T1}
    s_lshl_b32 s{T1}, s{S_J}, 1
    s_add_u32 s{T0}, s{T0}, s{T1}
    s_lshl_b32 s{T0}, s{T0}, 8
    s_add_u32 s{T0}, s{T0}, {W_E6}
    v_lshlrev_b32 v23, 6, v1
    v_lshl_add_u32 v23, v2, 4, v23
    v_add_u32 v23, s{T0}, v23
    s_mov_b64 {sp(S_M)}, vcc
    v_cmp_gt_u32 vcc, 12, v1
    v_and_b32 v24, 3, v1
    s_nop 0
    v_cndmask_b32 v24, v24, v1, vcc
    v_mul_u32_u24 v8, {A12P}, v24
    v_lshlrev_b32 v24, 4, v2
    v_add_u32 v8, v8, v24
    v_add_u32 v8, {L_A12}, v8
    ''')
    CA.wait(13, 4, sleep=1)
    prewt(CA, 20, 10, 2048, 1024, 160)
    loads = [f'global_load_dwordx4 v[{64+4*i}:{67+4*i}], v{12+i}, {sp(P_WS)} sc1' for i in range(6)]
    poll2(CA, loads, [(66 + 4 * i, 67 + 4 * i) for i in range(6)], -32)
    CA.stamp(14)
    for ci, (ar, off) in enumerate([(20, 0), (20, 512), (21, 0)]):
        for half in range(2):
            o = 4 * ci + 2 * half
            unpack(CA, 90, 91, 64 + 4 * ci + half)
            unpack(CA, 92, 93, 76 + 4 * ci + half)
            CA(f'''
            v_pk_add_f32 v[90:91], v[90:91], v[92:93]
            v_pk_fma_f32 v[90:91], v[90:91], v[{120+o}:{121+o}], v[{108+o}:{109+o}]
            v_cvt_pk_bf16_f32 v90, v90, v91
            ''')
            unpack(CA, 132 + o, 133 + o, 90)
            CA(f'''
            v_pk_mul_f32 v[90:91], v[{132+o}:{133+o}], v[{96+o}:{97+o}]
            v_cvt_pk_bf16_f32 v90, v90, v91
            ds_write_b16 v{ar}, v90 offset:{off + (2*half)*A12P}
            ds_write_b16_d16_hi v{ar}, v90 offset:{off + (2*half+1)*A12P}
            ''')
    CA.signal(14)
    for b_ in range(4):
        CA(f'''
        v_cndmask_b32 v90, 0, v{140+b_}, {sp(S_M)}
        v_add_f32 v{144+b_}, v{132+b_}, v{136+b_}
        v_add_f32 v{144+b_}, v{144+b_}, v90
        v_mul_f32 v{148+b_}, v{132+b_}, v{132+b_}
        v_fmac_f32 v{148+b_}, v{136+b_}, v{136+b_}
        v_fmac_f32 v{148+b_}, v90, v90
        ''')
    for m in ('quad_perm:[1,0,3,2]', 'quad_perm:[2,3,0,1]', 'row_half_mirror', 'row_mirror'):
        for r in range(8):
            CA('v_add_f32_dpp v%d, v%d, v%d %s row_mask:0xf bank_mask:0xf' % (144 + r, 144 + r, 144 + r, m))
    for r in range(8): CA(f'v_mov_b32 v{152+r}, v{144+r}')
    for r in range(8): CA(f'v_permlane16_swap_b32 v{144+r}, v{152+r}')
    for r in range(8): CA(f'v_add_f32 v{144+r}, v{144+r}, v{152+r}')
    for r in range(8): CA(f'v_mov_b32 v{152+r}, v{144+r}')
    for r in range(8): CA(f'v_permlane32_swap_b32 v{144+r}, v{152+r}')
    for r in range(8): CA(f'v_add_f32 v{144+r}, v{144+r}, v{152+r}')
    exec_set(CA, '1')
    CA('ds_write_b128 v18, v[144:147]\nds_write_b128 v18, v[148:151] offset:16')
    exec_restore(CA)
    CA.signal(12)
    CA.wait(14, 4)
    CA('s_waitcnt vmcnt(0)')
    gemv3(CA, 20, 8, 160, 64, ACC, swap=True)
    CA.wait(12, 4)
    for w in range(4):
        CA(f'ds_read_b32 v{144+w}, v19 offset:{32*w}')
        CA(f'ds_read_b32 v{148+w}, v19 offset:{32*w+16}')
    CA(f'''
    v_mov_b32_dpp v64, v28 row_shl:4 row_mask:0xf bank_mask:0xf
    v_mov_b32_dpp v65, v29 row_shl:4 row_mask:0xf bank_mask:0xf
    v_mov_b32_dpp v66, v30 row_shl:4 row_mask:0xf bank_mask:0xf
    v_mov_b32_dpp v67, v31 row_shl:4 row_mask:0xf bank_mask:0xf
    v_mov_b32_dpp v68, v28 row_shl:8 row_mask:0xf bank_mask:0xf
    v_mov_b32_dpp v69, v29 row_shl:8 row_mask:0xf bank_mask:0xf
    v_mov_b32_dpp v70, v30 row_shl:8 row_mask:0xf bank_mask:0xf
    v_mov_b32_dpp v71, v31 row_shl:8 row_mask:0xf bank_mask:0xf
    s_mov_b32 s{T1}, {fl(1.0/640)}
    s_waitcnt lgkmcnt(0)
    v_add_f32 v144, v144, v145
    v_add_f32 v146, v146, v147
    v_add_f32 v148, v148, v149
    v_add_f32 v150, v150, v151
    v_add_f32 v144, v144, v146
    v_add_f32 v148, v148, v150
    v_mul_f32 v144, s{T1}, v144              ; mean
    v_mul_f32 v148, s{T1}, v148
    v_fma_f32 v148, -v144, v144, v148
    v_add_f32 v148, {fl(1e-5)}, v148
    v_rsq_f32 v148, v148                     ; rstd
    ''')
    for r in range(4): CA(f'v_fma_f32 v{28+r}, -v144, v{64+r}, v{28+r}')
    for r in range(4): CA(f'v_fma_f32 v{28+r}, v{28+r}, v148, v{68+r}')
    lskip = CA.newl('p6w')
    CA(f'''
    s_cmp_lt_u32 s{S_WAVE}, 2
    s_cbranch_scc1 {lskip}
    ds_write_b128 v22, v[28:31]
    ''')
    CA.signal(15)
    CA('s_branch L_fin')
    CA.label(lskip)
    CA(f'''
    s_mov_b32 s{T0}, {fl(0.044715)}
    s_mov_b32 s{T1}, {fl(-2.0 * 0.7978845608028654 * LOG2E)}
    ''')
    for r in range(4): CA(f'v_mul_f32 v{70+r}, v{28+r}, v{28+r}')
    for r in range(4): CA(f'v_mul_f32 v{70+r}, s{T0}, v{70+r}')
    for r in range(4): CA(f'v_fma_f32 v{70+r}, v{70+r}, v{28+r}, v{28+r}')
    for r in range(4): CA(f'v_mul_f32 v{70+r}, s{T1}, v{70+r}')
    for r in range(4): CA(f'v_exp_f32 v{70+r}, v{70+r}')
    for r in range(4): CA(f'v_add_f32 v{70+r}, 1.0, v{70+r}')
    for r in range(4): CA(f'v_rcp_f32 v{70+r}, v{70+r}')
    for r in range(4): CA(f'v_mul_f32 v{28+r}, v{28+r}, v{70+r}')
    CA.wait(15, 6)
    CA('ds_read_b128 v[64:67], v22\ns_waitcnt lgkmcnt(0)')
    for r in range(4): CA(f'v_mul_f32 v{28+r}, v{28+r}, v{64+r}')
    exec_set(CA, sp(S_M4))
    store_granule(CA, 23)
    exec_restore(CA)
    CA.stamp(15)
    CA('s_branch L_fin')

    CB = Prog(stamps)
    CB.label('L_T5_c')
    red_regs(CB)
    tag_setup(CB)
    CB(f'''
    s_and_b32 s{S_K}, s{S_R}, 1
    s_lshl_b32 s{T0}, s{S_K}, 13
    s_add_u32 s{T0}, s{T0}, {W_E4}
    v_lshl_add_u32 v4, v3, 4, s{T0}
    v_add_u32 v5, 4096, v4
    ''')
    loads = []; checks = []
    for b in range(4):
        for hf in range(2):
            i = 2 * b + hf
            if b: CB(f'v_add_u32 v{10+i}, {16384*b}, v{4+hf}')
            else: CB(f'v_mov_b32 v{10+i}, v{4+hf}')
            loads.append(f'global_load_dwordx4 v[{64+4*i}:{67+4*i}], v{10+i}, {sp(P_WS)} sc1')
            checks += [(66 + 4 * i, 67 + 4 * i)]
    granaddr(CB, 20, 3, 22)
    CB(f'''
    v_add_u32 v20, {L_ACT5}, v20
    s_lshr_b32 s{T0}, s{S_WAVE}, 1
    s_lshl_b32 s{T0}, s{T0}, 11              ; kq*32*64
    ''')
    aaddr(CB, 8, L_ACT5, ACT5P, T0, 9)
    CB(f's_and_b32 s{T4}, s{S_WAVE}, 1')
    trpat(CB, 9, 64, T4, 18, 19)
    CB(f'''
    s_lshr_b32 s{T0}, s{S_WAVE}, 1
    s_lshl_b32 s{T0}, s{T0}, 16              ; kq*32*2048
    v_add_u32 v9, s{T0}, v9
    s_mul_i32 s{T0}, s{S_K}, 640
    s_lshr_b32 s{T1}, s{S_R}, 1
    s_lshl_b32 s{T1}, s{T1}, 5
    s_add_u32 s{T0}, s{T0}, s{T1}
    s_lshl_b32 s{T1}, s{T4}, 4
    s_add_u32 s{T0}, s{T0}, s{T1}
    s_lshl_b32 s{T0}, s{T0}, 4
    s_add_u32 s{T0}, s{T0}, {W_E5}
    v_lshl_add_u32 v21, v1, 4, s{T0}
    ''')
    CB.wait(10, 4, sleep=1)
    prewt(CB, 32, 9, 2048, 1024, 128)
    poll2(CB, loads, checks, 32)
    CB.stamp(11)
    for b in range(4):
        for hf in range(2):
            i = 2 * b + hf
            CB(f'ds_write_b64 v20, v[{64+4*i}:{65+4*i}] offset:{b*ACT5P + hf*2048}')
    CB.signal(11); CB.wait(11, 4)
    CB('s_waitcnt vmcnt(0)')
    CB.stamp(12)
    for hb in range(2):
        for i in range(16): CB('ds_read_b128 %s, v8 offset:%d' % (vr(64 + 4 * i, 4), (16 * hb + i) * 64))
        for i in range(16):
            CB('s_waitcnt lgkmcnt(%d)' % min(15, 15 - i))
            c = '0' if (hb == 0 and i == 0) else vr(ACC, 4)
            CB('v_mfma_f32_16x16x32_bf16 %s, %s, %s, %s' % (vr(ACC, 4), vr(64 + 4 * i, 4), vr(128 + 4 * (16 * hb + i), 4), c))
    pair_reduce(CB, 12, 'L_fin')
    exec_set(CB, '0xffff')
    store_granule(CB, 21)
    exec_restore(CB)
    CB.stamp(13)
    CB('s_branch L_fin')
    CC = Prog(stamps)
    CC.label('L_T7_c')
    CC(f's_cmp_ge_u32 s{S_J}, 20\ns_cbranch_scc1 L_fin')
    red_regs(CC)
    tag_setup(CC)
    CC(f'''
    s_lshl_b32 s{T0}, s{S_J}, 5
    s_and_b32 s{T4}, s{S_WAVE}, 1
    s_lshl_b32 s{T1}, s{T4}, 4
    s_add_u32 s{T0}, s{T0}, s{T1}
    v_add_u32 v5, s{T0}, v1                  ; col
    v_lshlrev_b32 v19, 1, v5
    ''')
    for b in range(4): CC(f'global_load_ushort v{96+b}, v19, {sp(P_X)} offset:{1280*b}')
    CC(f'''
    v_lshlrev_b32 v4, 4, v5
    v_add_u32 v11, {W_E0 + 1280*16}, v4
    v_add_u32 v12, {W_E0 + 3200*16}, v4
    v_add_u32 v13, {W_E5}, v4
    v_add_u32 v14, {W_E5 + 640*16}, v4
    v_add_u32 v5, 256, v3
    v_min_u32 v5, 431, v5
    v_lshrrev_b32 v4, 2, v3
    v_lshlrev_b32 v4, 8, v4
    v_and_b32 v6, 3, v3
    v_lshl_add_u32 v4, v6, 4, v4
    v_add_u32 v4, {W_E6}, v4
    v_lshrrev_b32 v6, 2, v5
    v_lshlrev_b32 v6, 8, v6
    v_and_b32 v7, 3, v5
    v_lshl_add_u32 v6, v7, 4, v6
    v_add_u32 v6, {W_E6}, v6
    ''')
    granaddr(CC, 20, 3, 22); CC(f'v_add_u32 v20, {L_ACT7}, v20')
    granaddr(CC, 21, 5, 22); CC(f'v_add_u32 v21, {L_ACT7}, v21')
    CC(f'''
    s_lshr_b32 s{T0}, s{S_WAVE}, 1
    s_mul_i32 s{T0}, s{T0}, {27*64}
    ''')
    aaddr(CC, 8, L_ACT7, ACT7P, T0, 9)
    trpat(CC, 9, 64, T4, 16, 17)
    CC(f'''
    s_lshr_b32 s{T0}, s{S_WAVE}, 1
    s_mul_i32 s{T0}, s{T0}, {27*2048}
    v_add_u32 v9, s{T0}, v9
    ''')
    CC.wait(10, 4, sleep=1)
    prewt(CC, 27, 9, 2048, 1024, 128)
    poll_loop(CC, [f'global_load_dwordx4 v[108:111], v11, {sp(P_WS)} sc1', f'global_load_dwordx4 v[240:243], v12, {sp(P_WS)} sc1',
                   f'global_load_dwordx4 v[116:119], v13, {sp(P_WS)} sc1', f'global_load_dwordx4 v[120:123], v14, {sp(P_WS)} sc1'],
              [(110, 111), (242, 243), (118, 119), (122, 123)])
    for half in range(2):
        unpack(CC, 90, 91, 116 + half)
        unpack(CC, 92, 93, 120 + half)
        unpack(CC, 94, 95, 108 + half)
        CC(f'''
        v_add_f32 v90, v90, v92
        v_add_f32 v91, v91, v93
        v_lshlrev_b32 v92, 16, v{96+2*half}
        v_lshlrev_b32 v93, 16, v{97+2*half}
        v_fma_f32 v90, v90, v94, v92
        v_fma_f32 v91, v91, v95, v93
        v_cvt_pk_bf16_f32 v90, v90, v91
        ''')
        unpack(CC, 40 + 2 * half, 41 + 2 * half, 90)
        unpack(CC, 44 + 2 * half, 45 + 2 * half, 240 + half)
    loads = []; checks = []
    for b in range(4):
        for hf in range(2):
            i = 2 * b + hf
            loads.append(f'global_load_dwordx4 v[{64+4*i}:{67+4*i}], v{4 if hf == 0 else 6}, {sp(P_WS)} offset:{64*b} sc1')
            checks += [(66 + 4 * i, 67 + 4 * i)]
    poll2(CC, loads, checks, 32)
    CC.stamp(11)
    for b in range(4):
        CC(f'ds_write_b64 v20, v[{64+8*b}:{65+8*b}] offset:{b*ACT7P}')
        CC(f'ds_write_b64 v21, v[{68+8*b}:{69+8*b}] offset:{b*ACT7P}')
    CC.signal(11); CC.wait(11, 4)
    CC('s_waitcnt vmcnt(0)')
    CC.stamp(12)
    for (s0, n) in ((0, 14), (14, 13)):
        for i in range(n): CC('ds_read_b128 %s, v8 offset:%d' % (vr(64 + 4 * i, 4), (s0 + i) * 64))
        for i in range(n):
            CC('s_waitcnt lgkmcnt(%d)' % min(15, n - 1 - i))
            c = '0' if (s0 == 0 and i == 0) else vr(ACC, 4)
            CC('v_mfma_f32_16x16x32_bf16 %s, %s, %s, %s' % (vr(ACC, 4), vr(64 + 4 * i, 4), vr(128 + 4 * (s0 + i), 4), c))
    pair_reduce(CC, 12, 'L_fin')
    exec_set(CC, '0xffff')
    CC(f'''
    v_pk_fma_f32 v[28:29], v[28:29], v[44:45], v[40:41]
    v_pk_fma_f32 v[30:31], v[30:31], v[46:47], v[42:43]
    v_cvt_pk_bf16_f32 v64, v28, v29
    v_cvt_pk_bf16_f32 v65, v30, v31
    global_store_short v19, v64, {sp(P_OUT)}
    global_store_short_d16_hi v19, v64, {sp(P_OUT)} offset:1280
    global_store_short v19, v65, {sp(P_OUT)} offset:2560
    global_store_short_d16_hi v19, v65, {sp(P_OUT)} offset:3840
    ''')
    exec_restore(CC)
    lskip = CC.newl('p7f')
    CC(f'''
    s_cmp_lg_u32 s{S_J}, 0
    s_cbranch_scc1 {lskip}
    s_cmp_lg_u32 s{S_WAVE}, 0
    s_cbranch_scc1 {lskip}
    v_mov_b32 v4, 0
    v_mov_b32 v5, s{S_TAG}
    ''')
    exec_set(CC, '1')
    CC(f'global_store_dword v4, v5, {sp(P_WS)} sc1')
    exec_restore(CC)
    CC.label(lskip)
    CC.stamp(13)
    F = Prog(stamps)
    F.label('L_fin')
    if stamps:
        F(f'''
        s_memrealtime {sp(S_STAMP + 2*15)}
        s_waitcnt lgkmcnt(0)
        s_lshl_b32 s{T0}, s2, 10
        s_lshl_b32 s{T1}, s{S_WAVE}, 7
        s_add_u32 s{T0}, s{T0}, s{T1}
        s_add_u32 s{T0}, s{T0}, {W_STAMP}
        v_mov_b32 v4, s{T0}
        s_mov_b64 exec, 1
        ''')
        for i in range(16):
            F(f'v_mov_b32 v5, s{S_STAMP+2*i}\nglobal_store_dword v4, v5, {sp(P_WS)} offset:{4*i}')
        if DBGOUT:
            sel = [(0, 0), (248, 0), (16 * 8, 3), (16 * 8, 4), (24 * 8, 5), (24 * 8, 6), (0, 7), (0, 9), (0, 10), (0, 11), (0, 13), (27 * 8, 13), (16 * 8, 14), (16 * 8, 15), (24 * 8, 13), (28 * 8, 2)]
            F(f's_cmp_lg_u32 s{S_WAVE}, 0\ns_cbranch_scc1 L_dbgdone\nv_mov_b32 v4, 0')
            for slot, (wg, si) in enumerate(sel):
                lab = F.newl('dg')
                F(f's_cmp_lg_u32 s2, {wg}\ns_cbranch_scc1 {lab}\nv_mov_b32 v5, s{S_STAMP+2*si}\nglobal_store_dword v4, v5, {sp(P_DBG)} offset:{4*slot}')
                F.label(lab)
            F.label('L_dbgdone')
    F('s_endpgm')
    body = (H.text() + FL.text() + FC.text() + AL.text() + AC.text() + CB.text() + CC.text() + F.text() + 'L_codeend:\n') if ORDER else (H.text() + AC.text() + FC.text() + CB.text() + CC.text() + F.text() + AL.text() + FL.text() + 'L_codeend:\n')
    return body

HEADER = open('adaLN_cond__compressed_kv_cla__glu_gated_geglu__decode.s.ref').read().split('; @launch')[0]

def full(stamps=False):
    body = gen(stamps)
    return (HEADER + f'; @launch grid=(256,1,1) block=(512,1,1) lds={LDS_BYTES}\n' +
            f'''.amdgcn_target "amdgcn-amd-amdhsa--gfx950"
.text
.globl {NAME}
.p2align 8
.type {NAME},@function
{NAME}:
{body}L_end:
    s_endpgm
.section .rodata,"a"
.p2align 6
.amdhsa_kernel {NAME}
  .amdhsa_next_free_vgpr 256
  .amdhsa_next_free_sgpr 102
  .amdhsa_accum_offset 256
  .amdhsa_group_segment_fixed_size 0
  .amdhsa_kernarg_size 120
  .amdhsa_user_sgpr_count 2
  .amdhsa_user_sgpr_kernarg_segment_ptr 1
  .amdhsa_system_sgpr_workgroup_id_x 1
.end_amdhsa_kernel
''')

if __name__ == '__main__':
    stamps = len(sys.argv) > 2 and sys.argv[2] == 'stamps'
    open(sys.argv[1], 'w').write(full(stamps))
```

```python
import sys, struct

NAME = 'adaLN_cond__compressed_kv_cla__glu_gated_geglu__decode_kernel'

P_X, P_CKV, P_WQ, P_WUK, P_WUV, P_WO, P_BX, P_WG = 4, 6, 8, 10, 12, 14, 16, 18
P_WU, P_WD, P_C, P_WMOD, P_OUT, P_DBG, P_WS = 20, 22, 24, 26, 28, 30, 32
S_WAVE, S_XCD, S_IDX, S_TAG, S_TAG2, S_EP = 3, 34, 35, 36, 37, 38
S_STRIP = 39
S_LW = 40
S_J5 = 41
T0, T1, T2, T3, T4, T5 = 42, 43, 44, 45, 46, 47
S_EX = 48
S_CNT = 50
S_R = 51
S_M = 52
S_J = 54
S_K = 55
S_CB = 56
S_W = 59
S_STAMP = 60
S_SC = 92
S_EX2 = 100
S_S0 = 2
S_S0 = 0

def sp(r): return 's[%d:%d]' % (r, r + 1)
def vr(r, n=1): return 'v%d' % r if n == 1 else 'v[%d:%d]' % (r, r + n - 1)

L_CKV = 0
L_QA = 131072
L_PB = 147456
L_REDA = 155648
L_RED4 = 131072
L_CC = 147456
L_WUV = 0
L_WUK = 81920
L_WM = 0
L_WQ = 20480
L_WG6 = 0; L_WU6 = 40960
L_WMN = 0
L_WO = 0
L_WD = 0
L_ACT5 = 131072; ACT5P = 4160
L_ACT7 = 131072; ACT7P = 3648
L_ACT = 151552; ACTP = 1344
L_XNT = 156928
L_RED = 162048
L_CNT = 163072
LDS_BYTES = 163840

W_E0 = 0x1000
W_E0B = 0x11000
W_E1 = 0x20000
W_E2 = 0x40000
W_F3 = 0x80000
W_ST3 = 0x90000
W_E3 = 0x100000
W_E4 = 0x800000
W_E5 = 0x820000
W_E6 = 0x830000
W_STAMP = 0x900000

SPIN_CAP = 1 << 18
import os
NT = os.environ.get('NT', 'nt')
POLL2 = int(os.environ.get('POLL2', '0'))
PSLEEP = int(os.environ.get('PSLEEP', '0'))
DEPTH = int(os.environ.get('DEPTH', '4'))
TAILWAIT = int(os.environ.get('TAILWAIT', '1'))
TDEPTH = int(os.environ.get('TDEPTH', '16'))
LOG2E = 1.4426950408889634
M4 = '0x000f000f'

def f2u(x): return struct.unpack('<I', struct.pack('<f', x))[0]
def fl(x): return '0x%08x' % f2u(x)

UID = [0]
class Prog:
    def __init__(self, stamps):
        self.o = []; self.stamps = stamps
    def __call__(self, s):
        for line in s.strip('\n').split('\n'):
            line = line.strip()
            if line: self.o.append('    ' + line)
    def label(self, l): self.o.append(l + ':')
    def signal(self, k):
        self(f's_mov_b64 {sp(S_EX2)}, exec\ns_mov_b64 exec, 1\nds_add_u32 v61, v62 offset:{4*k}\ns_mov_b64 exec, {sp(S_EX2)}')
    def wait(self, k, target, sleep=0):
        l0 = self.newl('lw')
        self.label(l0)
        if sleep: self(f's_sleep {sleep}')
        self(f'''
        ds_read_b32 v63, v61 offset:{4*k}
        s_waitcnt lgkmcnt(0)
        v_readfirstlane_b32 s{S_W}, v63
        s_cmp_lt_u32 s{S_W}, {target}
        s_cbranch_scc1 {l0}
        ''')
    def newl(self, p):
        UID[0] += 1; return 'L_%s_%d' % (p, UID[0])
    def stamp(self, i):
        if self.stamps: self('s_memrealtime %s' % sp(S_STAMP + 2 * i))
    def text(self): return '\n'.join(self.o) + '\n'

def rowreduce(p, v, t, op='add'):
    o = 'v_%s_f32' % op
    p(f'''
    v_mov_b32 v{t}, v{v}
    s_nop 1
    v_permlane16_swap_b32 v{v}, v{t}
    s_nop 1
    {o} v{v}, v{v}, v{t}
    v_mov_b32 v{t}, v{v}
    s_nop 1
    v_permlane32_swap_b32 v{v}, v{t}
    s_nop 1
    {o} v{v}, v{v}, v{t}
    ''')

def allreduce(p, v, t, op='add'):
    o = 'v_%s_f32' % op
    for m in ('quad_perm:[1,0,3,2]', 'quad_perm:[2,3,0,1]', 'row_half_mirror', 'row_mirror'):
        p('s_nop 1')
        p('%s_dpp v%d, v%d, v%d %s row_mask:0xf bank_mask:0xf' % (o, v, v, v, m))
    p('s_nop 0')
    rowreduce(p, v, t, op)

def unpack(p, dlo, dhi, src):
    p('v_lshlrev_b32 v%d, 16, v%d' % (dlo, src))
    p('v_and_b32 v%d, 0xffff0000, v%d' % (dhi, src))

def poll_loop(p, loads, checks):
    l0 = p.newl('poll'); l1 = p.newl('polld')
    p('s_mov_b32 s%d, 0' % S_CNT)
    p.label(l0)
    for l in loads: p(l)
    p('s_add_u32 s%d, s%d, 1' % (S_CNT, S_CNT))
    p('s_waitcnt vmcnt(0)')
    first = True
    for (a, b) in checks:
        if first:
            p(f'v_xor_b32 v58, s{S_TAG}, v{a}')
            if b is not None: p(f'v_xor_b32 v59, s{S_TAG2}, v{b}')
            else: p('v_mov_b32 v59, 0')
            first = False
        else:
            p(f'v_xor_b32 v57, s{S_TAG}, v{a}')
            if b is not None:
                p(f'v_xor_b32 v56, s{S_TAG2}, v{b}')
                p('v_or3_b32 v58, v58, v57, v56')
            else:
                p('v_or_b32 v58, v58, v57')
    p('v_or_b32 v58, v58, v59')
    p('v_cmp_ne_u32 vcc, 0, v58')
    p(f's_cmp_ge_u32 s{S_CNT}, {SPIN_CAP}')
    p('s_cbranch_scc1 %s' % l1)
    if PSLEEP:
        p('s_cbranch_vccz %s' % l1)
        p(f's_sleep {PSLEEP}')
        p('s_branch %s' % l0)
    else:
        p('s_cbranch_vccnz %s' % l0)
    p.label(l1)

def gemv_steps(p, nsteps, vA, vB, acc, regs, first=True, swap=False, strideA=64, strideB=1024, offA=0, offB=0, halfB=512):
    for i in range(nsteps):
        a = regs + 8 * i; b = a + 4
        assert offB + i * strideB + halfB < 65536 and offA + i * strideA < 65536
        p('ds_read_b128 %s, v%d offset:%d' % (vr(a, 4), vA, offA + i * strideA))
        p('ds_read_b64_tr_b16 %s, v%d offset:%d' % (vr(b, 2), vB, offB + i * strideB))
        p('ds_read_b64_tr_b16 %s, v%d offset:%d' % (vr(b + 2, 2), vB, offB + i * strideB + halfB))
    for i in range(nsteps):
        a = regs + 8 * i; b = a + 4
        p('s_waitcnt lgkmcnt(%d)' % min(15, 3 * (nsteps - 1 - i)))
        c = '0' if (first and i == 0) else vr(acc, 4)
        x, y = (vr(b, 4), vr(a, 4)) if swap else (vr(a, 4), vr(b, 4))
        p('v_mfma_f32_16x16x32_bf16 %s, %s, %s, %s' % (vr(acc, 4), x, y, c))

def load_seq(p, ptr, s_off, step, count, voffs, s_lds=None, lds_const=0, dst=None, skip_last_if=None, throttle=True):
    p(f's_add_u32 s{T0}, s{ptr}, s{s_off}\ns_addc_u32 s{T1}, s{ptr+1}, 0')
    if s_lds is not None: p(f's_add_u32 m0, s{s_lds}, {lds_const}')
    for j in range(count):
        lab = None
        if skip_last_if and j == count - 1:
            lab = p.newl('dskip')
            p(skip_last_if); p('s_cbranch_scc1 %s' % lab)
        if s_lds is not None:
            p('s_nop 0')
            p('global_load_lds_dwordx4 v%d, %s %s' % (voffs[j % len(voffs)], sp(T0), NT))
        else:
            if TDEPTH and throttle and j >= TDEPTH: p(f's_waitcnt vmcnt({TDEPTH-1})')
            p('global_load_dwordx4 %s, v%d, %s %s' % (vr(dst(j), 4), voffs[j % len(voffs)], sp(T0), NT))
        if lab: p.label(lab)
        if j + 1 < count:
            p(f's_add_u32 s{T0}, s{T0}, {step}\ns_addc_u32 s{T1}, s{T1}, 0')
            if s_lds is not None: p('s_add_u32 m0, m0, 1024')

def ckv_f_const(j):
    k2 = j & 1; k3 = (j >> 1) & 1
    return (((k2 ^ k3) << 3) | k3)

def permaddr(p, dst, m, t1, t2):
    p(f'''
    v_and_b32 v{dst}, 0xffffffe0, v{m}
    v_lshlrev_b32 v{dst}, 1, v{dst}
    v_bfe_u32 v{t1}, v{m}, 2, 2
    v_lshlrev_b32 v{t1}, 4, v{t1}
    v_bfe_u32 v{t2}, v{m}, 4, 1
    v_lshlrev_b32 v{t2}, 3, v{t2}
    v_add3_u32 v{dst}, v{dst}, v{t1}, v{t2}
    v_and_b32 v{t1}, 3, v{m}
    v_lshlrev_b32 v{t1}, 1, v{t1}
    v_add_u32 v{dst}, v{dst}, v{t1}
    ''')

def granaddr(p, dst, gi, t1):
    p(f'''
    v_lshrrev_b32 v{dst}, 3, v{gi}
    v_lshlrev_b32 v{dst}, 6, v{dst}
    v_and_b32 v{t1}, 3, v{gi}
    v_lshl_add_u32 v{dst}, v{t1}, 4, v{dst}
    v_bfe_u32 v{t1}, v{gi}, 2, 1
    v_lshl_add_u32 v{dst}, v{t1}, 3, v{dst}
    ''')

def exec_set(p, mask): p(f's_mov_b64 {sp(S_EX)}, exec\ns_mov_b64 exec, {mask}')
def exec_restore(p): p(f's_mov_b64 exec, {sp(S_EX)}')
S_M4 = 96

V_REDR = 26
V_REDW = 27
V_REDR2 = 22
V_REDW2 = 23
ACC = 28

def red_write(p, rowfmt=False):
    p('s_nop 7')
    exec_set(p, sp(S_M4) if rowfmt else '0xffff')
    p(f'ds_write_b128 v{V_REDW2 if rowfmt else V_REDW}, v[28:31]')
    exec_restore(p)

def red_sum(p, rowfmt=False):
    a = V_REDR2 if rowfmt else V_REDR
    p(f'''
    ds_read_b128 v[28:31], v{a}
    ds_read_b128 v[64:67], v{a} offset:256
    ds_read_b128 v[68:71], v{a} offset:512
    ds_read_b128 v[72:75], v{a} offset:768
    s_waitcnt lgkmcnt(2)
    v_pk_add_f32 v[28:29], v[28:29], v[64:65]
    v_pk_add_f32 v[30:31], v[30:31], v[66:67]
    s_waitcnt lgkmcnt(0)
    v_pk_add_f32 v[68:69], v[68:69], v[72:73]
    v_pk_add_f32 v[70:71], v[70:71], v[74:75]
    v_pk_add_f32 v[28:29], v[28:29], v[68:69]
    v_pk_add_f32 v[30:31], v[30:31], v[70:71]
    ''')

def store_granule(p, vaddr):
    p(f'''
    v_cvt_pk_bf16_f32 v64, v28, v29
    v_cvt_pk_bf16_f32 v65, v30, v31
    v_mov_b32 v66, s{S_TAG}
    v_mov_b32 v67, s{S_TAG2}
    global_store_dwordx4 v{vaddr}, v[64:67], {sp(P_WS)} sc1
    ''')


def gemv2(p, nsteps, vA, vB, strideB, halfB, acc, swap=False, strideA=64, offA=0, offB=0, first=True, banks=(64, 160), batch=12, vtmp=(56, 57)):
    maxoff = offB + (nsteps - 1) * strideB + halfB
    nb = maxoff // 65536 + 1
    bases = [vB]
    for k in range(1, nb):
        p(f'v_add_u32 v{vtmp[k-1]}, {k*65536}, v{vB}')
        bases.append(vtmp[k - 1])
    def rd(i):
        r = banks[(i // batch) % 2] + 8 * (i % batch)
        p('ds_read_b128 %s, v%d offset:%d' % (vr(r, 4), vA, offA + i * strideA))
        for h, o in enumerate((offB + i * strideB, offB + i * strideB + halfB)):
            p('ds_read_b64_tr_b16 %s, v%d offset:%d' % (vr(r + 4 + 2 * h, 2), bases[o // 65536], o % 65536))
    issued = 0
    def issue_upto(n):
        nonlocal issued
        while issued < min(n, nsteps):
            rd(issued); issued += 1
    issue_upto(2 * batch)
    for i in range(nsteps):
        r = banks[(i // batch) % 2] + 8 * (i % batch)
        p('s_waitcnt lgkmcnt(%d)' % min(15, 3 * (issued - 1 - i)))
        c = '0' if (first and i == 0) else vr(acc, 4)
        x, y = (vr(r + 4, 4), vr(r, 4)) if swap else (vr(r, 4), vr(r + 4, 4))
        p('v_mfma_f32_16x16x32_bf16 %s, %s, %s, %s' % (vr(acc, 4), x, y, c))
        if (i + 1) % batch == 0: issue_upto(i + 1 + 2 * batch)

def trpat(p, dst, pitch, s_tile, t1, t2):
    if pitch == 64:
        p(f'''
        v_lshrrev_b32 v{t1}, 2, v1
        v_lshl_add_u32 v{t1}, v2, 2, v{t1}          ; row = 4g+r
        v_lshlrev_b32 v{dst}, 6, v{t1}
        v_bfe_u32 v{t1}, v1, 1, 1                   ; c4>>1
        v_and_b32 v{t2}, 1, v2
        v_lshlrev_b32 v{t2}, 1, v{t2}
        v_xor_b32 v{t1}, v{t1}, v{t2}
        s_lshl_b32 s{T5}, s{s_tile}, 1
        v_xor_b32 v{t1}, s{T5}, v{t1}
        v_lshl_add_u32 v{dst}, v{t1}, 4, v{dst}
        v_and_b32 v{t1}, 1, v1
        v_lshl_add_u32 v{dst}, v{t1}, 3, v{dst}
        ''')
    else:
        p(f'''
        v_lshrrev_b32 v{t1}, 2, v1
        v_lshl_add_u32 v{t1}, v2, 2, v{t1}          ; row
        v_lshlrev_b32 v{dst}, 7, v{t1}
        v_bfe_u32 v{t1}, v{t1}, 1, 2                ; (row>>1)&3
        v_lshlrev_b32 v{t1}, 1, v{t1}
        v_bfe_u32 v{t2}, v1, 1, 1
        v_xor_b32 v{t1}, v{t1}, v{t2}
        s_lshl_b32 s{T5}, s{s_tile}, 1
        v_xor_b32 v{t1}, s{T5}, v{t1}
        v_lshl_add_u32 v{dst}, v{t1}, 4, v{dst}
        v_and_b32 v{t1}, 1, v1
        v_lshl_add_u32 v{dst}, v{t1}, 3, v{dst}
        ''')

def dma_voff(p, dst, seg, pitch, t1, t2):
    if seg == 64:
        p(f'''
        v_lshrrev_b32 v{t1}, 2, v0                  ; row
        v_and_b32 v{t2}, 3, v0
        v_bfe_u32 v{dst}, v0, 4, 1
        v_lshlrev_b32 v{dst}, 1, v{dst}
        v_xor_b32 v{t2}, v{t2}, v{dst}
        v_lshlrev_b32 v{t2}, 4, v{t2}
        s_mov_b32 s{T5}, {pitch}
        v_mul_lo_u32 v{dst}, v{t1}, s{T5}
        v_add_u32 v{dst}, v{dst}, v{t2}
        ''')
    else:
        p(f'''
        v_lshrrev_b32 v{t1}, 3, v0                  ; row
        v_and_b32 v{t2}, 7, v0
        v_bfe_u32 v{dst}, v0, 4, 2                  ; (row>>1)&3
        v_lshlrev_b32 v{dst}, 1, v{dst}
        v_xor_b32 v{t2}, v{t2}, v{dst}
        v_lshlrev_b32 v{t2}, 4, v{t2}
        s_mov_b32 s{T5}, {pitch}
        v_mul_lo_u32 v{dst}, v{t1}, s{T5}
        v_add_u32 v{dst}, v{dst}, v{t2}
        ''')

def act_prep(C, do_silu=True, do_ln=True, pre=None, cnt=0):
    C(f'''
    s_mul_i32 s{T0}, s{S_WAVE}, 1280
    v_lshlrev_b32 v4, 2, v0
    v_add_u32 v4, s{T0}, v4
    ''')
    if do_silu:
        for i in range(5): C(f'global_load_dword v{10+i}, v4, {sp(P_C)} offset:{256*i}')
    if do_ln:
        for i in range(5): C(f'global_load_dword v{15+i}, v4, {sp(P_X)} offset:{256*i}')
    C(f'''
    v_lshlrev_b32 v6, 6, v2
    v_bfe_u32 v7, v0, 1, 2
    v_lshlrev_b32 v7, 4, v7
    v_bfe_u32 v8, v0, 3, 1
    v_lshlrev_b32 v8, 3, v8
    v_and_b32 v9, 1, v0
    v_lshlrev_b32 v9, 2, v9
    v_add3_u32 v6, v6, v7, v8
    s_mul_i32 s{T0}, s{S_WAVE}, {ACTP}
    s_add_u32 s{T0}, s{T0}, {L_ACT}
    v_add3_u32 v6, v6, v9, s{T0}
    s_mov_b32 s{T1}, {fl(-LOG2E)}
    ''')
    if do_silu:
        C(f's_waitcnt vmcnt({5 if do_ln else 0})')
        for i in range(5):
            unpack(C, 20, 21, 10 + i)
            C(f'''
            v_mul_f32 v22, s{T1}, v20
            v_mul_f32 v23, s{T1}, v21
            v_exp_f32 v22, v22
            v_exp_f32 v23, v23
            s_nop 0
            v_add_f32 v22, 1.0, v22
            v_add_f32 v23, 1.0, v23
            v_rcp_f32 v22, v22
            v_rcp_f32 v23, v23
            s_nop 0
            v_mul_f32 v20, v20, v22
            v_mul_f32 v21, v21, v23
            v_cvt_pk_bf16_f32 v20, v20, v21
            ds_write_b32 v6, v20 offset:{256*i}
            ''')
        C.signal(cnt)
    if do_ln:
        C('s_waitcnt vmcnt(0)')
        for i in range(5): unpack(C, 40 + 2 * i, 41 + 2 * i, 15 + i)
        C('v_add_f32 v20, v40, v41\nv_mul_f32 v21, v40, v40\nv_fmac_f32 v21, v41, v41')
        for i in range(2, 10):
            C(f'v_add_f32 v20, v20, v{40+i}\nv_fmac_f32 v21, v{40+i}, v{40+i}')
        allreduce(C, 20, 18); allreduce(C, 21, 18)
        C(f'''
        s_mov_b32 s{T1}, {fl(1.0/640)}
        v_mul_f32 v20, s{T1}, v20
        v_mul_f32 v21, s{T1}, v21
        v_fma_f32 v21, -v20, v20, v21
        v_add_f32 v21, {fl(1e-5)}, v21
        v_rsq_f32 v21, v21
        s_lshl_b32 s{T0}, s{S_WAVE}, 1
        s_add_u32 s{T0}, s{T0}, {L_XNT}
        v_lshlrev_b32 v7, 4, v0
        v_add_u32 v7, s{T0}, v7
        ''')
        for i in range(5):
            C(f'''
            v_sub_f32 v18, v{40+2*i}, v20
            v_sub_f32 v19, v{41+2*i}, v20
            v_mul_f32 v18, v18, v21
            v_mul_f32 v19, v19, v21
            v_cvt_pk_bf16_f32 v18, v18, v19
            ds_write_b16 v7, v18 offset:{1024*i}
            ds_write_b16_d16_hi v7, v18 offset:{1024*i+8}
            ''')
        C.signal(15)

def aaddr(C, dst, lbase, pitch, s_extra, t1):
    C(f'''
    v_and_b32 v{dst}, 3, v0
    v_mul_u32_u24 v{dst}, {pitch}, v{dst}
    v_lshlrev_b32 v{t1}, 4, v2
    s_add_u32 s{T5}, s{s_extra}, {lbase}
    v_add3_u32 v{dst}, v{dst}, v{t1}, s{T5}
    ''')

def tag_setup(C):
    C(f'''
    s_waitcnt lgkmcnt(0)
    s_add_u32 s{S_TAG}, s{S_EP}, 1
    s_not_b32 s{S_TAG2}, s{S_TAG}
    ''')

def pair_reduce(C, cnt, lab_done):
    lk = C.newl('pr')
    C(f's_cmp_lt_u32 s{S_WAVE}, 2\ns_cbranch_scc1 {lk}')
    red_write(C)
    C.signal(cnt)
    C(f's_branch {lab_done}')
    C.label(lk)
    C.wait(cnt, 2)
    C(f'''
    ds_read_b128 v[64:67], v27 offset:512
    s_waitcnt lgkmcnt(0)
    v_pk_add_f32 v[28:29], v[28:29], v[64:65]
    v_pk_add_f32 v[30:31], v[30:31], v[66:67]
    ''')

def red_regs(C):
    C(f'''
    v_lshlrev_b32 v26, 4, v1
    v_add_u32 v26, {L_RED}, v26
    s_lshl_b32 s{T0}, s{S_WAVE}, 8
    v_add_u32 v27, s{T0}, v26
    ''')

def prewt(p, nsteps, vB, strideB, halfB, wbase, vtmp=(56, 57)):
    maxoff = (nsteps - 1) * strideB + halfB
    nb = maxoff // 65536 + 1
    bases = [vB]
    for k in range(1, nb):
        p(f'v_add_u32 v{vtmp[k-1]}, {k*65536}, v{vB}')
        bases.append(vtmp[k - 1])
    for i in range(nsteps):
        for hh, o in enumerate((i * strideB, i * strideB + halfB)):
            p('ds_read_b64_tr_b16 %s, v%d offset:%d' % (vr(wbase + 4 * i + 2 * hh, 2), bases[o // 65536], o % 65536))
    p('s_waitcnt lgkmcnt(0)')

def gemv3(p, nsteps, vA, wbase, abase, acc, swap=False, strideA=64, nacc=1, acc2=None):
    for i in range(nsteps):
        p('ds_read_b128 %s, v%d offset:%d' % (vr(abase + 4 * i, 4), vA, i * strideA))
    for i in range(nsteps):
        p('s_waitcnt lgkmcnt(%d)' % min(15, nsteps - 1 - i))
        a = acc if (acc2 is None or i % 2 == 0) else acc2
        c = '0' if i < (1 if acc2 is None else 2) else vr(a, 4)
        x, y = (vr(wbase + 4 * i, 4), vr(abase + 4 * i, 4)) if swap else (vr(abase + 4 * i, 4), vr(wbase + 4 * i, 4))
        p('v_mfma_f32_16x16x32_bf16 %s, %s, %s, %s' % (vr(a, 4), x, y, c))

import re as _re
def _chk(p, checks, delta):
    first = True
    for (a, b) in checks:
        a += delta; b = None if b is None else b + delta
        if first:
            p(f'v_xor_b32 v58, s{S_TAG}, v{a}')
            if b is not None: p(f'v_xor_b32 v59, s{S_TAG2}, v{b}')
            else: p('v_mov_b32 v59, 0')
            first = False
        else:
            p(f'v_xor_b32 v57, s{S_TAG}, v{a}')
            if b is not None:
                p(f'v_xor_b32 v56, s{S_TAG2}, v{b}')
                p('v_or3_b32 v58, v58, v57, v56')
            else:
                p('v_or_b32 v58, v58, v57')
    p('v_or_b32 v58, v58, v59')
    p('v_cmp_ne_u32 vcc, 0, v58')

def poll2(p, loads, checks, delta, payload=2):
    if not POLL2: return poll_loop(p, loads, checks)
    def shift(l):
        m = _re.match(r'(global_load_dword\w*) v\[(\d+):(\d+)\](.*)', l)
        return '%s v[%d:%d]%s' % (m.group(1), int(m.group(2)) + delta, int(m.group(3)) + delta, m.group(4))
    loadsB = [shift(l) for l in loads]
    n = len(loads)
    l0 = p.newl('p2'); lA = p.newl('p2a'); lB = p.newl('p2b');
    p('s_mov_b32 s%d, 0' % S_CNT)
    for l in loads: p(l)
    p.label(l0)
    for l in loadsB: p(l)
    p('s_add_u32 s%d, s%d, 1' % (S_CNT, S_CNT))
    p(f's_waitcnt vmcnt({n})')
    _chk(p, checks, 0)
    p(f's_cmp_ge_u32 s{S_CNT}, {SPIN_CAP}')
    p('s_cbranch_scc1 %s' % lA)
    p('s_cbranch_vccz %s' % lA)
    for l in loads: p(l)
    p(f's_waitcnt vmcnt({n})')
    _chk(p, checks, delta)
    p('s_cbranch_vccnz %s' % l0)
    for l in loads:
        m = _re.match(r'global_load_dword\w* v\[(\d+):(\d+)\]', l)
        a = int(m.group(1))
        for k in range(payload): p(f'v_mov_b32 v{a+k}, v{a+k+delta}')
    p.label(lA)
ADEPTH = int(os.environ.get('ADEPTH', '8'))
TTRIG = int(os.environ.get('TTRIG', '1'))
ATRIG = int(os.environ.get('ATRIG', '0'))
LIGHT = int(os.environ.get('LIGHT', '0'))
WUVWAIT = int(os.environ.get('WUVWAIT', '1'))
CODEPF = int(os.environ.get('CODEPF', '2'))
PFIDX = int(os.environ.get('PFIDX', '13'))
PFN = 6
AWARM = int(os.environ.get('AWARM', '2'))
ORDER = int(os.environ.get('ORDER', '1'))
UKLATE = int(os.environ.get('UKLATE', '1'))
UKE = int(os.environ.get('UKE', '4'))
UKPF = int(os.environ.get('UKPF', '1'))
PFPOL = os.environ.get('PFPOL', 'nt')
ATCOL = int(os.environ.get('ATCOL', '0'))
FTRIG = int(os.environ.get('FTRIG', '1'))
WUV1 = int(os.environ.get('WUV1', '12'))
REMAP = int(os.environ.get('REMAP', '1'))
DBGOUT = int(os.environ.get('DBGOUT', '0'))
ZWARM = int(os.environ.get('ZWARM', '1'))

def trig(p, off, en=True):
    if not en: return
    l0 = p.newl('tg'); l1 = p.newl('tgd')
    p(f'''
    s_load_dword s{S_EP}, {sp(P_WS)}, 0
    v_mov_b32 v20, {off}
    s_mov_b32 s{S_CNT}, 0
    s_waitcnt lgkmcnt(0)
    s_add_u32 s{S_TAG}, s{S_EP}, 1
    {l0}:
    global_load_dword v21, v20, {sp(P_WS)} offset:8 sc1
    s_add_u32 s{S_CNT}, s{S_CNT}, 1
    s_waitcnt vmcnt(0)
    v_readfirstlane_b32 s{S_W}, v21
    s_cmp_ge_u32 s{S_CNT}, {SPIN_CAP}
    s_cbranch_scc1 {l1}
    s_cmp_eq_u32 s{S_W}, s{S_TAG}
    s_cbranch_scc1 {l1}
    s_sleep 2
    s_branch {l0}
    {l1}:
    ''')

def gen(stamps=False):
    UID[0] = 0
    H = Prog(stamps)
    H(f'''
    s_cmp_ge_u32 s2, 256
    s_cbranch_scc1 L_end
    s_load_dwordx16 s[4:19], s[0:1], 0
    s_load_dwordx8 s[20:27], s[0:1], 64
    s_load_dwordx4 s[28:31], s[0:1], 96
    s_load_dwordx2 s[32:33], s[0:1], 112
    v_lshrrev_b32 v1, 6, v0
    v_and_b32 v0, 63, v0
    s_and_b32 s{S_XCD}, s2, 7
    v_readfirstlane_b32 s{S_WAVE}, v1
    s_lshr_b32 s{S_IDX}, s2, 3
    ''')
    if CODEPF == 2:
        H(f'''
        s_cmp_lg_u32 s{S_IDX}, {PFIDX}
        s_cbranch_scc1 L_nopf
        s_getpc_b64 s[{T0}:{T1}]
        L_pcref:
        s_mul_i32 s{T2}, s{S_WAVE}, {PFN*1024}
        v_lshlrev_b32 v20, 4, v0
        v_add_u32 v20, s{T2}, v20
        v_max_u32 v21, v20, v20
        s_mov_b32 s{T3}, (L_codeend - L_pcref - 16)
        ''')
        for i in range(PFN):
            H(f'''
            v_min_u32 v21, s{T3}, v20
            global_load_dwordx4 v[252:255], v21, s[{T0}:{T1}]
            v_add_u32 v20, 1024, v20
            ''')
        H('L_nopf:')
    if REMAP:
        H(f'''
        s_add_u32 s{T0}, s{S_IDX}, 24
        s_add_u32 s{T1}, s{S_IDX}, 11
        s_cmp_lt_u32 s{S_IDX}, 5
        s_cselect_b32 s{T0}, s{T0}, s{T1}
        s_add_u32 s{T1}, s{S_IDX}, 16
        s_cmp_ge_u32 s{S_IDX}, 13
        s_cselect_b32 s{T0}, s{T1}, s{T0}
        s_sub_u32 s{T1}, s{S_IDX}, 16
        s_cmp_ge_u32 s{S_IDX}, 16
        s_cselect_b32 s{S_IDX}, s{T1}, s{T0}
        ''')
    H(f'''
    v_and_b32 v1, 15, v0
    v_lshrrev_b32 v2, 4, v0
    ''')
    H.stamp(0)
    H(f'''
    v_mov_b32 v61, {L_CNT}
    v_mov_b32 v62, 1
    v_mov_b32 v63, 0
    v_lshl_add_u32 v3, v0, 2, v61
    s_cmp_lg_u32 s{S_WAVE}, 0
    s_cbranch_scc1 L_noinit
    ds_write_b32 v3, v63
    L_noinit:
    s_mov_b32 s{S_M4}, 0x000f000f
    s_mov_b32 s{S_M4+1}, 0x000f000f
    s_and_b32 s{S_LW}, s{S_WAVE}, 3
    s_lshl_b32 s{T0}, s{S_LW}, 6
    v_add_u32 v3, s{T0}, v0
    s_waitcnt lgkmcnt(0)
    s_barrier
    s_cmp_ge_u32 s{S_WAVE}, 4
    s_cbranch_scc1 L_loader
    s_load_dword s{S_EP}, {sp(P_WS)}, 0
    s_cmp_lt_u32 s{S_IDX}, 16
    s_cbranch_scc1 L_A_c
    s_branch L_F_c
    L_loader:
    s_cmp_lt_u32 s{S_IDX}, 16
    s_cbranch_scc1 L_A_l
    ''')
    if CODEPF == 1:
        H(f'''
        s_cmp_lg_u32 s{S_IDX}, 31
        s_cbranch_scc1 L_F_l
        s_cmp_lg_u32 s{S_WAVE}, 7
        s_cbranch_scc1 L_F_l
        s_getpc_b64 s[{T0}:{T1}]
        L_pcref:
        v_lshlrev_b32 v20, 4, v0
        s_mov_b32 s{T2}, 0
        L_pf:
        global_load_dwordx4 v[24:27], v20, s[{T0}:{T1}]
        v_add_u32 v20, 1024, v20
        s_add_u32 s{T2}, s{T2}, 1024
        s_cmp_lt_u32 s{T2}, (L_codeend - L_pcref - 1024)
        s_cbranch_scc1 L_pf
        ''')
    H(f'''
    s_branch L_F_l
    ''')
    def dump_regs(p, base_reg, count, vaddr, step=1024):
        off = 0
        for j in range(count):
            if off + 0 > 65535 - 0 or off > 60000:
                p(f'v_add_u32 v{vaddr}, {off}, v{vaddr}'); off = 0
            p(f'ds_write_b128 v{vaddr}, {vr(base_reg(j), 4)} offset:{off}')
            off += step

    AL = Prog(stamps); AC = Prog(stamps)
    AL.label('L_A_l')
    AL(f'''
    s_lshl_b32 s{T5}, s{S_XCD}, 4
    s_add_u32 s{T4}, s{T5}, s{S_IDX}         ; cid
    s_lshl_b32 s{T4}, s{T4}, 17
    s_lshl_b32 s{T5}, s{S_LW}, 10
    s_add_u32 s{T4}, s{T4}, s{T5}
    s_add_u32 s56, s{P_CKV}, s{T4}
    s_addc_u32 s57, s{P_CKV+1}, 0
    s_mov_b32 s58, s{T5}
    s_lshl_b32 s{T5}, s{S_LW}, 1
    v_xor_b32 v7, s{T5}, v0
    ''')
    for q in range(4):
        AL(f'v_xor_b32 v{8+q}, {ckv_f_const(q)}, v7')
        AL(f'v_lshlrev_b32 v{8+q}, 4, v{8+q}')
    trig(AL, W_E0 + ATCOL * 16, en=ATRIG)
    for j in range(32):
        if AWARM and j == AWARM: AL('s_waitcnt vmcnt(0)')
        if j >= ADEPTH: AL(f's_waitcnt vmcnt({ADEPTH-1})')
        AL(f'''
        s_add_u32 m0, s58, {j*4096}
        s_nop 0
        global_load_lds_dwordx4 v{8+(j%4)}, s[56:57] {NT}
        s_add_u32 s56, s56, 4096
        s_addc_u32 s57, s57, 0
        ''')
    AL(f'''
    s_lshl_b32 s{T4}, s{S_XCD}, 2
    s_lshr_b32 s{T5}, s{S_IDX}, 2
    s_add_u32 s{T4}, s{T4}, s{T5}
    s_lshl_b32 s{T4}, s{T4}, 8
    s_lshl_b32 s{T5}, s{S_LW}, 20
    s_add_u32 s{T4}, s{T4}, s{T5}
    v_lshrrev_b32 v3, 4, v0
    v_and_b32 v4, 15, v0
    v_lshlrev_b32 v5, 1, v3
    v_xor_b32 v5, v5, v4
    v_xor_b32 v6, 8, v5
    v_lshlrev_b32 v5, 4, v5
    v_lshlrev_b32 v6, 4, v6
    v_lshl_add_u32 v5, v3, 13, v5
    v_lshl_add_u32 v6, v3, 13, v6
    s_waitcnt vmcnt(0)
    ''')
    AL.signal(6); AL.stamp(3)
    load_seq(AL, P_WUV, T4, 4 * 8192, WUV1, [5, 6], dst=lambda j: 64 + 4 * j)
    AL(f's_lshl_b32 s{T5}, s{S_LW}, 15\nv_lshl_add_u32 v12, v0, 4, s{T5}')
    AL('s_waitcnt vmcnt(0)')
    AL.signal(20)
    AL.stamp(4)
    if WUV1 < 32:
        AL.wait(11, 4, sleep=1)
        AL(f's_add_u32 s{T4}, s{T4}, {WUV1*4*8192}')
        load_seq(AL, P_WUV, T4, 4 * 8192, 32 - WUV1, [5, 6], dst=lambda j: 64 + 4 * (WUV1 + j))
        AL('s_waitcnt vmcnt(0)')
    AL.wait(9, 4, sleep=1)
    dump_regs(AL, lambda j: 64 + 4 * j, 32, 12)
    AL.signal(10); AL.stamp(5)
    AL('s_branch L_fin')

    C = AC
    C.label('L_A_c')
    C(f'''
    s_lshr_b32 s{T0}, s{S_XCD}, 1            ; b
    s_lshl_b32 s{T0}, s{T0}, 16
    s_add_u32 s{T0}, s{T0}, {W_E2}
    s_lshl_b32 s{T1}, s{S_WAVE}, 11          ; hsel*2048
    s_add_u32 s{T0}, s{T0}, s{T1}
    v_lshl_add_u32 v4, v0, 4, s{T0}          ; + gi'*16
    v_lshrrev_b32 v7, 1, v0
    s_lshl_b32 s{T1}, s{S_WAVE}, 1
    v_xor_b32 v7, s{T1}, v7
    v_lshlrev_b32 v7, 4, v7
    v_and_b32 v10, 1, v0
    v_lshl_add_u32 v7, v10, 3, v7
    s_lshl_b32 s{T1}, s{S_WAVE}, 9
    s_add_u32 s{T1}, s{T1}, {L_QA}
    v_add_u32 v7, s{T1}, v7
    ''')
    for q4 in range(4): C(f'v_xor_b32 v{44+q4}, {ckv_f_const(q4)*16}, v7')
    for i in range(8):
        if i: C(f'v_add_u32 v{10+i}, {8192*i}, v4')
        else: C('v_mov_b32 v10, v4')
    C(f'''
    v_and_b32 v4, 3, v1
    v_lshlrev_b32 v4, 1, v4
    v_bfe_u32 v5, v1, 3, 1
    v_bfe_u32 v6, v1, 2, 1
    v_xor_b32 v6, v6, v5
    v_lshlrev_b32 v6, 3, v6
    v_or3_b32 v4, v4, v5, v6                 ; f(l16)
    v_lshrrev_b32 v5, 5, v0
    v_xor_b32 v4, v4, v5                     ; f ^ hh
    v_lshlrev_b32 v4, 4, v4
    v_and_b32 v5, 31, v0
    v_lshl_add_u32 v6, v5, 9, v4
    v_add_u32 v6, {L_QA}, v6
    v_lshl_add_u32 v5, v5, 10, v4
    s_lshl_b32 s{T0}, s{S_WAVE}, 15
    v_add_u32 v5, s{T0}, v5
    ''')
    for q8 in range(8):
        C(f'v_xor_b32 v{48+q8}, {q8*32}, v6')
        C(f'v_xor_b32 v{18+q8}, {q8*32}, v5')
    tag_setup(C)
    C.stamp(1)
    C.wait(6, 4, sleep=1)
    if WUVWAIT: C.wait(20, 4, sleep=1)
    C.stamp(2)
    C(f'''
    s_lshr_b32 s{T0}, s{S_XCD}, 1
    s_lshl_b32 s{T0}, s{T0}, 16
    s_add_u32 s{T0}, s{T0}, {W_E2}
    v_lshlrev_b32 v26, 8, v3
    v_add_u32 v26, s{T0}, v26
    ''')
    if LIGHT: poll_loop(C, [f'global_load_dwordx2 v[64:65], v26, {sp(P_WS)} offset:8 sc1'], [(64, 65)])
    C.stamp(3)
    loads = [f'global_load_dwordx4 {vr(192+4*i, 4)}, v{10+i%8}, {sp(P_WS)} offset:{1024*(i//8)} sc1' for i in range(16)]
    poll_loop(C, loads, [(194 + 4 * i, 195 + 4 * i) for i in range(16)])
    C.stamp(7)
    for i in range(8):
        C(f'ds_write_b64 v{44+i%4}, {vr(192+4*i, 2)} offset:{2048*i}')
    C.signal(11)
    C.wait(11, 4)
    for ks in range(16):
        C(f'ds_read_b128 {vr(64+4*ks, 4)}, v{48+ks%8} offset:{(ks//8)*256}')
    def issueA(ks):
        C(f'ds_read_b128 {vr(192+4*(ks%8), 4)}, v{18+ks%8} offset:{(ks//8)*256}')
    for ks in range(8): issueA(ks)
    C('s_waitcnt lgkmcnt(8)')
    C.signal(12)
    C.stamp(8)
    for ks in range(32):
        if ks == 16:
            C.wait(13, 4)
            for k2 in range(16, 32):
                C(f'ds_read_b128 {vr(64+4*k2, 4)}, v{48+k2%8} offset:{((k2-16)//8)*256}')
            C('s_waitcnt lgkmcnt(14)')
        elif ks < 16: C(f's_waitcnt lgkmcnt({min(7, 15 - ks) if ks >= 8 else 7})')
        else: C(f's_waitcnt lgkmcnt({min(15, max(0, 31 - ks) if ks >= 24 else 15)})')
        c = '0' if ks == 0 else 'v[28:43]'
        C(f'v_mfma_f32_32x32x16_bf16 v[28:43], {vr(192+4*(ks%8), 4)}, {vr(64+4*ks, 4)}, {c}')
        if ks + 8 < 32: issueA(ks + 8)
        if ks == 5:
            C.wait(12, 4)
            for i in range(8):
                C(f'ds_write_b64 v{44+i%4}, {vr(192+4*(8+i), 2)} offset:{2048*i}')
            C.signal(13)
    C.stamp(5)
    C(f'''
    v_lshrrev_b32 v4, 2, v1
    v_lshlrev_b32 v5, 1, v4
    v_lshrrev_b32 v6, 1, v2
    v_and_b32 v7, 1, v2
    v_xor_b32 v7, v7, v6
    v_lshlrev_b32 v7, 3, v7
    v_or3_b32 v5, v5, v6, v7
    v_bfe_u32 v6, v1, 1, 1
    v_xor_b32 v5, v5, v6
    v_lshlrev_b32 v5, 4, v5
    v_and_b32 v6, 1, v1
    v_lshlrev_b32 v6, 3, v6
    v_lshl_add_u32 v7, v2, 2, v4
    v_lshlrev_b32 v7, 10, v7
    v_add3_u32 v5, v5, v6, v7
    s_lshl_b32 s{T0}, s{S_WAVE}, 8
    v_add_u32 v5, s{T0}, v5
    v_and_b32 v18, 31, v0
    v_lshlrev_b32 v18, 2, v18
    v_add_u32 v18, {L_REDA}, v18
    s_lshl_b32 s{T0}, s{S_WAVE}, 7
    v_add_u32 v19, s{T0}, v18
    v_lshlrev_b32 v20, 4, v0
    v_add_u32 v20, {L_PB}, v20
    v_bfe_u32 v21, v0, 4, 1
    v_lshlrev_b32 v21, 10, v21
    v_lshrrev_b32 v22, 5, v0
    v_lshl_add_u32 v21, v22, 8, v21
    v_lshl_add_u32 v21, v1, 4, v21
    s_lshl_b32 s{T0}, s{S_WAVE}, 11
    s_add_u32 s{T0}, s{T0}, {L_PB}
    v_add_u32 v21, s{T0}, v21
    ''')
    for t in range(8): C(f'v_xor_b32 v{8+t}, {t*32}, v5')
    C(f'''
    s_lshr_b32 s{T0}, s{S_XCD}, 1
    s_lshl_b32 s{T0}, s{T0}, 5               ; b*32
    s_and_b32 s{T1}, s{S_XCD}, 1
    s_lshl_b32 s{T1}, s{T1}, 4
    s_add_u32 s{T1}, s{T1}, s{S_IDX}         ; chunk
    s_lshl_b32 s{T2}, s{T0}, 15
    s_lshl_b32 s{T3}, s{T1}, 10
    s_add_u32 s{T2}, s{T2}, s{T3}
    s_lshl_b32 s{T3}, s{S_WAVE}, 8
    s_add_u32 s{T2}, s{T2}, s{T3}
    s_add_u32 s{T2}, s{T2}, {W_E3}
    v_and_b32 v4, 7, v1
    v_lshlrev_b32 v4, 15, v4
    v_lshlrev_b32 v5, 4, v2
    v_add3_u32 v4, v4, v5, s{T2}             ; (l16&7)*32768 + g*16
    v_lshrrev_b32 v5, 3, v1
    v_lshlrev_b32 v5, 6, v5                  ; (l16>>3)*64
    v_xor_b32 v6, 64, v5
    v_add_u32 v6, v6, v4
    v_add_u32 v6, {8*32768}, v6
    v_add_u32 v4, v5, v4
    v_add_u32 v5, {16*32768}, v4
    v_add_u32 v7, {16*32768}, v6
    ''')
    C('''
    v_max3_f32 v16, v28, v29, v30
    v_max3_f32 v17, v31, v32, v33
    v_max3_f32 v16, v16, v34, v35
    v_max3_f32 v17, v17, v36, v37
    v_max3_f32 v16, v16, v38, v39
    v_max3_f32 v17, v17, v40, v41
    v_max3_f32 v16, v16, v42, v43
    v_max_f32 v16, v16, v17
    v_mov_b32 v17, v16
    s_nop 1
    v_permlane32_swap_b32 v16, v17
    s_nop 1
    v_max_f32 v16, v16, v17
    ds_write_b32 v19, v16
    ''')
    C.signal(7)
    for t in range(8): C(f'v_add_u32 v{48+t}, 0x10000, v{8+t}')
    lq = []
    def pvfrag(pr, tt, j): return 192 + (pr % 2) * 32 + (tt * 4 + j) * 4
    def pvread(pr):
        for j in range(4):
            for tt in range(2):
                t = 2 * pr + tt
                va = (8 + t) if j < 2 else (48 + t)
                o = (j % 2) * 32768
                C(f'ds_read_b64_tr_b16 {vr(pvfrag(pr, tt, j), 2)}, v{va} offset:{o}')
                C(f'ds_read_b64_tr_b16 {vr(pvfrag(pr, tt, j)+2, 2)}, v{va} offset:{o + 16384}')
                lq.append(('a', pr, tt, j)); lq.append(('a', pr, tt, j))
    def waitfor(ids):
        last = max(i for i, x in enumerate(lq) if x in ids)
        C(f's_waitcnt lgkmcnt({min(15, len(lq) - 1 - last)})')
    pvread(0)
    C.wait(7, 4)
    C.stamp(6)
    for w in range(4): C(f'ds_read_b32 v{64+w}, v18 offset:{128*w}')
    C('s_waitcnt lgkmcnt(0)')
    C('v_max3_f32 v16, v64, v65, v66\nv_max_f32 v16, v16, v67')
    for i in range(16): C(f'v_sub_f32 v{28+i}, v{28+i}, v16')
    for i in range(16): C(f'v_exp_f32 v{28+i}, v{28+i}')
    C('s_nop 0')
    for pc, (qa, qb) in enumerate(((0, 2), (1, 3))):
        C(f'''
        v_cvt_pk_bf16_f32 v{64+4*pc}, v{28+4*qa}, v{29+4*qa}
        v_cvt_pk_bf16_f32 v{65+4*pc}, v{30+4*qa}, v{31+4*qa}
        v_cvt_pk_bf16_f32 v{66+4*pc}, v{28+4*qb}, v{29+4*qb}
        v_cvt_pk_bf16_f32 v{67+4*pc}, v{30+4*qb}, v{31+4*qb}
        ds_write_b128 v21, {vr(64+4*pc, 4)} offset:{512*pc}
        ''')
    C.signal(8)
    for i in range(8): C(f'v_add_f32 v{72+i}, v{28+2*i}, v{29+2*i}')
    for i in range(4): C(f'v_add_f32 v{72+i}, v{72+i}, v{76+i}')
    C('''
    v_add_f32 v72, v72, v74
    v_add_f32 v73, v73, v75
    v_add_f32 v22, v72, v73
    v_mov_b32 v23, v22
    s_nop 1
    v_permlane32_swap_b32 v22, v23
    s_nop 1
    v_add_f32 v22, v22, v23
    ds_write_b32 v19, v22 offset:512
    ''')
    C.signal(16)
    C.wait(8, 4)
    C.stamp(14)
    lq.clear()
    for j in range(4):
        for hg in range(2):
            C(f'ds_read_b128 {vr(64+(j*2+hg)*4, 4)}, v20 offset:{(j*2+hg)*1024}'); lq.append(('p', j))
    pvread(1)
    def pack_store(pp):
        for hg in range(2):
            X1 = 96 + hg * 12; X2 = X1 + 4; Bq = X1 + 8
            for (dst, pr) in ((X1, 2 * pp), (Bq, 2 * pp + 1)):
                a0 = 128 + ((2 * pr) * 2 + hg) * 4; a1 = 128 + ((2 * pr + 1) * 2 + hg) * 4
                C(f'''
                v_cvt_pk_bf16_f32 v{dst}, v{a0}, v{a0+1}
                v_cvt_pk_bf16_f32 v{dst+1}, v{a0+2}, v{a0+3}
                v_cvt_pk_bf16_f32 v{dst+2}, v{a1}, v{a1+1}
                v_cvt_pk_bf16_f32 v{dst+3}, v{a1+2}, v{a1+3}
                ''')
            for k in range(4): C(f'v_mov_b32 v{X2+k}, v{X1+k}')
            for k in range(4): C(f'v_mov_b32_dpp v{X1+k}, v{Bq+k} row_ror:8 row_mask:0xf bank_mask:0xc')
            for k in range(4): C(f'v_mov_b32_dpp v{X2+k}, v{Bq+k} row_ror:8 row_mask:0xf bank_mask:0x3')
            C(f'global_store_dwordx4 v{4+hg}, {vr(X1, 4)}, {sp(P_WS)} offset:{128*pp} sc1')
            C(f'global_store_dwordx4 v{6+hg}, {vr(X2, 4)}, {sp(P_WS)} offset:{128*pp} sc1')
    for pr in range(4):
        for j in range(4):
            ids = [('p', j)] + ([('a', pr, 0, j), ('a', pr, 1, j)] if pr >= 1 else [])
            waitfor(ids)
            for tt in range(2):
                for hg in range(2):
                    t = 2 * pr + tt
                    a = 128 + (t * 2 + hg) * 4
                    c = '0' if j == 0 else vr(a, 4)
                    C(f'v_mfma_f32_16x16x32_bf16 {vr(a, 4)}, {vr(pvfrag(pr, tt, j), 4)}, {vr(64+(j*2+hg)*4, 4)}, {c}')
            if j == 1 and pr == 2: pack_store(0)
        if pr + 2 < 4: pvread(pr + 2)
        if pr == 0:
            lskip = C.newl('st3')
            C(f's_cmp_lg_u32 s{S_WAVE}, 0\ns_cbranch_scc1 {lskip}')
            C.wait(16, 4)
            for w in range(4): C(f'ds_read_b32 v{28+w}, v18 offset:{512 + 128*w}')
            C(f'''
            s_lshl_b32 s{T2}, s{T0}, 8
            s_lshl_b32 s{T3}, s{T1}, 3
            s_add_u32 s{T2}, s{T2}, s{T3}
            s_add_u32 s{T2}, s{T2}, {W_ST3}
            v_and_b32 v24, 31, v0
            v_lshl_add_u32 v24, v24, 8, s{T2}
            v_mov_b32 v36, v16
            s_waitcnt lgkmcnt(0)
            v_add_f32 v28, v28, v29
            v_add_f32 v30, v30, v31
            v_add_f32 v37, v28, v30
            ''')
            exec_set(C, '0xffffffff')
            C(f'global_store_dwordx2 v24, v[36:37], {sp(P_WS)} sc1')
            exec_restore(C)
            C.label(lskip)
    C.stamp(9)
    C.signal(9)
    C(f'''
    s_add_u32 s{T2}, s{T0}, s{T1}
    s_lshl_b32 s{T2}, s{T2}, 7
    s_lshl_b32 s{T3}, s{S_WAVE}, 2
    s_add_u32 s{T2}, s{T2}, s{T3}
    s_add_u32 s{T2}, s{T2}, {W_F3}
    v_mov_b32 v24, s{T2}
    v_mov_b32 v25, s{S_TAG}
    ''')
    pack_store(1)
    C('s_waitcnt vmcnt(0)')
    exec_set(C, '1')
    C(f'global_store_dword v24, v25, {sp(P_WS)} sc1')
    exec_restore(C)
    C.stamp(10)
    CA = C
    CA(f'''
    s_lshl_b32 s{S_J}, s{S_XCD}, 2
    s_lshr_b32 s{T5}, s{S_IDX}, 2
    s_add_u32 s{S_J}, s{S_J}, s{T5}
    s_and_b32 s{S_K}, s{S_IDX}, 3
    s_lshl_b32 s{T0}, s{S_K}, 12              ; b*32 flags*128B
    s_add_u32 s{T0}, s{T0}, {W_F3}
    v_and_b32 v4, 31, v0
    v_lshl_add_u32 v5, v4, 7, s{T0}
    s_lshl_b32 s{T0}, s{S_K}, 5
    s_add_u32 s{T0}, s{T0}, s{S_J}
    s_lshl_b32 s{T1}, s{T0}, 8
    s_add_u32 s{T1}, s{T1}, {W_ST3}
    v_lshl_add_u32 v6, v4, 3, s{T1}
    s_lshl_b32 s{T1}, s{T0}, 15
    s_lshl_b32 s{T2}, s{S_WAVE}, 13
    s_add_u32 s{T1}, s{T1}, s{T2}
    s_add_u32 s{T1}, s{T1}, {W_E3}
    v_lshl_add_u32 v7, v0, 4, s{T1}
    v_add_u32 v10, 4096, v7
    v_lshlrev_b32 v4, 5, v0
    v_add_u32 v4, {L_RED4}, v4
    s_lshl_b32 s{T0}, s{S_WAVE}, 11
    v_add_u32 v11, s{T0}, v4
    ''')
    CA(f'''
    v_lshrrev_b32 v12, 2, v1
    v_lshl_add_u32 v12, v2, 2, v12
    v_and_b32 v13, 7, v12
    v_lshlrev_b32 v13, 1, v13
    v_bfe_u32 v14, v1, 1, 1
    v_xor_b32 v13, v13, v14
    v_lshlrev_b32 v13, 4, v13
    v_and_b32 v14, 1, v1
    v_lshlrev_b32 v14, 3, v14
    v_lshlrev_b32 v12, 8, v12
    v_add3_u32 v12, v12, v13, v14
    s_lshl_b32 s{T0}, s{S_WAVE}, 6
    v_xor_b32 v12, s{T0}, v12
    v_xor_b32 v13, 32, v12
    v_add_u32 v14, 0x10000, v12
    v_add_u32 v15, 0x10000, v13
    ''')
    CA.wait(10, 4)
    for ks in range(16):
        for t in range(2):
            va = (12 + t) if ks < 8 else (14 + t)
            o = (ks % 8) * 8192
            r = 128 + (ks * 2 + t) * 4
            CA(f'ds_read_b64_tr_b16 {vr(r, 2)}, v{va} offset:{o}')
            CA(f'ds_read_b64_tr_b16 {vr(r+2, 2)}, v{va} offset:{o+4096}')
    CA('s_waitcnt lgkmcnt(0)')
    lk = CA.newl('f3w')
    CA(f's_cmp_lg_u32 s{S_WAVE}, 0\ns_cbranch_scc1 {lk}')
    poll2(CA, [f'global_load_dwordx4 v[96:99], v5, {sp(P_WS)} sc1'], [(96, None), (97, None), (98, None), (99, None)], 4, payload=0)
    CA.signal(21)
    CA.label(lk)
    CA.wait(21, 1)
    CA.stamp(11)
    CA(f'global_load_dwordx2 v[16:17], v6, {sp(P_WS)} sc1')
    for i in range(8):
        CA(f'global_load_dwordx4 v[{64+4*i}:{67+4*i}], v{7 if i < 4 else 10}, {sp(P_WS)} offset:{1024*(i%4)} sc1')
    CA('s_waitcnt vmcnt(8)')
    CA('v_mov_b32 v18, v16')
    allreduce(CA, 18, 19, 'max')
    CA(f'''
    v_sub_f32 v16, v16, v18
    v_exp_f32 v16, v16
    s_nop 0
    v_mul_f32 v17, v17, v16
    ''')
    allreduce(CA, 17, 19, 'add')
    CA(f'''
    v_rcp_f32 v17, v17
    s_nop 0
    v_mul_f32 v16, v16, v17
    v_add_f32 v16, v16, v16
    s_lshl_b32 s{T0}, s{S_WAVE}, 3
    s_nop 0
    ''')
    for i in range(8):
        CA(f's_add_u32 s{T1}, s{T0}, {i}')
        CA(f'v_readlane_b32 s{S_SC+i}, v16, s{T1}')
    for i in range(8):
        CA(f's_waitcnt vmcnt({7-i})')
        for q in range(4):
            unpack(CA, 20, 21, 64 + 4 * i + q)
            if i == 0:
                CA(f'v_mul_f32 v{32+2*q}, s{S_SC+i}, v20\nv_mul_f32 v{33+2*q}, s{S_SC+i}, v21')
            else:
                CA(f'v_fmac_f32 v{32+2*q}, s{S_SC+i}, v20\nv_fmac_f32 v{33+2*q}, s{S_SC+i}, v21')
    CA(f'''
    ds_write_b128 v11, v[32:35]
    ds_write_b128 v11, v[36:39] offset:16
    ''')
    CA.signal(17)
    CA(f'''
    s_lshl_b32 s{T0}, s{S_WAVE}, 10
    s_add_u32 s{T0}, s{T0}, {L_CC}
    v_lshl_add_u32 v5, v0, 4, s{T0}
    v_lshl_add_u32 v6, v2, 4, s{T0}
    s_lshl_b32 s{T0}, s{S_K}, 14
    s_lshl_b32 s{T1}, s{S_J}, 9
    s_add_u32 s{T0}, s{T0}, s{T1}
    s_lshl_b32 s{T1}, s{S_WAVE}, 7
    s_add_u32 s{T0}, s{T0}, s{T1}
    s_add_u32 s{T0}, s{T0}, {W_E4}
    v_lshlrev_b32 v14, 6, v1
    v_lshl_add_u32 v14, v2, 4, v14
    v_add_u32 v14, s{T0}, v14
    v_mov_b32 v38, s{S_TAG}
    v_mov_b32 v39, s{S_TAG2}
    v_cmp_gt_u32 vcc, 2, v1
    v_cmp_eq_u32 {sp(S_M)}, 1, v1
    ''')
    CA.wait(17, 4)
    CA.stamp(12)
    for w in range(4):
        CA(f'ds_read_b128 v[{64+8*w}:{67+8*w}], v4 offset:{2048*w}')
        CA(f'ds_read_b128 v[{68+8*w}:{71+8*w}], v4 offset:{2048*w+16}')
    CA('s_waitcnt lgkmcnt(0)')
    for q in range(4):
        CA(f'''
        v_pk_add_f32 v[{64+2*q}:{65+2*q}], v[{64+2*q}:{65+2*q}], v[{72+2*q}:{73+2*q}]
        v_pk_add_f32 v[{80+2*q}:{81+2*q}], v[{80+2*q}:{81+2*q}], v[{88+2*q}:{89+2*q}]
        v_pk_add_f32 v[{64+2*q}:{65+2*q}], v[{64+2*q}:{65+2*q}], v[{80+2*q}:{81+2*q}]
        v_cvt_pk_bf16_f32 v{32+q}, v{64+2*q}, v{65+2*q}
        ''')
    CA('ds_write_b128 v5, v[32:35]')
    CA('s_waitcnt lgkmcnt(0)')
    for ks in range(16): CA(f'ds_read_b128 v[{64+4*ks}:{67+4*ks}], v6 offset:{64*ks}')
    for ks in range(16):
        CA(f's_waitcnt lgkmcnt({15 - ks})')
        for t in range(2):
            c = '0' if ks == 0 else vr(28 + 4 * t, 4)
            CA(f'v_mfma_f32_16x16x32_bf16 {vr(28+4*t, 4)}, {vr(128+(ks*2+t)*4, 4)}, v[{64+4*ks}:{67+4*ks}], {c}')
    CA(f'''
    s_nop 7
    v_cvt_pk_bf16_f32 v36, v28, v29
    v_cvt_pk_bf16_f32 v37, v30, v31
    v_cvt_pk_bf16_f32 v40, v32, v33
    v_cvt_pk_bf16_f32 v41, v34, v35
    v_cndmask_b32 v36, v36, v40, {sp(S_M)}
    v_cndmask_b32 v37, v37, v41, {sp(S_M)}
    s_and_saveexec_b64 {sp(S_EX)}, vcc
    global_store_dwordx4 v14, v[36:39], {sp(P_WS)} sc1
    s_mov_b64 exec, {sp(S_EX)}
    ''')
    CA.stamp(13)
    CA('s_branch L_fin')

    FL = Prog(stamps); FC = Prog(stamps)
    FL.label('L_F_l')
    for p in (FL, FC):
        if p is FC: p.label('L_F_c')
        p(f'''
        s_sub_u32 s{S_J5}, s{S_IDX}, 16          ; j
        s_lshl_b32 s{S_STRIP}, s{S_XCD}, 3
        s_add_u32 s{S_STRIP}, s{S_STRIP}, s{S_J5}   ; Y: h*2+half
        s_mul_i32 s{S_R}, s{S_XCD}, 5
        s_add_u32 s{S_R}, s{S_R}, s{S_J5}
        s_sub_u32 s{S_R}, s{S_R}, 8
        s_cmp_lt_u32 s{S_J5}, 8
        s_cbranch_scc1 L_Y_{'l' if p is FL else 'c'}
        s_cmp_ge_u32 s{S_J5}, 13
        s_cbranch_scc1 L_tail_{'l' if p is FL else 'c'}
        ''')
    dma_voff(FL, 6, 128, 7680, 3, 4)
    FL(f'''
    s_lshr_b32 s{T4}, s{S_R}, 1
    s_lshl_b32 s{T4}, s{T4}, 7
    s_and_b32 s{T2}, s{S_R}, 1
    s_mul_i32 s{T2}, s{T2}, {320*7680}
    s_add_u32 s{T4}, s{T4}, s{T2}
    s_mul_i32 s{T2}, s{S_LW}, {10*8*7680}
    s_add_u32 s{T4}, s{T4}, s{T2}
    s_mul_i32 s{T5}, s{S_LW}, 10240
    ''')
    load_seq(FL, P_WMOD, T4, 8 * 7680, 10, [6], s_lds=T5, lds_const=0)
    FL('s_waitcnt vmcnt(0)'); FL.signal(0); FL.stamp(1)
    FL.wait(5, 4, sleep=1)
    FL('s_branch L_tail_l')
    def p0tile(C, colbase_bytes, s_tile, cnt_ready, cnt_done, half=False):
        act_prep(C, True, False, cnt=cnt_ready)
        if half:
            C(f's_and_b32 s{T0}, s{s_tile}, 1\ns_mul_i32 s{T0}, s{T0}, 640')
        else:
            C(f's_mov_b32 s{T0}, 0')
        aaddr(C, 8, L_ACT, ACTP, T0, 9)
        trpat(C, 25, 128, S_WAVE, 9, 24)
        C(f'''
        ''')
        if half:
            C(f'''
            s_lshr_b32 s{T0}, s{s_tile}, 1
            s_lshl_b32 s{T0}, s{T0}, 2
            s_add_u32 s{T0}, s{T0}, s{S_WAVE}
            s_lshl_b32 s{T0}, s{T0}, 8
            s_and_b32 s{T1}, s{s_tile}, 1
            s_mul_i32 s{T1}, s{T1}, {W_E0B - W_E0}
            s_add_u32 s{T0}, s{T0}, s{T1}
            ''')
        else:
            C(f'''
            s_lshl_b32 s{T0}, s{s_tile}, 2
            s_add_u32 s{T0}, s{T0}, s{S_WAVE}
            s_lshl_b32 s{T0}, s{T0}, 8
            ''')
        C(f'''
        s_add_u32 s{T0}, s{T0}, {W_E0 + colbase_bytes}
        v_lshl_add_u32 v21, v1, 4, s{T0}
        ''')
        tag_setup(C)
        C.stamp(1)
        C.wait(cnt_ready, 8)
        gemv2(C, 10 if half else 20, 8, 25, 4096, 2048, ACC, banks=(64, 144), batch=10)
        C.signal(cnt_done)
        C('s_nop 7')
        exec_set(C, '0xffff')
        store_granule(C, 21)
        exec_restore(C)
    C = FC
    p0tile(C, 0, S_R, 0, 5, half=True)
    C.stamp(2)
    C('s_branch L_tail_c')
    FL.label('L_Y_l')
    dma_voff(FL, 6, 128, 8192, 3, 4)
    FL(f'''
    s_lshl_b32 s{T4}, s{S_STRIP}, 7
    s_mul_i32 s{T2}, s{S_LW}, {20*8*8192}
    s_add_u32 s{T4}, s{T4}, s{T2}
    s_mul_i32 s{T5}, s{S_LW}, 20480
    ''')
    load_seq(FL, P_WQ, T4, 8 * 8192, 20, [6], s_lds=T5, lds_const=0)
    FL(f'''
    s_lshr_b32 s{T4}, s{S_STRIP}, 1
    s_lshl_b32 s{T4}, s{T4}, 8               ; h*256
    s_and_b32 s{T2}, s{S_STRIP}, 1
    s_lshl_b32 s{T2}, s{T2}, 21
    s_add_u32 s{T4}, s{T4}, s{T2}
    s_lshl_b32 s{T2}, s{S_LW}, 19
    s_add_u32 s{T4}, s{T4}, s{T2}
    s_lshl_b32 s{T5}, s{S_LW}, 14
    v_lshrrev_b32 v3, 4, v0
    v_and_b32 v4, 15, v0
    v_xor_b32 v4, v4, v3
    ''')
    for q in range(4):
        FL(f'v_xor_b32 v{8+q}, {4*q}, v4\nv_lshlrev_b32 v{8+q}, 4, v{8+q}\nv_lshl_add_u32 v{8+q}, v3, 13, v{8+q}')
    if UKLATE:
        if UKE:
            load_seq(FL, P_WUK, T4, 4 * 8192, UKE, [8, 9, 10, 11], s_lds=T5, lds_const=L_WUK)
            FL(f's_add_u32 s{T4}, s{T4}, {UKE*4*8192}\ns_add_u32 s{T5}, s{T5}, {UKE*1024}')
        FL(f's_waitcnt vmcnt({UKE})'); FL.signal(2); FL.stamp(2)
        FL.wait(23, 4, sleep=1)
        load_seq(FL, P_WUK, T4, 4 * 8192, 16 - UKE, [8, 9, 10, 11], s_lds=T5, lds_const=L_WUK)
    else:
        load_seq(FL, P_WUK, T4, 4 * 8192, 16, [8, 9, 10, 11], s_lds=T5, lds_const=L_WUK)
        FL('s_waitcnt vmcnt(16)'); FL.signal(2); FL.stamp(2)
    FL('s_waitcnt vmcnt(0)'); FL.signal(4); FL.stamp(4)
    FL.wait(22, 4, sleep=1)
    FL('s_branch L_tail_l')
    C.label('L_Y_c')
    act_prep(C, False, True)
    C(f'''
    v_lshlrev_b32 v4, 4, v3
    v_add_u32 v4, {W_E0}, v4
    v_add_u32 v5, 512, v3
    v_min_u32 v5, 639, v5
    v_lshlrev_b32 v6, 4, v5
    v_add_u32 v6, {W_E0}, v6
    v_add_u32 v7, {640*16}, v4
    v_add_u32 v10, {640*16}, v6
    v_add_u32 v11, 4096, v4
    v_add_u32 v12, 4096, v7
    ''')
    C.wait(15, 4)
    C(f'''
    v_lshlrev_b32 v13, 3, v3
    v_add_u32 v13, {L_XNT}, v13
    ds_read_b64 v[14:15], v13
    ds_read_b64 v[16:17], v13 offset:2048
    v_lshlrev_b32 v13, 3, v5
    v_add_u32 v13, {L_XNT}, v13
    ds_read_b64 v[18:19], v13
    ''')
    permaddr(C, 20, 3, 56, 57); C(f'v_add_u32 v20, {L_ACT}, v20')
    permaddr(C, 21, 5, 56, 57); C(f'v_add_u32 v21, {L_ACT}, v21')
    C('s_waitcnt lgkmcnt(0)')
    for ci in range(3):
        for half in range(2):
            unpack(C, 40 + 4 * ci + 2 * half, 41 + 4 * ci + 2 * half, 14 + 2 * ci + half)
    C(f's_mov_b32 s{T0}, 0')
    aaddr(C, 8, L_ACT, ACTP, T0, 9)
    trpat(C, 24, 128, S_WAVE, 9, 25)
    C(f'''
    s_lshl_b32 s{T0}, s{S_STRIP}, 2
    s_add_u32 s{T0}, s{T0}, s{S_WAVE}
    s_lshl_b32 s{T0}, s{T0}, 8
    s_add_u32 s{T0}, s{T0}, {W_E1}
    v_lshlrev_b32 v13, 6, v1
    v_lshlrev_b32 v14, 4, v2
    v_add3_u32 v13, v13, v14, s{T0}
    ''')
    tag_setup(C)
    C.stamp(1)
    C.wait(2, 4, sleep=1)
    prewt(C, 20, 24, 4096, 2048, 144)
    C.stamp(2)
    for i, a in enumerate([4, 11, 6, 7, 12, 10]): C(f'v_add_u32 v{26+i}, {W_E0B - W_E0}, v{a}')
    loads = [f'global_load_dwordx4 v[{64+4*i}:{67+4*i}], v{a}, {sp(P_WS)} sc1' for i, a in enumerate([4, 11, 6, 7, 12, 10, 26, 27, 28, 29, 30, 31])]
    poll_loop(C, loads, [(66 + 4 * i, 67 + 4 * i) for i in range(12)])
    C.signal(23)
    C.stamp(3)
    for ci, (ar, off) in enumerate([(20, 0), (20, 512), (21, 0)]):
        sa = 64 + 4 * ci; ca = 76 + 4 * ci
        for half in range(2):
            x = 40 + 4 * ci + 2 * half
            unpack(C, 122, 123, sa + half)
            unpack(C, 124, 125, ca + half)
            unpack(C, 116, 117, sa + 24 + half)
            unpack(C, 118, 119, ca + 24 + half)
            C(f'''
            v_pk_add_f32 v[124:125], v[124:125], v[118:119]
            v_pk_add_f32 v[122:123], v[122:123], v[116:117]
            v_pk_fma_f32 v[120:121], v[{x}:{x+1}], v[124:125], v[{x}:{x+1}]
            v_pk_add_f32 v[120:121], v[120:121], v[122:123]
            v_cvt_pk_bf16_f32 v120, v120, v121
            ds_write_b16 v{ar}, v120 offset:{off + (2*half)*ACTP}
            ds_write_b16_d16_hi v{ar}, v120 offset:{off + (2*half+1)*ACTP}
            ''')
    C.signal(3); C.wait(3, 4)
    C('s_waitcnt vmcnt(0)')
    gemv3(C, 20, 8, 144, 64, ACC, swap=True)
    C('s_nop 7')
    exec_set(C, sp(S_M4))
    store_granule(C, 13)
    exec_restore(C)
    C.stamp(4)
    C(f'''
    v_xor_b32 v30, v1, v2
    v_lshlrev_b32 v30, 4, v30
    v_lshl_add_u32 v30, v1, 8, v30
    s_lshl_b32 s{T1}, s{S_WAVE}, 14
    s_add_u32 s{T1}, s{T1}, {L_WUK}
    v_add_u32 v30, s{T1}, v30
    ''')
    for ks in range(4): C(f'v_xor_b32 v{32+ks}, {64*ks}, v30')
    C(f'''
    s_lshr_b32 s{S_K}, s{S_STRIP}, 1         ; h
    s_lshl_b32 s{T0}, s{S_K}, 11
    s_add_u32 s{T0}, s{T0}, {W_E1}
    v_and_b32 v4, 3, v0
    v_lshlrev_b32 v4, 6, v4
    v_lshrrev_b32 v5, 1, v2
    v_lshl_add_u32 v4, v5, 8, v4
    v_and_b32 v5, 1, v2
    v_lshl_add_u32 v4, v5, 5, v4
    v_add_u32 v4, s{T0}, v4
    s_lshl_b32 s{T0}, s{S_K}, 11
    s_and_b32 s{T1}, s{S_STRIP}, 1
    s_lshl_b32 s{T1}, s{T1}, 2
    s_add_u32 s{T1}, s{T1}, s{S_WAVE}
    s_lshl_b32 s{T1}, s{T1}, 8
    s_add_u32 s{T0}, s{T0}, s{T1}
    s_add_u32 s{T0}, s{T0}, {W_E2}
    v_and_b32 v5, 3, v1
    v_lshlrev_b32 v5, 16, v5
    v_lshrrev_b32 v6, 2, v1
    v_lshl_add_u32 v5, v6, 6, v5
    v_lshl_add_u32 v5, v2, 4, v5
    v_add_u32 v5, s{T0}, v5
    s_mov_b32 s{T1}, {fl(LOG2E / (128 ** 0.5))}
    v_mov_b32 v74, s{S_TAG}
    v_mov_b32 v75, s{S_TAG2}
    ''')
    C.wait(4, 4)
    for t in range(4):
        for ks in range(4):
            C(f'ds_read_b128 {vr(128+(t*4+ks)*4, 4)}, v{32+ks} offset:{4096*t}')
    C('s_waitcnt lgkmcnt(0)')
    C.signal(5)
    loads = []
    for ks in range(4):
        for hf in range(2):
            r = 96 + 8 * ks + 4 * hf
            loads.append(f'global_load_dwordx4 {vr(r, 4)}, v4, {sp(P_WS)} offset:{512*ks + 16*hf} sc1')
    poll_loop(C, loads, [(98 + 4 * i, 99 + 4 * i) for i in range(8)])
    C.stamp(5)
    for ks in range(4):
        C(f'v_mov_b32 v{98+8*ks}, v{100+8*ks}\nv_mov_b32 v{99+8*ks}, v{101+8*ks}')
    C('s_nop 0')
    for ks in range(4):
        for t in range(4):
            c = '0' if ks == 0 else vr(28 + 4 * t, 4)
            C(f'v_mfma_f32_16x16x32_bf16 {vr(28+4*t, 4)}, {vr(128+(t*4+ks)*4, 4)}, {vr(96+8*ks, 4)}, {c}')
    C('s_nop 4')
    for t in range(4):
        a_ = 28 + 4 * t
        C(f'''
        v_mul_f32 v{a_}, s{T1}, v{a_}
        v_mul_f32 v{a_+1}, s{T1}, v{a_+1}
        v_mul_f32 v{a_+2}, s{T1}, v{a_+2}
        v_mul_f32 v{a_+3}, s{T1}, v{a_+3}
        v_cvt_pk_bf16_f32 v{64+2*t}, v{a_}, v{a_+1}
        v_cvt_pk_bf16_f32 v{65+2*t}, v{a_+2}, v{a_+3}
        ''')
    C('v_mov_b32 v72, v64\nv_mov_b32 v73, v65\ns_nop 0')
    for t in range(1, 4):
        C(f'v_mov_b32_dpp v72, v{64+2*t} row_shr:{4*t} row_mask:0xf bank_mask:{hex(1<<t)}')
        C(f'v_mov_b32_dpp v73, v{65+2*t} row_shr:{4*t} row_mask:0xf bank_mask:{hex(1<<t)}')
    C(f'global_store_dwordx4 v5, v[72:75], {sp(P_WS)} sc1')
    C.signal(22)
    C.stamp(6)
    for p, sfx in ((FL, 'l'), (C, 'c')):
        p.label('L_tail_' + sfx)
        if p is FL and UKPF:
            lb = p.newl('pf'); l2 = p.newl('pf2')
            p(f'''
            s_cmp_lt_u32 s{S_J5}, 13
            s_cbranch_scc1 {lb}
            s_sub_u32 s{T2}, s{S_J5}, 13             ; 0,1,2
            s_cmp_eq_u32 s{T2}, 0
            s_cselect_b32 s{T3}, 1, 0
            s_cmp_eq_u32 s{T2}, 2
            s_cselect_b32 s{T3}, 2, s{T3}
            s_lshl_b32 s{T4}, s{S_XCD}, 2
            s_add_u32 s{T4}, s{T4}, s{T3}
            s_lshl_b32 s{T4}, s{T4}, 8
            s_lshl_b32 s{T5}, s{S_LW}, 20
            s_add_u32 s{T4}, s{T4}, s{T5}
            s_lshl_b32 s{T5}, s{S_LW}, 15
            v_lshrrev_b32 v3, 4, v0
            v_and_b32 v4, 15, v0
            v_lshlrev_b32 v4, 4, v4
            v_lshl_add_u32 v8, v3, 13, v4
            ''')
            NTs = NT
            globals()['NT'] = PFPOL
            load_seq(p, P_WUK, T4, 4 * 8192, 32, [8], s_lds=T5, lds_const=0)
            p(f'''
            s_cmp_eq_u32 s{S_J5}, 13
            s_cbranch_scc1 {l2}
            s_lshl_b32 s{T4}, s{S_XCD}, 2
            s_add_u32 s{T4}, s{T4}, 3
            s_lshl_b32 s{T4}, s{T4}, 8
            s_sub_u32 s{T2}, s{S_J5}, 14
            s_lshl_b32 s{T2}, s{T2}, 21
            s_add_u32 s{T4}, s{T4}, s{T2}
            s_lshl_b32 s{T2}, s{S_LW}, 19
            s_add_u32 s{T4}, s{T4}, s{T2}
            s_lshl_b32 s{T5}, s{S_LW}, 14
            ''')
            load_seq(p, P_WUK, T4, 4 * 8192, 16, [8], s_lds=T5, lds_const=0)
            globals()['NT'] = NTs
            p.label(l2)
            p('s_waitcnt vmcnt(0)')
            p.label(lb)
        if p is FL and FTRIG:
            lb = p.newl('ft')
            p(f's_cmp_lt_u32 s{S_J5}, 8\ns_cbranch_scc1 {lb}')
            trig(p, W_E1 + 100 * 256, en=True)
            p.label(lb)
        p(f'''
        s_mul_i32 s{S_R}, s{S_XCD}, 5
        s_add_u32 s{S_R}, s{S_R}, s{S_J5}           ; j<5: P0n tile
        s_mul_i32 s{S_J}, s{S_XCD}, 7
        s_add_u32 s{S_J}, s{S_J}, s{S_J5}           ; j<7: j6
        s_cmp_lt_u32 s{S_J5}, 7
        s_cbranch_scc1 L_T6_{sfx}
        s_cmp_lt_u32 s{S_J5}, 8
        s_cbranch_scc1 L_fin
        s_sub_u32 s{S_R}, s{S_R}, 11                ; j>=11: unit5
        s_mul_i32 s{S_J}, s{S_XCD}, 3
        s_add_u32 s{S_J}, s{S_J}, s{S_J5}
        s_sub_u32 s{S_J}, s{S_J}, 8                 ; 8<=j<11: unit7
        s_cmp_lt_u32 s{S_J5}, 11
        s_cbranch_scc1 L_T7_{sfx}
        s_branch L_T5_{sfx}
        ''')
        p.label('L_T6_' + sfx)
        p(f's_cmp_ge_u32 s{S_J}, 54\ns_cbranch_scc1 L_fin')
    dma_voff(FL, 6, 128, 7680, 3, 4)
    dma_voff(FL, 5, 64, 3456, 3, 4)
    FL(f'''
    s_cmp_ge_u32 s{S_J5}, 5
    s_cbranch_scc1 L_F_no0n
    s_lshl_b32 s{T4}, s{S_R}, 7
    s_add_u32 s{T4}, s{T4}, {1280*2}
    s_mul_i32 s{T2}, s{S_LW}, {20*8*7680}
    s_add_u32 s{T4}, s{T4}, s{T2}
    s_mul_i32 s{T5}, s{S_LW}, 20480
    ''')
    load_seq(FL, P_WMOD, T4, 8 * 7680, 20, [6], s_lds=T5, lds_const=L_WMN)
    FL('s_waitcnt vmcnt(0)'); FL.signal(18); FL.stamp(3)
    FL.wait(19, 4, sleep=1)
    FL.label('L_F_no0n')
    FL(f'''
    s_lshl_b32 s{T4}, s{S_J}, 6
    s_and_b32 s{T2}, s{S_LW}, 1
    s_mul_i32 s{T2}, s{T2}, {20*16*3456}
    s_add_u32 s{T4}, s{T4}, s{T2}
    s_cmp_ge_u32 s{S_LW}, 2
    s_cselect_b32 s{S_CB}, s{P_WU}, s{P_WG}
    s_cselect_b32 s{S_CB+1}, s{P_WU+1}, s{P_WG+1}
    s_mul_i32 s{T5}, s{S_LW}, 20480
    ''')
    load_seq(FL, S_CB, T4, 16 * 3456, 20, [5], s_lds=T5, lds_const=L_WG6)
    FL('s_waitcnt vmcnt(0)'); FL.signal(13); FL.stamp(5)
    FL('s_branch L_fin')
    FL.label('L_T5_l')
    dma_voff(FL, 5, 64, 1280, 3, 4)
    FL(f'''
    s_lshr_b32 s{T4}, s{S_R}, 1
    s_lshl_b32 s{T4}, s{T4}, 6
    s_and_b32 s{T2}, s{S_R}, 1
    s_mul_i32 s{T2}, s{T2}, {2048*1280}
    s_add_u32 s{T4}, s{T4}, s{T2}
    s_mul_i32 s{T2}, s{S_LW}, {512*1280}
    s_add_u32 s{T4}, s{T4}, s{T2}
    s_lshl_b32 s{T5}, s{S_LW}, 15
    ''')
    load_seq(FL, P_WO, T4, 16 * 1280, 32, [5], s_lds=T5, lds_const=L_WO)
    FL('s_waitcnt vmcnt(0)'); FL.signal(10); FL.stamp(4)
    FL('s_branch L_fin')
    FL.label('L_T7_l')
    FL(f's_cmp_ge_u32 s{S_J}, 20\ns_cbranch_scc1 L_fin')
    dma_voff(FL, 5, 64, 1280, 3, 4)
    FL(f'''
    s_lshl_b32 s{T4}, s{S_J}, 6
    s_mul_i32 s{T2}, s{S_LW}, {27*16*1280}
    s_add_u32 s{T4}, s{T4}, s{T2}
    s_mul_i32 s{T5}, s{S_LW}, {27*1024}
    ''')
    load_seq(FL, P_WD, T4, 16 * 1280, 27, [5], s_lds=T5, lds_const=L_WD)
    FL('s_waitcnt vmcnt(0)'); FL.signal(10); FL.stamp(4)
    FL('s_branch L_fin')
    C(f's_cmp_ge_u32 s{S_J5}, 5\ns_cbranch_scc1 L_B_no0n')
    C.wait(5, 4)
    p0tile(C, 1280 * 16, S_R, 18, 19)
    C.label('L_B_no0n')
    C(f's_mov_b32 s{T0}, 0')
    aaddr(C, 8, L_ACT, ACTP, T0, 9)
    CA = C
    L_A12 = 98304; A12P = ACTP
    CA(f'''
    v_add_u32 v5, 512, v3
    v_min_u32 v5, 639, v5
    v_lshlrev_b32 v4, 4, v3
    v_lshlrev_b32 v6, 4, v5
    v_add_u32 v7, 4096, v4
    v_lshlrev_b32 v10, 1, v3
    v_lshlrev_b32 v11, 1, v5
    v_add_u32 v12, 512, v10
    ''')
    for b_ in range(4):
        CA(f'global_load_ushort v{108+b_}, v10, {sp(P_X)} offset:{1280*b_}')
        CA(f'global_load_ushort v{112+b_}, v12, {sp(P_X)} offset:{1280*b_}')
        CA(f'global_load_ushort v{116+b_}, v11, {sp(P_X)} offset:{1280*b_}')
    CA(f'''
    v_add_u32 v12, {W_E0}, v4
    v_add_u32 v13, {W_E0}, v7
    v_add_u32 v14, {W_E0}, v6
    ''')
    loads = []; checks = []
    for k, base in enumerate((1280, 1920, 2560)):
        for ci in range(3):
            CA(f'v_add_u32 v{200+3*k+ci}, {base*16}, v{12+ci}')
            r = 160 + 12 * k + 4 * ci
            loads.append(f'global_load_dwordx4 v[{r}:{r+3}], v{200+3*k+ci}, {sp(P_WS)} sc1')
            checks += [(r + 2, r + 3)]
    poll_loop(CA, loads, checks)
    CA(f'''
    v_add_u32 v12, {W_E5}, v4
    v_add_u32 v13, {W_E5}, v7
    v_add_u32 v14, {W_E5}, v6
    v_add_u32 v15, {640*16}, v12
    v_add_u32 v16, {640*16}, v13
    v_add_u32 v17, {640*16}, v14
    ''')
    permaddr(CA, 20, 3, 56, 57); CA(f'v_add_u32 v20, {L_A12}, v20')
    permaddr(CA, 21, 5, 56, 57); CA(f'v_add_u32 v21, {L_A12}, v21')
    for ci, (ar, off) in enumerate([(20, 0), (20, 512), (21, 0)]):
        for b_ in range(4): CA(f'v_lshlrev_b32 v{108+4*ci+b_}, 16, v{108+4*ci+b_}')
        for half in range(2):
            o = 4 * ci + 2 * half
            unpack(CA, 120 + o, 121 + o, 160 + 4 * ci + half)
            unpack(CA, 96 + o, 97 + o, 184 + 4 * ci + half)
            CA(f'''
            v_add_f32 v{96+o}, 1.0, v{96+o}
            v_add_f32 v{97+o}, 1.0, v{97+o}
            v_cvt_pk_bf16_f32 v90, v{96+o}, v{97+o}
            ds_write_b16 v{ar}, v90 offset:{off + (4+2*half)*A12P}
            ds_write_b16_d16_hi v{ar}, v90 offset:{off + (5+2*half)*A12P}
            ds_write_b16 v{ar}, v{172+4*ci+half} offset:{off + (8+2*half)*A12P}
            ds_write_b16_d16_hi v{ar}, v{172+4*ci+half} offset:{off + (9+2*half)*A12P}
            ''')
            unpack(CA, 96 + o, 97 + o, 90)
    CA(f's_and_b32 s{T4}, s{S_WAVE}, 1')
    trpat(CA, 10, 64, T4, 18, 19)
    CA(f'''
    s_lshr_b32 s{T0}, s{S_WAVE}, 1
    s_mul_i32 s{T0}, s{T0}, 40960
    v_add_u32 v10, s{T0}, v10
    s_lshl_b32 s{T0}, s{S_WAVE}, 5
    s_add_u32 s{T0}, s{T0}, {L_RED}
    v_mov_b32 v18, s{T0}
    v_and_b32 v19, 3, v1
    v_lshlrev_b32 v19, 2, v19
    v_add_u32 v19, {L_RED}, v19
    v_cmp_gt_u32 vcc, 128, v3
    s_and_b32 s{T0}, s{S_WAVE}, 1
    s_lshl_b32 s{T1}, s{T0}, 10
    s_add_u32 s{T1}, s{T1}, {L_RED4}
    v_lshl_add_u32 v22, v0, 4, s{T1}
    s_lshl_b32 s{T1}, s{S_J}, 1
    s_add_u32 s{T0}, s{T0}, s{T1}
    s_lshl_b32 s{T0}, s{T0}, 8
    s_add_u32 s{T0}, s{T0}, {W_E6}
    v_lshlrev_b32 v23, 6, v1
    v_lshl_add_u32 v23, v2, 4, v23
    v_add_u32 v23, s{T0}, v23
    s_mov_b64 {sp(S_M)}, vcc
    v_cmp_gt_u32 vcc, 12, v1
    v_and_b32 v24, 3, v1
    s_nop 0
    v_cndmask_b32 v24, v24, v1, vcc
    v_mul_u32_u24 v8, {A12P}, v24
    v_lshlrev_b32 v24, 4, v2
    v_add_u32 v8, v8, v24
    v_add_u32 v8, {L_A12}, v8
    ''')
    CA.wait(13, 4, sleep=1)
    prewt(CA, 20, 10, 2048, 1024, 160)
    loads = [f'global_load_dwordx4 v[{64+4*i}:{67+4*i}], v{12+i}, {sp(P_WS)} sc1' for i in range(6)]
    poll2(CA, loads, [(66 + 4 * i, 67 + 4 * i) for i in range(6)], -32)
    CA.stamp(14)
    for ci, (ar, off) in enumerate([(20, 0), (20, 512), (21, 0)]):
        for half in range(2):
            o = 4 * ci + 2 * half
            unpack(CA, 90, 91, 64 + 4 * ci + half)
            unpack(CA, 92, 93, 76 + 4 * ci + half)
            CA(f'''
            v_pk_add_f32 v[90:91], v[90:91], v[92:93]
            v_pk_fma_f32 v[90:91], v[90:91], v[{120+o}:{121+o}], v[{108+o}:{109+o}]
            v_cvt_pk_bf16_f32 v90, v90, v91
            ''')
            unpack(CA, 132 + o, 133 + o, 90)
            CA(f'''
            v_pk_mul_f32 v[90:91], v[{132+o}:{133+o}], v[{96+o}:{97+o}]
            v_cvt_pk_bf16_f32 v90, v90, v91
            ds_write_b16 v{ar}, v90 offset:{off + (2*half)*A12P}
            ds_write_b16_d16_hi v{ar}, v90 offset:{off + (2*half+1)*A12P}
            ''')
    CA.signal(14)
    for b_ in range(4):
        CA(f'''
        v_cndmask_b32 v90, 0, v{140+b_}, {sp(S_M)}
        v_add_f32 v{144+b_}, v{132+b_}, v{136+b_}
        v_add_f32 v{144+b_}, v{144+b_}, v90
        v_mul_f32 v{148+b_}, v{132+b_}, v{132+b_}
        v_fmac_f32 v{148+b_}, v{136+b_}, v{136+b_}
        v_fmac_f32 v{148+b_}, v90, v90
        ''')
    for m in ('quad_perm:[1,0,3,2]', 'quad_perm:[2,3,0,1]', 'row_half_mirror', 'row_mirror'):
        for r in range(8):
            CA('v_add_f32_dpp v%d, v%d, v%d %s row_mask:0xf bank_mask:0xf' % (144 + r, 144 + r, 144 + r, m))
    for r in range(8): CA(f'v_mov_b32 v{152+r}, v{144+r}')
    for r in range(8): CA(f'v_permlane16_swap_b32 v{144+r}, v{152+r}')
    for r in range(8): CA(f'v_add_f32 v{144+r}, v{144+r}, v{152+r}')
    for r in range(8): CA(f'v_mov_b32 v{152+r}, v{144+r}')
    for r in range(8): CA(f'v_permlane32_swap_b32 v{144+r}, v{152+r}')
    for r in range(8): CA(f'v_add_f32 v{144+r}, v{144+r}, v{152+r}')
    exec_set(CA, '1')
    CA('ds_write_b128 v18, v[144:147]\nds_write_b128 v18, v[148:151] offset:16')
    exec_restore(CA)
    CA.signal(12)
    CA.wait(14, 4)
    CA('s_waitcnt vmcnt(0)')
    gemv3(CA, 20, 8, 160, 64, ACC, swap=True)
    CA.wait(12, 4)
    for w in range(4):
        CA(f'ds_read_b32 v{144+w}, v19 offset:{32*w}')
        CA(f'ds_read_b32 v{148+w}, v19 offset:{32*w+16}')
    CA(f'''
    v_mov_b32_dpp v64, v28 row_shl:4 row_mask:0xf bank_mask:0xf
    v_mov_b32_dpp v65, v29 row_shl:4 row_mask:0xf bank_mask:0xf
    v_mov_b32_dpp v66, v30 row_shl:4 row_mask:0xf bank_mask:0xf
    v_mov_b32_dpp v67, v31 row_shl:4 row_mask:0xf bank_mask:0xf
    v_mov_b32_dpp v68, v28 row_shl:8 row_mask:0xf bank_mask:0xf
    v_mov_b32_dpp v69, v29 row_shl:8 row_mask:0xf bank_mask:0xf
    v_mov_b32_dpp v70, v30 row_shl:8 row_mask:0xf bank_mask:0xf
    v_mov_b32_dpp v71, v31 row_shl:8 row_mask:0xf bank_mask:0xf
    s_mov_b32 s{T1}, {fl(1.0/640)}
    s_waitcnt lgkmcnt(0)
    v_add_f32 v144, v144, v145
    v_add_f32 v146, v146, v147
    v_add_f32 v148, v148, v149
    v_add_f32 v150, v150, v151
    v_add_f32 v144, v144, v146
    v_add_f32 v148, v148, v150
    v_mul_f32 v144, s{T1}, v144              ; mean
    v_mul_f32 v148, s{T1}, v148
    v_fma_f32 v148, -v144, v144, v148
    v_add_f32 v148, {fl(1e-5)}, v148
    v_rsq_f32 v148, v148                     ; rstd
    ''')
    for r in range(4): CA(f'v_fma_f32 v{28+r}, -v144, v{64+r}, v{28+r}')
    for r in range(4): CA(f'v_fma_f32 v{28+r}, v{28+r}, v148, v{68+r}')
    lskip = CA.newl('p6w')
    CA(f'''
    s_cmp_lt_u32 s{S_WAVE}, 2
    s_cbranch_scc1 {lskip}
    ds_write_b128 v22, v[28:31]
    ''')
    CA.signal(15)
    CA('s_branch L_fin')
    CA.label(lskip)
    CA(f'''
    s_mov_b32 s{T0}, {fl(0.044715)}
    s_mov_b32 s{T1}, {fl(-2.0 * 0.7978845608028654 * LOG2E)}
    ''')
    for r in range(4): CA(f'v_mul_f32 v{70+r}, v{28+r}, v{28+r}')
    for r in range(4): CA(f'v_mul_f32 v{70+r}, s{T0}, v{70+r}')
    for r in range(4): CA(f'v_fma_f32 v{70+r}, v{70+r}, v{28+r}, v{28+r}')
    for r in range(4): CA(f'v_mul_f32 v{70+r}, s{T1}, v{70+r}')
    for r in range(4): CA(f'v_exp_f32 v{70+r}, v{70+r}')
    for r in range(4): CA(f'v_add_f32 v{70+r}, 1.0, v{70+r}')
    for r in range(4): CA(f'v_rcp_f32 v{70+r}, v{70+r}')
    for r in range(4): CA(f'v_mul_f32 v{28+r}, v{28+r}, v{70+r}')
    CA.wait(15, 6)
    CA('ds_read_b128 v[64:67], v22\ns_waitcnt lgkmcnt(0)')
    for r in range(4): CA(f'v_mul_f32 v{28+r}, v{28+r}, v{64+r}')
    exec_set(CA, sp(S_M4))
    store_granule(CA, 23)
    exec_restore(CA)
    CA.stamp(15)
    CA('s_branch L_fin')

    CB = Prog(stamps)
    CB.label('L_T5_c')
    red_regs(CB)
    tag_setup(CB)
    CB(f'''
    s_and_b32 s{S_K}, s{S_R}, 1
    s_lshl_b32 s{T0}, s{S_K}, 13
    s_add_u32 s{T0}, s{T0}, {W_E4}
    v_lshl_add_u32 v4, v3, 4, s{T0}
    v_add_u32 v5, 4096, v4
    ''')
    loads = []; checks = []
    for b in range(4):
        for hf in range(2):
            i = 2 * b + hf
            if b: CB(f'v_add_u32 v{10+i}, {16384*b}, v{4+hf}')
            else: CB(f'v_mov_b32 v{10+i}, v{4+hf}')
            loads.append(f'global_load_dwordx4 v[{64+4*i}:{67+4*i}], v{10+i}, {sp(P_WS)} sc1')
            checks += [(66 + 4 * i, 67 + 4 * i)]
    granaddr(CB, 20, 3, 22)
    CB(f'''
    v_add_u32 v20, {L_ACT5}, v20
    s_lshr_b32 s{T0}, s{S_WAVE}, 1
    s_lshl_b32 s{T0}, s{T0}, 11              ; kq*32*64
    ''')
    aaddr(CB, 8, L_ACT5, ACT5P, T0, 9)
    CB(f's_and_b32 s{T4}, s{S_WAVE}, 1')
    trpat(CB, 9, 64, T4, 18, 19)
    CB(f'''
    s_lshr_b32 s{T0}, s{S_WAVE}, 1
    s_lshl_b32 s{T0}, s{T0}, 16              ; kq*32*2048
    v_add_u32 v9, s{T0}, v9
    s_mul_i32 s{T0}, s{S_K}, 640
    s_lshr_b32 s{T1}, s{S_R}, 1
    s_lshl_b32 s{T1}, s{T1}, 5
    s_add_u32 s{T0}, s{T0}, s{T1}
    s_lshl_b32 s{T1}, s{T4}, 4
    s_add_u32 s{T0}, s{T0}, s{T1}
    s_lshl_b32 s{T0}, s{T0}, 4
    s_add_u32 s{T0}, s{T0}, {W_E5}
    v_lshl_add_u32 v21, v1, 4, s{T0}
    ''')
    CB.wait(10, 4, sleep=1)
    prewt(CB, 32, 9, 2048, 1024, 128)
    poll2(CB, loads, checks, 32)
    CB.stamp(11)
    for b in range(4):
        for hf in range(2):
            i = 2 * b + hf
            CB(f'ds_write_b64 v20, v[{64+4*i}:{65+4*i}] offset:{b*ACT5P + hf*2048}')
    CB.signal(11); CB.wait(11, 4)
    CB('s_waitcnt vmcnt(0)')
    CB.stamp(12)
    for hb in range(2):
        for i in range(16): CB('ds_read_b128 %s, v8 offset:%d' % (vr(64 + 4 * i, 4), (16 * hb + i) * 64))
        for i in range(16):
            CB('s_waitcnt lgkmcnt(%d)' % min(15, 15 - i))
            c = '0' if (hb == 0 and i == 0) else vr(ACC, 4)
            CB('v_mfma_f32_16x16x32_bf16 %s, %s, %s, %s' % (vr(ACC, 4), vr(64 + 4 * i, 4), vr(128 + 4 * (16 * hb + i), 4), c))
    pair_reduce(CB, 12, 'L_fin')
    exec_set(CB, '0xffff')
    store_granule(CB, 21)
    exec_restore(CB)
    CB.stamp(13)
    CB('s_branch L_fin')
    CC = Prog(stamps)
    CC.label('L_T7_c')
    CC(f's_cmp_ge_u32 s{S_J}, 20\ns_cbranch_scc1 L_fin')
    red_regs(CC)
    tag_setup(CC)
    CC(f'''
    s_lshl_b32 s{T0}, s{S_J}, 5
    s_and_b32 s{T4}, s{S_WAVE}, 1
    s_lshl_b32 s{T1}, s{T4}, 4
    s_add_u32 s{T0}, s{T0}, s{T1}
    v_add_u32 v5, s{T0}, v1                  ; col
    v_lshlrev_b32 v19, 1, v5
    ''')
    for b in range(4): CC(f'global_load_ushort v{96+b}, v19, {sp(P_X)} offset:{1280*b}')
    CC(f'''
    v_lshlrev_b32 v4, 4, v5
    v_add_u32 v11, {W_E0 + 1280*16}, v4
    v_add_u32 v12, {W_E0 + 3200*16}, v4
    v_add_u32 v13, {W_E5}, v4
    v_add_u32 v14, {W_E5 + 640*16}, v4
    v_add_u32 v5, 256, v3
    v_min_u32 v5, 431, v5
    v_lshrrev_b32 v4, 2, v3
    v_lshlrev_b32 v4, 8, v4
    v_and_b32 v6, 3, v3
    v_lshl_add_u32 v4, v6, 4, v4
    v_add_u32 v4, {W_E6}, v4
    v_lshrrev_b32 v6, 2, v5
    v_lshlrev_b32 v6, 8, v6
    v_and_b32 v7, 3, v5
    v_lshl_add_u32 v6, v7, 4, v6
    v_add_u32 v6, {W_E6}, v6
    ''')
    granaddr(CC, 20, 3, 22); CC(f'v_add_u32 v20, {L_ACT7}, v20')
    granaddr(CC, 21, 5, 22); CC(f'v_add_u32 v21, {L_ACT7}, v21')
    CC(f'''
    s_lshr_b32 s{T0}, s{S_WAVE}, 1
    s_mul_i32 s{T0}, s{T0}, {27*64}
    ''')
    aaddr(CC, 8, L_ACT7, ACT7P, T0, 9)
    trpat(CC, 9, 64, T4, 16, 17)
    CC(f'''
    s_lshr_b32 s{T0}, s{S_WAVE}, 1
    s_mul_i32 s{T0}, s{T0}, {27*2048}
    v_add_u32 v9, s{T0}, v9
    ''')
    CC.wait(10, 4, sleep=1)
    prewt(CC, 27, 9, 2048, 1024, 128)
    poll_loop(CC, [f'global_load_dwordx4 v[108:111], v11, {sp(P_WS)} sc1', f'global_load_dwordx4 v[240:243], v12, {sp(P_WS)} sc1',
                   f'global_load_dwordx4 v[116:119], v13, {sp(P_WS)} sc1', f'global_load_dwordx4 v[120:123], v14, {sp(P_WS)} sc1'],
              [(110, 111), (242, 243), (118, 119), (122, 123)])
    for half in range(2):
        unpack(CC, 90, 91, 116 + half)
        unpack(CC, 92, 93, 120 + half)
        unpack(CC, 94, 95, 108 + half)
        CC(f'''
        v_add_f32 v90, v90, v92
        v_add_f32 v91, v91, v93
        v_lshlrev_b32 v92, 16, v{96+2*half}
        v_lshlrev_b32 v93, 16, v{97+2*half}
        v_fma_f32 v90, v90, v94, v92
        v_fma_f32 v91, v91, v95, v93
        v_cvt_pk_bf16_f32 v90, v90, v91
        ''')
        unpack(CC, 40 + 2 * half, 41 + 2 * half, 90)
        unpack(CC, 44 + 2 * half, 45 + 2 * half, 240 + half)
    loads = []; checks = []
    for b in range(4):
        for hf in range(2):
            i = 2 * b + hf
            loads.append(f'global_load_dwordx4 v[{64+4*i}:{67+4*i}], v{4 if hf == 0 else 6}, {sp(P_WS)} offset:{64*b} sc1')
            checks += [(66 + 4 * i, 67 + 4 * i)]
    poll2(CC, loads, checks, 32)
    CC.stamp(11)
    for b in range(4):
        CC(f'ds_write_b64 v20, v[{64+8*b}:{65+8*b}] offset:{b*ACT7P}')
        CC(f'ds_write_b64 v21, v[{68+8*b}:{69+8*b}] offset:{b*ACT7P}')
    CC.signal(11); CC.wait(11, 4)
    CC('s_waitcnt vmcnt(0)')
    CC.stamp(12)
    for (s0, n) in ((0, 14), (14, 13)):
        for i in range(n): CC('ds_read_b128 %s, v8 offset:%d' % (vr(64 + 4 * i, 4), (s0 + i) * 64))
        for i in range(n):
            CC('s_waitcnt lgkmcnt(%d)' % min(15, n - 1 - i))
            c = '0' if (s0 == 0 and i == 0) else vr(ACC, 4)
            CC('v_mfma_f32_16x16x32_bf16 %s, %s, %s, %s' % (vr(ACC, 4), vr(64 + 4 * i, 4), vr(128 + 4 * (s0 + i), 4), c))
    pair_reduce(CC, 12, 'L_fin')
    exec_set(CC, '0xffff')
    CC(f'''
    v_pk_fma_f32 v[28:29], v[28:29], v[44:45], v[40:41]
    v_pk_fma_f32 v[30:31], v[30:31], v[46:47], v[42:43]
    v_cvt_pk_bf16_f32 v64, v28, v29
    v_cvt_pk_bf16_f32 v65, v30, v31
    global_store_short v19, v64, {sp(P_OUT)}
    global_store_short_d16_hi v19, v64, {sp(P_OUT)} offset:1280
    global_store_short v19, v65, {sp(P_OUT)} offset:2560
    global_store_short_d16_hi v19, v65, {sp(P_OUT)} offset:3840
    ''')
    exec_restore(CC)
    lskip = CC.newl('p7f')
    CC(f'''
    s_cmp_lg_u32 s{S_J}, 0
    s_cbranch_scc1 {lskip}
    s_cmp_lg_u32 s{S_WAVE}, 0
    s_cbranch_scc1 {lskip}
    v_mov_b32 v4, 0
    v_mov_b32 v5, s{S_TAG}
    ''')
    exec_set(CC, '1')
    CC(f'global_store_dword v4, v5, {sp(P_WS)} sc1')
    exec_restore(CC)
    CC.label(lskip)
    CC.stamp(13)
    F = Prog(stamps)
    F.label('L_fin')
    if stamps:
        F(f'''
        s_memrealtime {sp(S_STAMP + 2*15)}
        s_waitcnt lgkmcnt(0)
        s_lshl_b32 s{T0}, s2, 10
        s_lshl_b32 s{T1}, s{S_WAVE}, 7
        s_add_u32 s{T0}, s{T0}, s{T1}
        s_add_u32 s{T0}, s{T0}, {W_STAMP}
        v_mov_b32 v4, s{T0}
        s_mov_b64 exec, 1
        ''')
        for i in range(16):
            F(f'v_mov_b32 v5, s{S_STAMP+2*i}\nglobal_store_dword v4, v5, {sp(P_WS)} offset:{4*i}')
        if DBGOUT:
            sel = [(0, 0), (248, 0), (16 * 8, 3), (16 * 8, 4), (24 * 8, 5), (24 * 8, 6), (0, 7), (0, 9), (0, 10), (0, 11), (0, 13), (27 * 8, 13), (16 * 8, 14), (16 * 8, 15), (24 * 8, 13), (28 * 8, 2)]
            F(f's_cmp_lg_u32 s{S_WAVE}, 0\ns_cbranch_scc1 L_dbgdone\nv_mov_b32 v4, 0')
            for slot, (wg, si) in enumerate(sel):
                lab = F.newl('dg')
                F(f's_cmp_lg_u32 s2, {wg}\ns_cbranch_scc1 {lab}\nv_mov_b32 v5, s{S_STAMP+2*si}\nglobal_store_dword v4, v5, {sp(P_DBG)} offset:{4*slot}')
                F.label(lab)
            F.label('L_dbgdone')
    F('s_endpgm')
    body = (H.text() + FL.text() + FC.text() + AL.text() + AC.text() + CB.text() + CC.text() + F.text() + 'L_codeend:\n') if ORDER else (H.text() + AC.text() + FC.text() + CB.text() + CC.text() + F.text() + AL.text() + FL.text() + 'L_codeend:\n')
    return body

HEADER = open('adaLN_cond__compressed_kv_cla__glu_gated_geglu__decode.s.ref').read().split('; @launch')[0]

def full(stamps=False):
    body = gen(stamps)
    return (HEADER + f'; @launch grid=(256,1,1) block=(512,1,1) lds={LDS_BYTES}\n' +
            f'''.amdgcn_target "amdgcn-amd-amdhsa--gfx950"
.text
.globl {NAME}
.p2align 8
.type {NAME},@function
{NAME}:
{body}L_end:
    s_endpgm
.section .rodata,"a"
.p2align 6
.amdhsa_kernel {NAME}
  .amdhsa_next_free_vgpr 256
  .amdhsa_next_free_sgpr 102
  .amdhsa_accum_offset 256
  .amdhsa_group_segment_fixed_size 0
  .amdhsa_kernarg_size 120
  .amdhsa_user_sgpr_count 2
  .amdhsa_user_sgpr_kernarg_segment_ptr 1
  .amdhsa_system_sgpr_workgroup_id_x 1
.end_amdhsa_kernel
''')

if __name__ == '__main__':
    stamps = len(sys.argv) > 2 and sys.argv[2] == 'stamps'
    open(sys.argv[1], 'w').write(full(stamps))
```

```python
import sys, struct

NAME = 'adaLN_cond__compressed_kv_cla__glu_gated_geglu__decode_kernel'

P_X, P_CKV, P_WQ, P_WUK, P_WUV, P_WO, P_BX, P_WG = 4, 6, 8, 10, 12, 14, 16, 18
P_WU, P_WD, P_C, P_WMOD, P_OUT, P_DBG, P_WS = 20, 22, 24, 26, 28, 30, 32
S_WAVE, S_XCD, S_IDX, S_TAG, S_TAG2, S_EP = 3, 34, 35, 36, 37, 38
S_STRIP = 39
S_LW = 40
S_J5 = 41
T0, T1, T2, T3, T4, T5 = 42, 43, 44, 45, 46, 47
S_EX = 48
S_CNT = 50
S_R = 51
S_M = 52
S_J = 54
S_K = 55
S_CB = 56
S_W = 59
S_STAMP = 60
S_SC = 92
S_EX2 = 100
S_S0 = 2
S_S0 = 0

def sp(r): return 's[%d:%d]' % (r, r + 1)
def vr(r, n=1): return 'v%d' % r if n == 1 else 'v[%d:%d]' % (r, r + n - 1)

L_CKV = 0
L_QA = 131072
L_PB = 147456
L_REDA = 155648
L_RED4 = 131072
L_CC = 147456
L_WUV = 0
L_WUK = 81920
L_WM = 0
L_WQ = 20480
L_WG6 = 0; L_WU6 = 40960
L_WMN = 0
L_WO = 0
L_WD = 0
L_ACT5 = 131072; ACT5P = 4160
L_ACT7 = 131072; ACT7P = 3648
L_ACT = 151552; ACTP = 1344
L_XNT = 156928
L_RED = 162048
L_CNT = 163072
LDS_BYTES = 163840

W_E0 = 0x1000
W_E0B = 0x11000
W_E1 = 0x20000
W_E2 = 0x40000
W_F3 = 0x80000
W_ST3 = 0x90000
W_E3 = 0x100000
W_E4 = 0x800000
W_E5 = 0x820000
W_E6 = 0x830000
W_STAMP = 0x900000

SPIN_CAP = 1 << 18
import os
NT = os.environ.get('NT', 'nt')
POLL2 = int(os.environ.get('POLL2', '0'))
PSLEEP = int(os.environ.get('PSLEEP', '0'))
DEPTH = int(os.environ.get('DEPTH', '4'))
TAILWAIT = int(os.environ.get('TAILWAIT', '1'))
TDEPTH = int(os.environ.get('TDEPTH', '16'))
LOG2E = 1.4426950408889634
M4 = '0x000f000f'

def f2u(x): return struct.unpack('<I', struct.pack('<f', x))[0]
def fl(x): return '0x%08x' % f2u(x)

UID = [0]
class Prog:
    def __init__(self, stamps):
        self.o = []; self.stamps = stamps
    def __call__(self, s):
        for line in s.strip('\n').split('\n'):
            line = line.strip()
            if line: self.o.append('    ' + line)
    def label(self, l): self.o.append(l + ':')
    def signal(self, k):
        self(f's_mov_b64 {sp(S_EX2)}, exec\ns_mov_b64 exec, 1\nds_add_u32 v61, v62 offset:{4*k}\ns_mov_b64 exec, {sp(S_EX2)}')
    def wait(self, k, target, sleep=0):
        l0 = self.newl('lw')
        self.label(l0)
        if sleep: self(f's_sleep {sleep}')
        self(f'''
        ds_read_b32 v63, v61 offset:{4*k}
        s_waitcnt lgkmcnt(0)
        v_readfirstlane_b32 s{S_W}, v63
        s_cmp_lt_u32 s{S_W}, {target}
        s_cbranch_scc1 {l0}
        ''')
    def newl(self, p):
        UID[0] += 1; return 'L_%s_%d' % (p, UID[0])
    def stamp(self, i):
        if self.stamps: self('s_memrealtime %s' % sp(S_STAMP + 2 * i))
    def text(self): return '\n'.join(self.o) + '\n'

def rowreduce(p, v, t, op='add'):
    o = 'v_%s_f32' % op
    p(f'''
    v_mov_b32 v{t}, v{v}
    s_nop 1
    v_permlane16_swap_b32 v{v}, v{t}
    s_nop 1
    {o} v{v}, v{v}, v{t}
    v_mov_b32 v{t}, v{v}
    s_nop 1
    v_permlane32_swap_b32 v{v}, v{t}
    s_nop 1
    {o} v{v}, v{v}, v{t}
    ''')

def allreduce(p, v, t, op='add'):
    o = 'v_%s_f32' % op
    for m in ('quad_perm:[1,0,3,2]', 'quad_perm:[2,3,0,1]', 'row_half_mirror', 'row_mirror'):
        p('s_nop 1')
        p('%s_dpp v%d, v%d, v%d %s row_mask:0xf bank_mask:0xf' % (o, v, v, v, m))
    p('s_nop 0')
    rowreduce(p, v, t, op)

def unpack(p, dlo, dhi, src):
    p('v_lshlrev_b32 v%d, 16, v%d' % (dlo, src))
    p('v_and_b32 v%d, 0xffff0000, v%d' % (dhi, src))

def poll_loop(p, loads, checks):
    l0 = p.newl('poll'); l1 = p.newl('polld')
    p('s_mov_b32 s%d, 0' % S_CNT)
    p.label(l0)
    for l in loads: p(l)
    p('s_add_u32 s%d, s%d, 1' % (S_CNT, S_CNT))
    p('s_waitcnt vmcnt(0)')
    first = True
    for (a, b) in checks:
        if first:
            p(f'v_xor_b32 v58, s{S_TAG}, v{a}')
            if b is not None: p(f'v_xor_b32 v59, s{S_TAG2}, v{b}')
            else: p('v_mov_b32 v59, 0')
            first = False
        else:
            p(f'v_xor_b32 v57, s{S_TAG}, v{a}')
            if b is not None:
                p(f'v_xor_b32 v56, s{S_TAG2}, v{b}')
                p('v_or3_b32 v58, v58, v57, v56')
            else:
                p('v_or_b32 v58, v58, v57')
    p('v_or_b32 v58, v58, v59')
    p('v_cmp_ne_u32 vcc, 0, v58')
    p(f's_cmp_ge_u32 s{S_CNT}, {SPIN_CAP}')
    p('s_cbranch_scc1 %s' % l1)
    if PSLEEP:
        p('s_cbranch_vccz %s' % l1)
        p(f's_sleep {PSLEEP}')
        p('s_branch %s' % l0)
    else:
        p('s_cbranch_vccnz %s' % l0)
    p.label(l1)

def gemv_steps(p, nsteps, vA, vB, acc, regs, first=True, swap=False, strideA=64, strideB=1024, offA=0, offB=0, halfB=512):
    for i in range(nsteps):
        a = regs + 8 * i; b = a + 4
        assert offB + i * strideB + halfB < 65536 and offA + i * strideA < 65536
        p('ds_read_b128 %s, v%d offset:%d' % (vr(a, 4), vA, offA + i * strideA))
        p('ds_read_b64_tr_b16 %s, v%d offset:%d' % (vr(b, 2), vB, offB + i * strideB))
        p('ds_read_b64_tr_b16 %s, v%d offset:%d' % (vr(b + 2, 2), vB, offB + i * strideB + halfB))
    for i in range(nsteps):
        a = regs + 8 * i; b = a + 4
        p('s_waitcnt lgkmcnt(%d)' % min(15, 3 * (nsteps - 1 - i)))
        c = '0' if (first and i == 0) else vr(acc, 4)
        x, y = (vr(b, 4), vr(a, 4)) if swap else (vr(a, 4), vr(b, 4))
        p('v_mfma_f32_16x16x32_bf16 %s, %s, %s, %s' % (vr(acc, 4), x, y, c))

def load_seq(p, ptr, s_off, step, count, voffs, s_lds=None, lds_const=0, dst=None, skip_last_if=None, throttle=True):
    p(f's_add_u32 s{T0}, s{ptr}, s{s_off}\ns_addc_u32 s{T1}, s{ptr+1}, 0')
    if s_lds is not None: p(f's_add_u32 m0, s{s_lds}, {lds_const}')
    for j in range(count):
        lab = None
        if skip_last_if and j == count - 1:
            lab = p.newl('dskip')
            p(skip_last_if); p('s_cbranch_scc1 %s' % lab)
        if s_lds is not None:
            p('s_nop 0')
            p('global_load_lds_dwordx4 v%d, %s %s' % (voffs[j % len(voffs)], sp(T0), NT))
        else:
            if TDEPTH and throttle and j >= TDEPTH: p(f's_waitcnt vmcnt({TDEPTH-1})')
            p('global_load_dwordx4 %s, v%d, %s %s' % (vr(dst(j), 4), voffs[j % len(voffs)], sp(T0), NT))
        if lab: p.label(lab)
        if j + 1 < count:
            p(f's_add_u32 s{T0}, s{T0}, {step}\ns_addc_u32 s{T1}, s{T1}, 0')
            if s_lds is not None: p('s_add_u32 m0, m0, 1024')

def ckv_f_const(j):
    k2 = j & 1; k3 = (j >> 1) & 1
    return (((k2 ^ k3) << 3) | k3)

def permaddr(p, dst, m, t1, t2):
    p(f'''
    v_and_b32 v{dst}, 0xffffffe0, v{m}
    v_lshlrev_b32 v{dst}, 1, v{dst}
    v_bfe_u32 v{t1}, v{m}, 2, 2
    v_lshlrev_b32 v{t1}, 4, v{t1}
    v_bfe_u32 v{t2}, v{m}, 4, 1
    v_lshlrev_b32 v{t2}, 3, v{t2}
    v_add3_u32 v{dst}, v{dst}, v{t1}, v{t2}
    v_and_b32 v{t1}, 3, v{m}
    v_lshlrev_b32 v{t1}, 1, v{t1}
    v_add_u32 v{dst}, v{dst}, v{t1}
    ''')

def granaddr(p, dst, gi, t1):
    p(f'''
    v_lshrrev_b32 v{dst}, 3, v{gi}
    v_lshlrev_b32 v{dst}, 6, v{dst}
    v_and_b32 v{t1}, 3, v{gi}
    v_lshl_add_u32 v{dst}, v{t1}, 4, v{dst}
    v_bfe_u32 v{t1}, v{gi}, 2, 1
    v_lshl_add_u32 v{dst}, v{t1}, 3, v{dst}
    ''')

def exec_set(p, mask): p(f's_mov_b64 {sp(S_EX)}, exec\ns_mov_b64 exec, {mask}')
def exec_restore(p): p(f's_mov_b64 exec, {sp(S_EX)}')
S_M4 = 96

V_REDR = 26
V_REDW = 27
V_REDR2 = 22
V_REDW2 = 23
ACC = 28

def red_write(p, rowfmt=False):
    p('s_nop 7')
    exec_set(p, sp(S_M4) if rowfmt else '0xffff')
    p(f'ds_write_b128 v{V_REDW2 if rowfmt else V_REDW}, v[28:31]')
    exec_restore(p)

def red_sum(p, rowfmt=False):
    a = V_REDR2 if rowfmt else V_REDR
    p(f'''
    ds_read_b128 v[28:31], v{a}
    ds_read_b128 v[64:67], v{a} offset:256
    ds_read_b128 v[68:71], v{a} offset:512
    ds_read_b128 v[72:75], v{a} offset:768
    s_waitcnt lgkmcnt(2)
    v_pk_add_f32 v[28:29], v[28:29], v[64:65]
    v_pk_add_f32 v[30:31], v[30:31], v[66:67]
    s_waitcnt lgkmcnt(0)
    v_pk_add_f32 v[68:69], v[68:69], v[72:73]
    v_pk_add_f32 v[70:71], v[70:71], v[74:75]
    v_pk_add_f32 v[28:29], v[28:29], v[68:69]
    v_pk_add_f32 v[30:31], v[30:31], v[70:71]
    ''')

def store_granule(p, vaddr):
    p(f'''
    v_cvt_pk_bf16_f32 v64, v28, v29
    v_cvt_pk_bf16_f32 v65, v30, v31
    v_mov_b32 v66, s{S_TAG}
    v_mov_b32 v67, s{S_TAG2}
    global_store_dwordx4 v{vaddr}, v[64:67], {sp(P_WS)} sc1
    ''')


def gemv2(p, nsteps, vA, vB, strideB, halfB, acc, swap=False, strideA=64, offA=0, offB=0, first=True, banks=(64, 160), batch=12, vtmp=(56, 57)):
    maxoff = offB + (nsteps - 1) * strideB + halfB
    nb = maxoff // 65536 + 1
    bases = [vB]
    for k in range(1, nb):
        p(f'v_add_u32 v{vtmp[k-1]}, {k*65536}, v{vB}')
        bases.append(vtmp[k - 1])
    def rd(i):
        r = banks[(i // batch) % 2] + 8 * (i % batch)
        p('ds_read_b128 %s, v%d offset:%d' % (vr(r, 4), vA, offA + i * strideA))
        for h, o in enumerate((offB + i * strideB, offB + i * strideB + halfB)):
            p('ds_read_b64_tr_b16 %s, v%d offset:%d' % (vr(r + 4 + 2 * h, 2), bases[o // 65536], o % 65536))
    issued = 0
    def issue_upto(n):
        nonlocal issued
        while issued < min(n, nsteps):
            rd(issued); issued += 1
    issue_upto(2 * batch)
    for i in range(nsteps):
        r = banks[(i // batch) % 2] + 8 * (i % batch)
        p('s_waitcnt lgkmcnt(%d)' % min(15, 3 * (issued - 1 - i)))
        c = '0' if (first and i == 0) else vr(acc, 4)
        x, y = (vr(r + 4, 4), vr(r, 4)) if swap else (vr(r, 4), vr(r + 4, 4))
        p('v_mfma_f32_16x16x32_bf16 %s, %s, %s, %s' % (vr(acc, 4), x, y, c))
        if (i + 1) % batch == 0: issue_upto(i + 1 + 2 * batch)

def trpat(p, dst, pitch, s_tile, t1, t2):
    if pitch == 64:
        p(f'''
        v_lshrrev_b32 v{t1}, 2, v1
        v_lshl_add_u32 v{t1}, v2, 2, v{t1}          ; row = 4g+r
        v_lshlrev_b32 v{dst}, 6, v{t1}
        v_bfe_u32 v{t1}, v1, 1, 1                   ; c4>>1
        v_and_b32 v{t2}, 1, v2
        v_lshlrev_b32 v{t2}, 1, v{t2}
        v_xor_b32 v{t1}, v{t1}, v{t2}
        s_lshl_b32 s{T5}, s{s_tile}, 1
        v_xor_b32 v{t1}, s{T5}, v{t1}
        v_lshl_add_u32 v{dst}, v{t1}, 4, v{dst}
        v_and_b32 v{t1}, 1, v1
        v_lshl_add_u32 v{dst}, v{t1}, 3, v{dst}
        ''')
    else:
        p(f'''
        v_lshrrev_b32 v{t1}, 2, v1
        v_lshl_add_u32 v{t1}, v2, 2, v{t1}          ; row
        v_lshlrev_b32 v{dst}, 7, v{t1}
        v_bfe_u32 v{t1}, v{t1}, 1, 2                ; (row>>1)&3
        v_lshlrev_b32 v{t1}, 1, v{t1}
        v_bfe_u32 v{t2}, v1, 1, 1
        v_xor_b32 v{t1}, v{t1}, v{t2}
        s_lshl_b32 s{T5}, s{s_tile}, 1
        v_xor_b32 v{t1}, s{T5}, v{t1}
        v_lshl_add_u32 v{dst}, v{t1}, 4, v{dst}
        v_and_b32 v{t1}, 1, v1
        v_lshl_add_u32 v{dst}, v{t1}, 3, v{dst}
        ''')

def dma_voff(p, dst, seg, pitch, t1, t2):
    if seg == 64:
        p(f'''
        v_lshrrev_b32 v{t1}, 2, v0                  ; row
        v_and_b32 v{t2}, 3, v0
        v_bfe_u32 v{dst}, v0, 4, 1
        v_lshlrev_b32 v{dst}, 1, v{dst}
        v_xor_b32 v{t2}, v{t2}, v{dst}
        v_lshlrev_b32 v{t2}, 4, v{t2}
        s_mov_b32 s{T5}, {pitch}
        v_mul_lo_u32 v{dst}, v{t1}, s{T5}
        v_add_u32 v{dst}, v{dst}, v{t2}
        ''')
    else:
        p(f'''
        v_lshrrev_b32 v{t1}, 3, v0                  ; row
        v_and_b32 v{t2}, 7, v0
        v_bfe_u32 v{dst}, v0, 4, 2                  ; (row>>1)&3
        v_lshlrev_b32 v{dst}, 1, v{dst}
        v_xor_b32 v{t2}, v{t2}, v{dst}
        v_lshlrev_b32 v{t2}, 4, v{t2}
        s_mov_b32 s{T5}, {pitch}
        v_mul_lo_u32 v{dst}, v{t1}, s{T5}
        v_add_u32 v{dst}, v{dst}, v{t2}
        ''')

def act_prep(C, do_silu=True, do_ln=True, pre=None, cnt=0):
    C(f'''
    s_mul_i32 s{T0}, s{S_WAVE}, 1280
    v_lshlrev_b32 v4, 2, v0
    v_add_u32 v4, s{T0}, v4
    ''')
    if do_silu:
        for i in range(5): C(f'global_load_dword v{10+i}, v4, {sp(P_C)} offset:{256*i}')
    if do_ln:
        for i in range(5): C(f'global_load_dword v{15+i}, v4, {sp(P_X)} offset:{256*i}')
    C(f'''
    v_lshlrev_b32 v6, 6, v2
    v_bfe_u32 v7, v0, 1, 2
    v_lshlrev_b32 v7, 4, v7
    v_bfe_u32 v8, v0, 3, 1
    v_lshlrev_b32 v8, 3, v8
    v_and_b32 v9, 1, v0
    v_lshlrev_b32 v9, 2, v9
    v_add3_u32 v6, v6, v7, v8
    s_mul_i32 s{T0}, s{S_WAVE}, {ACTP}
    s_add_u32 s{T0}, s{T0}, {L_ACT}
    v_add3_u32 v6, v6, v9, s{T0}
    s_mov_b32 s{T1}, {fl(-LOG2E)}
    ''')
    if do_silu:
        C(f's_waitcnt vmcnt({5 if do_ln else 0})')
        for i in range(5):
            unpack(C, 20, 21, 10 + i)
            C(f'''
            v_mul_f32 v22, s{T1}, v20
            v_mul_f32 v23, s{T1}, v21
            v_exp_f32 v22, v22
            v_exp_f32 v23, v23
            s_nop 0
            v_add_f32 v22, 1.0, v22
            v_add_f32 v23, 1.0, v23
            v_rcp_f32 v22, v22
            v_rcp_f32 v23, v23
            s_nop 0
            v_mul_f32 v20, v20, v22
            v_mul_f32 v21, v21, v23
            v_cvt_pk_bf16_f32 v20, v20, v21
            ds_write_b32 v6, v20 offset:{256*i}
            ''')
        C.signal(cnt)
    if do_ln:
        C('s_waitcnt vmcnt(0)')
        for i in range(5): unpack(C, 40 + 2 * i, 41 + 2 * i, 15 + i)
        C('v_add_f32 v20, v40, v41\nv_mul_f32 v21, v40, v40\nv_fmac_f32 v21, v41, v41')
        for i in range(2, 10):
            C(f'v_add_f32 v20, v20, v{40+i}\nv_fmac_f32 v21, v{40+i}, v{40+i}')
        allreduce(C, 20, 18); allreduce(C, 21, 18)
        C(f'''
        s_mov_b32 s{T1}, {fl(1.0/640)}
        v_mul_f32 v20, s{T1}, v20
        v_mul_f32 v21, s{T1}, v21
        v_fma_f32 v21, -v20, v20, v21
        v_add_f32 v21, {fl(1e-5)}, v21
        v_rsq_f32 v21, v21
        s_lshl_b32 s{T0}, s{S_WAVE}, 1
        s_add_u32 s{T0}, s{T0}, {L_XNT}
        v_lshlrev_b32 v7, 4, v0
        v_add_u32 v7, s{T0}, v7
        ''')
        for i in range(5):
            C(f'''
            v_sub_f32 v18, v{40+2*i}, v20
            v_sub_f32 v19, v{41+2*i}, v20
            v_mul_f32 v18, v18, v21
            v_mul_f32 v19, v19, v21
            v_cvt_pk_bf16_f32 v18, v18, v19
            ds_write_b16 v7, v18 offset:{1024*i}
            ds_write_b16_d16_hi v7, v18 offset:{1024*i+8}
            ''')
        C.signal(15)

def aaddr(C, dst, lbase, pitch, s_extra, t1):
    C(f'''
    v_and_b32 v{dst}, 3, v0
    v_mul_u32_u24 v{dst}, {pitch}, v{dst}
    v_lshlrev_b32 v{t1}, 4, v2
    s_add_u32 s{T5}, s{s_extra}, {lbase}
    v_add3_u32 v{dst}, v{dst}, v{t1}, s{T5}
    ''')

def tag_setup(C):
    C(f'''
    s_waitcnt lgkmcnt(0)
    s_add_u32 s{S_TAG}, s{S_EP}, 1
    s_not_b32 s{S_TAG2}, s{S_TAG}
    ''')

def pair_reduce(C, cnt, lab_done):
    lk = C.newl('pr')
    C(f's_cmp_lt_u32 s{S_WAVE}, 2\ns_cbranch_scc1 {lk}')
    red_write(C)
    C.signal(cnt)
    C(f's_branch {lab_done}')
    C.label(lk)
    C.wait(cnt, 2)
    C(f'''
    ds_read_b128 v[64:67], v27 offset:512
    s_waitcnt lgkmcnt(0)
    v_pk_add_f32 v[28:29], v[28:29], v[64:65]
    v_pk_add_f32 v[30:31], v[30:31], v[66:67]
    ''')

def red_regs(C):
    C(f'''
    v_lshlrev_b32 v26, 4, v1
    v_add_u32 v26, {L_RED}, v26
    s_lshl_b32 s{T0}, s{S_WAVE}, 8
    v_add_u32 v27, s{T0}, v26
    ''')

def prewt(p, nsteps, vB, strideB, halfB, wbase, vtmp=(56, 57)):
    maxoff = (nsteps - 1) * strideB + halfB
    nb = maxoff // 65536 + 1
    bases = [vB]
    for k in range(1, nb):
        p(f'v_add_u32 v{vtmp[k-1]}, {k*65536}, v{vB}')
        bases.append(vtmp[k - 1])
    for i in range(nsteps):
        for hh, o in enumerate((i * strideB, i * strideB + halfB)):
            p('ds_read_b64_tr_b16 %s, v%d offset:%d' % (vr(wbase + 4 * i + 2 * hh, 2), bases[o // 65536], o % 65536))
    p('s_waitcnt lgkmcnt(0)')

def gemv3(p, nsteps, vA, wbase, abase, acc, swap=False, strideA=64, nacc=1, acc2=None):
    for i in range(nsteps):
        p('ds_read_b128 %s, v%d offset:%d' % (vr(abase + 4 * i, 4), vA, i * strideA))
    for i in range(nsteps):
        p('s_waitcnt lgkmcnt(%d)' % min(15, nsteps - 1 - i))
        a = acc if (acc2 is None or i % 2 == 0) else acc2
        c = '0' if i < (1 if acc2 is None else 2) else vr(a, 4)
        x, y = (vr(wbase + 4 * i, 4), vr(abase + 4 * i, 4)) if swap else (vr(abase + 4 * i, 4), vr(wbase + 4 * i, 4))
        p('v_mfma_f32_16x16x32_bf16 %s, %s, %s, %s' % (vr(a, 4), x, y, c))

import re as _re
def _chk(p, checks, delta):
    first = True
    for (a, b) in checks:
        a += delta; b = None if b is None else b + delta
        if first:
            p(f'v_xor_b32 v58, s{S_TAG}, v{a}')
            if b is not None: p(f'v_xor_b32 v59, s{S_TAG2}, v{b}')
            else: p('v_mov_b32 v59, 0')
            first = False
        else:
            p(f'v_xor_b32 v57, s{S_TAG}, v{a}')
            if b is not None:
                p(f'v_xor_b32 v56, s{S_TAG2}, v{b}')
                p('v_or3_b32 v58, v58, v57, v56')
            else:
                p('v_or_b32 v58, v58, v57')
    p('v_or_b32 v58, v58, v59')
    p('v_cmp_ne_u32 vcc, 0, v58')

def poll2(p, loads, checks, delta, payload=2):
    if not POLL2: return poll_loop(p, loads, checks)
    def shift(l):
        m = _re.match(r'(global_load_dword\w*) v\[(\d+):(\d+)\](.*)', l)
        return '%s v[%d:%d]%s' % (m.group(1), int(m.group(2)) + delta, int(m.group(3)) + delta, m.group(4))
    loadsB = [shift(l) for l in loads]
    n = len(loads)
    l0 = p.newl('p2'); lA = p.newl('p2a'); lB = p.newl('p2b');
    p('s_mov_b32 s%d, 0' % S_CNT)
    for l in loads: p(l)
    p.label(l0)
    for l in loadsB: p(l)
    p('s_add_u32 s%d, s%d, 1' % (S_CNT, S_CNT))
    p(f's_waitcnt vmcnt({n})')
    _chk(p, checks, 0)
    p(f's_cmp_ge_u32 s{S_CNT}, {SPIN_CAP}')
    p('s_cbranch_scc1 %s' % lA)
    p('s_cbranch_vccz %s' % lA)
    for l in loads: p(l)
    p(f's_waitcnt vmcnt({n})')
    _chk(p, checks, delta)
    p('s_cbranch_vccnz %s' % l0)
    for l in loads:
        m = _re.match(r'global_load_dword\w* v\[(\d+):(\d+)\]', l)
        a = int(m.group(1))
        for k in range(payload): p(f'v_mov_b32 v{a+k}, v{a+k+delta}')
    p.label(lA)
ADEPTH = int(os.environ.get('ADEPTH', '8'))
TTRIG = int(os.environ.get('TTRIG', '1'))
ATRIG = int(os.environ.get('ATRIG', '0'))
LIGHT = int(os.environ.get('LIGHT', '0'))
WUVWAIT = int(os.environ.get('WUVWAIT', '1'))
CODEPF = int(os.environ.get('CODEPF', '1'))
PFIDX = int(os.environ.get('PFIDX', '13'))
PFN = 6
AWARM = int(os.environ.get('AWARM', '2'))
PRIO = int(os.environ.get('PRIO', '0'))
ORDER = int(os.environ.get('ORDER', '1'))
UKLATE = int(os.environ.get('UKLATE', '1'))
UKE = int(os.environ.get('UKE', '4'))
UKPF = int(os.environ.get('UKPF', '1'))
PFPOL = os.environ.get('PFPOL', 'nt')
ATCOL = int(os.environ.get('ATCOL', '0'))
FTRIG = int(os.environ.get('FTRIG', '1'))
WUV1 = int(os.environ.get('WUV1', '12'))
REMAP = int(os.environ.get('REMAP', '1'))
DBGOUT = int(os.environ.get('DBGOUT', '0'))
ZWARM = int(os.environ.get('ZWARM', '1'))

def trig(p, off, en=True):
    if not en: return
    l0 = p.newl('tg'); l1 = p.newl('tgd')
    p(f'''
    s_load_dword s{S_EP}, {sp(P_WS)}, 0
    v_mov_b32 v20, {off}
    s_mov_b32 s{S_CNT}, 0
    s_waitcnt lgkmcnt(0)
    s_add_u32 s{S_TAG}, s{S_EP}, 1
    {l0}:
    global_load_dword v21, v20, {sp(P_WS)} offset:8 sc1
    s_add_u32 s{S_CNT}, s{S_CNT}, 1
    s_waitcnt vmcnt(0)
    v_readfirstlane_b32 s{S_W}, v21
    s_cmp_ge_u32 s{S_CNT}, {SPIN_CAP}
    s_cbranch_scc1 {l1}
    s_cmp_eq_u32 s{S_W}, s{S_TAG}
    s_cbranch_scc1 {l1}
    s_sleep 2
    s_branch {l0}
    {l1}:
    ''')

def gen(stamps=False):
    UID[0] = 0
    H = Prog(stamps)
    H(f'''
    s_cmp_ge_u32 s2, 256
    s_cbranch_scc1 L_end
    s_load_dwordx16 s[4:19], s[0:1], 0
    s_load_dwordx8 s[20:27], s[0:1], 64
    s_load_dwordx4 s[28:31], s[0:1], 96
    s_load_dwordx2 s[32:33], s[0:1], 112
    v_lshrrev_b32 v1, 6, v0
    v_and_b32 v0, 63, v0
    s_and_b32 s{S_XCD}, s2, 7
    v_readfirstlane_b32 s{S_WAVE}, v1
    s_lshr_b32 s{S_IDX}, s2, 3
    ''')
    if CODEPF == 2:
        H(f'''
        s_cmp_lg_u32 s{S_IDX}, {PFIDX}
        s_cbranch_scc1 L_nopf
        s_getpc_b64 s[{T0}:{T1}]
        L_pcref:
        s_mul_i32 s{T2}, s{S_WAVE}, {PFN*1024}
        v_lshlrev_b32 v20, 4, v0
        v_add_u32 v20, s{T2}, v20
        v_max_u32 v21, v20, v20
        s_mov_b32 s{T3}, (L_codeend - L_pcref - 16)
        ''')
        for i in range(PFN):
            H(f'''
            v_min_u32 v21, s{T3}, v20
            global_load_dwordx4 v[252:255], v21, s[{T0}:{T1}]
            v_add_u32 v20, 1024, v20
            ''')
        H('L_nopf:')
    if REMAP:
        H(f'''
        s_add_u32 s{T0}, s{S_IDX}, 24
        s_add_u32 s{T1}, s{S_IDX}, 11
        s_cmp_lt_u32 s{S_IDX}, 5
        s_cselect_b32 s{T0}, s{T0}, s{T1}
        s_add_u32 s{T1}, s{S_IDX}, 16
        s_cmp_ge_u32 s{S_IDX}, 13
        s_cselect_b32 s{T0}, s{T1}, s{T0}
        s_sub_u32 s{T1}, s{S_IDX}, 16
        s_cmp_ge_u32 s{S_IDX}, 16
        s_cselect_b32 s{S_IDX}, s{T1}, s{T0}
        ''')
    H(f'''
    v_and_b32 v1, 15, v0
    v_lshrrev_b32 v2, 4, v0
    ''')
    H.stamp(0)
    H(f'''
    v_mov_b32 v61, {L_CNT}
    v_mov_b32 v62, 1
    v_mov_b32 v63, 0
    v_lshl_add_u32 v3, v0, 2, v61
    s_cmp_lg_u32 s{S_WAVE}, 0
    s_cbranch_scc1 L_noinit
    ds_write_b32 v3, v63
    L_noinit:
    s_mov_b32 s{S_M4}, 0x000f000f
    s_mov_b32 s{S_M4+1}, 0x000f000f
    s_and_b32 s{S_LW}, s{S_WAVE}, 3
    s_lshl_b32 s{T0}, s{S_LW}, 6
    v_add_u32 v3, s{T0}, v0
    s_waitcnt lgkmcnt(0)
    s_barrier
    s_cmp_ge_u32 s{S_WAVE}, 4
    s_cbranch_scc1 L_loader
    s_load_dword s{S_EP}, {sp(P_WS)}, 0
    s_setprio {PRIO}
    s_cmp_lt_u32 s{S_IDX}, 16
    s_cbranch_scc1 L_A_c
    s_branch L_F_c
    L_loader:
    s_cmp_lt_u32 s{S_IDX}, 16
    s_cbranch_scc1 L_A_l
    ''')
    if CODEPF == 1:
        H(f'''
        s_cmp_lg_u32 s{S_IDX}, 31
        s_cbranch_scc1 L_F_l
        s_cmp_lg_u32 s{S_WAVE}, 7
        s_cbranch_scc1 L_F_l
        s_getpc_b64 s[{T0}:{T1}]
        L_pcref:
        v_lshlrev_b32 v20, 4, v0
        s_mov_b32 s{T2}, 0
        L_pf:
        global_load_dwordx4 v[24:27], v20, s[{T0}:{T1}]
        v_add_u32 v20, 1024, v20
        s_add_u32 s{T2}, s{T2}, 1024
        s_cmp_lt_u32 s{T2}, (L_codeend - L_pcref - 1024)
        s_cbranch_scc1 L_pf
        ''')
    H(f'''
    s_branch L_F_l
    ''')
    def dump_regs(p, base_reg, count, vaddr, step=1024):
        off = 0
        for j in range(count):
            if off + 0 > 65535 - 0 or off > 60000:
                p(f'v_add_u32 v{vaddr}, {off}, v{vaddr}'); off = 0
            p(f'ds_write_b128 v{vaddr}, {vr(base_reg(j), 4)} offset:{off}')
            off += step

    AL = Prog(stamps); AC = Prog(stamps)
    AL.label('L_A_l')
    AL(f'''
    s_lshl_b32 s{T5}, s{S_XCD}, 4
    s_add_u32 s{T4}, s{T5}, s{S_IDX}         ; cid
    s_lshl_b32 s{T4}, s{T4}, 17
    s_lshl_b32 s{T5}, s{S_LW}, 10
    s_add_u32 s{T4}, s{T4}, s{T5}
    s_add_u32 s56, s{P_CKV}, s{T4}
    s_addc_u32 s57, s{P_CKV+1}, 0
    s_mov_b32 s58, s{T5}
    s_lshl_b32 s{T5}, s{S_LW}, 1
    v_xor_b32 v7, s{T5}, v0
    ''')
    for q in range(4):
        AL(f'v_xor_b32 v{8+q}, {ckv_f_const(q)}, v7')
        AL(f'v_lshlrev_b32 v{8+q}, 4, v{8+q}')
    trig(AL, W_E0 + ATCOL * 16, en=ATRIG)
    for j in range(32):
        if AWARM and j == AWARM: AL('s_waitcnt vmcnt(0)')
        if j >= ADEPTH: AL(f's_waitcnt vmcnt({ADEPTH-1})')
        AL(f'''
        s_add_u32 m0, s58, {j*4096}
        s_nop 0
        global_load_lds_dwordx4 v{8+(j%4)}, s[56:57] {NT}
        s_add_u32 s56, s56, 4096
        s_addc_u32 s57, s57, 0
        ''')
    AL(f'''
    s_lshl_b32 s{T4}, s{S_XCD}, 2
    s_lshr_b32 s{T5}, s{S_IDX}, 2
    s_add_u32 s{T4}, s{T4}, s{T5}
    s_lshl_b32 s{T4}, s{T4}, 8
    s_lshl_b32 s{T5}, s{S_LW}, 20
    s_add_u32 s{T4}, s{T4}, s{T5}
    v_lshrrev_b32 v3, 4, v0
    v_and_b32 v4, 15, v0
    v_lshlrev_b32 v5, 1, v3
    v_xor_b32 v5, v5, v4
    v_xor_b32 v6, 8, v5
    v_lshlrev_b32 v5, 4, v5
    v_lshlrev_b32 v6, 4, v6
    v_lshl_add_u32 v5, v3, 13, v5
    v_lshl_add_u32 v6, v3, 13, v6
    s_waitcnt vmcnt(0)
    ''')
    AL.signal(6); AL.stamp(3)
    load_seq(AL, P_WUV, T4, 4 * 8192, WUV1, [5, 6], dst=lambda j: 64 + 4 * j)
    AL(f's_lshl_b32 s{T5}, s{S_LW}, 15\nv_lshl_add_u32 v12, v0, 4, s{T5}')
    AL('s_waitcnt vmcnt(0)')
    AL.signal(20)
    AL.stamp(4)
    if WUV1 < 32:
        AL.wait(11, 4, sleep=1)
        AL(f's_add_u32 s{T4}, s{T4}, {WUV1*4*8192}')
        load_seq(AL, P_WUV, T4, 4 * 8192, 32 - WUV1, [5, 6], dst=lambda j: 64 + 4 * (WUV1 + j))
        AL('s_waitcnt vmcnt(0)')
    AL.wait(9, 4, sleep=1)
    dump_regs(AL, lambda j: 64 + 4 * j, 32, 12)
    AL.signal(10); AL.stamp(5)
    AL('s_branch L_fin')

    C = AC
    C.label('L_A_c')
    C(f'''
    s_lshr_b32 s{T0}, s{S_XCD}, 1            ; b
    s_lshl_b32 s{T0}, s{T0}, 16
    s_add_u32 s{T0}, s{T0}, {W_E2}
    s_lshl_b32 s{T1}, s{S_WAVE}, 11          ; hsel*2048
    s_add_u32 s{T0}, s{T0}, s{T1}
    v_lshl_add_u32 v4, v0, 4, s{T0}          ; + gi'*16
    v_lshrrev_b32 v7, 1, v0
    s_lshl_b32 s{T1}, s{S_WAVE}, 1
    v_xor_b32 v7, s{T1}, v7
    v_lshlrev_b32 v7, 4, v7
    v_and_b32 v10, 1, v0
    v_lshl_add_u32 v7, v10, 3, v7
    s_lshl_b32 s{T1}, s{S_WAVE}, 9
    s_add_u32 s{T1}, s{T1}, {L_QA}
    v_add_u32 v7, s{T1}, v7
    ''')
    for q4 in range(4): C(f'v_xor_b32 v{44+q4}, {ckv_f_const(q4)*16}, v7')
    for i in range(8):
        if i: C(f'v_add_u32 v{10+i}, {8192*i}, v4')
        else: C('v_mov_b32 v10, v4')
    C(f'''
    v_and_b32 v4, 3, v1
    v_lshlrev_b32 v4, 1, v4
    v_bfe_u32 v5, v1, 3, 1
    v_bfe_u32 v6, v1, 2, 1
    v_xor_b32 v6, v6, v5
    v_lshlrev_b32 v6, 3, v6
    v_or3_b32 v4, v4, v5, v6                 ; f(l16)
    v_lshrrev_b32 v5, 5, v0
    v_xor_b32 v4, v4, v5                     ; f ^ hh
    v_lshlrev_b32 v4, 4, v4
    v_and_b32 v5, 31, v0
    v_lshl_add_u32 v6, v5, 9, v4
    v_add_u32 v6, {L_QA}, v6
    v_lshl_add_u32 v5, v5, 10, v4
    s_lshl_b32 s{T0}, s{S_WAVE}, 15
    v_add_u32 v5, s{T0}, v5
    ''')
    for q8 in range(8):
        C(f'v_xor_b32 v{48+q8}, {q8*32}, v6')
        C(f'v_xor_b32 v{18+q8}, {q8*32}, v5')
    tag_setup(C)
    C.stamp(1)
    C.wait(6, 4, sleep=1)
    if WUVWAIT: C.wait(20, 4, sleep=1)
    C.stamp(2)
    C(f'''
    s_lshr_b32 s{T0}, s{S_XCD}, 1
    s_lshl_b32 s{T0}, s{T0}, 16
    s_add_u32 s{T0}, s{T0}, {W_E2}
    v_lshlrev_b32 v26, 8, v3
    v_add_u32 v26, s{T0}, v26
    ''')
    if LIGHT: poll_loop(C, [f'global_load_dwordx2 v[64:65], v26, {sp(P_WS)} offset:8 sc1'], [(64, 65)])
    C.stamp(3)
    loads = [f'global_load_dwordx4 {vr(192+4*i, 4)}, v{10+i%8}, {sp(P_WS)} offset:{1024*(i//8)} sc1' for i in range(16)]
    poll_loop(C, loads, [(194 + 4 * i, 195 + 4 * i) for i in range(16)])
    C.stamp(7)
    for i in range(8):
        C(f'ds_write_b64 v{44+i%4}, {vr(192+4*i, 2)} offset:{2048*i}')
    C.signal(11)
    C.wait(11, 4)
    for ks in range(16):
        C(f'ds_read_b128 {vr(64+4*ks, 4)}, v{48+ks%8} offset:{(ks//8)*256}')
    def issueA(ks):
        C(f'ds_read_b128 {vr(192+4*(ks%8), 4)}, v{18+ks%8} offset:{(ks//8)*256}')
    for ks in range(8): issueA(ks)
    C('s_waitcnt lgkmcnt(8)')
    C.signal(12)
    C.stamp(8)
    for ks in range(32):
        if ks == 16:
            C.wait(13, 4)
            for k2 in range(16, 32):
                C(f'ds_read_b128 {vr(64+4*k2, 4)}, v{48+k2%8} offset:{((k2-16)//8)*256}')
            C('s_waitcnt lgkmcnt(14)')
        elif ks < 16: C(f's_waitcnt lgkmcnt({min(7, 15 - ks) if ks >= 8 else 7})')
        else: C(f's_waitcnt lgkmcnt({min(15, max(0, 31 - ks) if ks >= 24 else 15)})')
        c = '0' if ks == 0 else 'v[28:43]'
        C(f'v_mfma_f32_32x32x16_bf16 v[28:43], {vr(192+4*(ks%8), 4)}, {vr(64+4*ks, 4)}, {c}')
        if ks + 8 < 32: issueA(ks + 8)
        if ks == 5:
            C.wait(12, 4)
            for i in range(8):
                C(f'ds_write_b64 v{44+i%4}, {vr(192+4*(8+i), 2)} offset:{2048*i}')
            C.signal(13)
    C.stamp(5)
    C(f'''
    v_lshrrev_b32 v4, 2, v1
    v_lshlrev_b32 v5, 1, v4
    v_lshrrev_b32 v6, 1, v2
    v_and_b32 v7, 1, v2
    v_xor_b32 v7, v7, v6
    v_lshlrev_b32 v7, 3, v7
    v_or3_b32 v5, v5, v6, v7
    v_bfe_u32 v6, v1, 1, 1
    v_xor_b32 v5, v5, v6
    v_lshlrev_b32 v5, 4, v5
    v_and_b32 v6, 1, v1
    v_lshlrev_b32 v6, 3, v6
    v_lshl_add_u32 v7, v2, 2, v4
    v_lshlrev_b32 v7, 10, v7
    v_add3_u32 v5, v5, v6, v7
    s_lshl_b32 s{T0}, s{S_WAVE}, 8
    v_add_u32 v5, s{T0}, v5
    v_and_b32 v18, 31, v0
    v_lshlrev_b32 v18, 2, v18
    v_add_u32 v18, {L_REDA}, v18
    s_lshl_b32 s{T0}, s{S_WAVE}, 7
    v_add_u32 v19, s{T0}, v18
    v_lshlrev_b32 v20, 4, v0
    v_add_u32 v20, {L_PB}, v20
    v_bfe_u32 v21, v0, 4, 1
    v_lshlrev_b32 v21, 10, v21
    v_lshrrev_b32 v22, 5, v0
    v_lshl_add_u32 v21, v22, 8, v21
    v_lshl_add_u32 v21, v1, 4, v21
    s_lshl_b32 s{T0}, s{S_WAVE}, 11
    s_add_u32 s{T0}, s{T0}, {L_PB}
    v_add_u32 v21, s{T0}, v21
    ''')
    for t in range(8): C(f'v_xor_b32 v{8+t}, {t*32}, v5')
    C(f'''
    s_lshr_b32 s{T0}, s{S_XCD}, 1
    s_lshl_b32 s{T0}, s{T0}, 5               ; b*32
    s_and_b32 s{T1}, s{S_XCD}, 1
    s_lshl_b32 s{T1}, s{T1}, 4
    s_add_u32 s{T1}, s{T1}, s{S_IDX}         ; chunk
    s_lshl_b32 s{T2}, s{T0}, 15
    s_lshl_b32 s{T3}, s{T1}, 10
    s_add_u32 s{T2}, s{T2}, s{T3}
    s_lshl_b32 s{T3}, s{S_WAVE}, 8
    s_add_u32 s{T2}, s{T2}, s{T3}
    s_add_u32 s{T2}, s{T2}, {W_E3}
    v_and_b32 v4, 7, v1
    v_lshlrev_b32 v4, 15, v4
    v_lshlrev_b32 v5, 4, v2
    v_add3_u32 v4, v4, v5, s{T2}             ; (l16&7)*32768 + g*16
    v_lshrrev_b32 v5, 3, v1
    v_lshlrev_b32 v5, 6, v5                  ; (l16>>3)*64
    v_xor_b32 v6, 64, v5
    v_add_u32 v6, v6, v4
    v_add_u32 v6, {8*32768}, v6
    v_add_u32 v4, v5, v4
    v_add_u32 v5, {16*32768}, v4
    v_add_u32 v7, {16*32768}, v6
    ''')
    C('''
    v_max3_f32 v16, v28, v29, v30
    v_max3_f32 v17, v31, v32, v33
    v_max3_f32 v16, v16, v34, v35
    v_max3_f32 v17, v17, v36, v37
    v_max3_f32 v16, v16, v38, v39
    v_max3_f32 v17, v17, v40, v41
    v_max3_f32 v16, v16, v42, v43
    v_max_f32 v16, v16, v17
    v_mov_b32 v17, v16
    s_nop 1
    v_permlane32_swap_b32 v16, v17
    s_nop 1
    v_max_f32 v16, v16, v17
    ds_write_b32 v19, v16
    ''')
    C.signal(7)
    for t in range(8): C(f'v_add_u32 v{48+t}, 0x10000, v{8+t}')
    lq = []
    def pvfrag(pr, tt, j): return 192 + (pr % 2) * 32 + (tt * 4 + j) * 4
    def pvread(pr):
        for j in range(4):
            for tt in range(2):
                t = 2 * pr + tt
                va = (8 + t) if j < 2 else (48 + t)
                o = (j % 2) * 32768
                C(f'ds_read_b64_tr_b16 {vr(pvfrag(pr, tt, j), 2)}, v{va} offset:{o}')
                C(f'ds_read_b64_tr_b16 {vr(pvfrag(pr, tt, j)+2, 2)}, v{va} offset:{o + 16384}')
                lq.append(('a', pr, tt, j)); lq.append(('a', pr, tt, j))
    def waitfor(ids):
        last = max(i for i, x in enumerate(lq) if x in ids)
        C(f's_waitcnt lgkmcnt({min(15, len(lq) - 1 - last)})')
    pvread(0)
    C.wait(7, 4)
    C.stamp(6)
    for w in range(4): C(f'ds_read_b32 v{64+w}, v18 offset:{128*w}')
    C('s_waitcnt lgkmcnt(0)')
    C('v_max3_f32 v16, v64, v65, v66\nv_max_f32 v16, v16, v67')
    for i in range(16): C(f'v_sub_f32 v{28+i}, v{28+i}, v16')
    for i in range(16): C(f'v_exp_f32 v{28+i}, v{28+i}')
    C('s_nop 0')
    for pc, (qa, qb) in enumerate(((0, 2), (1, 3))):
        C(f'''
        v_cvt_pk_bf16_f32 v{64+4*pc}, v{28+4*qa}, v{29+4*qa}
        v_cvt_pk_bf16_f32 v{65+4*pc}, v{30+4*qa}, v{31+4*qa}
        v_cvt_pk_bf16_f32 v{66+4*pc}, v{28+4*qb}, v{29+4*qb}
        v_cvt_pk_bf16_f32 v{67+4*pc}, v{30+4*qb}, v{31+4*qb}
        ds_write_b128 v21, {vr(64+4*pc, 4)} offset:{512*pc}
        ''')
    C.signal(8)
    for i in range(8): C(f'v_add_f32 v{72+i}, v{28+2*i}, v{29+2*i}')
    for i in range(4): C(f'v_add_f32 v{72+i}, v{72+i}, v{76+i}')
    C('''
    v_add_f32 v72, v72, v74
    v_add_f32 v73, v73, v75
    v_add_f32 v22, v72, v73
    v_mov_b32 v23, v22
    s_nop 1
    v_permlane32_swap_b32 v22, v23
    s_nop 1
    v_add_f32 v22, v22, v23
    ds_write_b32 v19, v22 offset:512
    ''')
    C.signal(16)
    C.wait(8, 4)
    C.stamp(14)
    lq.clear()
    for j in range(4):
        for hg in range(2):
            C(f'ds_read_b128 {vr(64+(j*2+hg)*4, 4)}, v20 offset:{(j*2+hg)*1024}'); lq.append(('p', j))
    pvread(1)
    def pack_store(pp):
        for hg in range(2):
            X1 = 96 + hg * 12; X2 = X1 + 4; Bq = X1 + 8
            for (dst, pr) in ((X1, 2 * pp), (Bq, 2 * pp + 1)):
                a0 = 128 + ((2 * pr) * 2 + hg) * 4; a1 = 128 + ((2 * pr + 1) * 2 + hg) * 4
                C(f'''
                v_cvt_pk_bf16_f32 v{dst}, v{a0}, v{a0+1}
                v_cvt_pk_bf16_f32 v{dst+1}, v{a0+2}, v{a0+3}
                v_cvt_pk_bf16_f32 v{dst+2}, v{a1}, v{a1+1}
                v_cvt_pk_bf16_f32 v{dst+3}, v{a1+2}, v{a1+3}
                ''')
            for k in range(4): C(f'v_mov_b32 v{X2+k}, v{X1+k}')
            for k in range(4): C(f'v_mov_b32_dpp v{X1+k}, v{Bq+k} row_ror:8 row_mask:0xf bank_mask:0xc')
            for k in range(4): C(f'v_mov_b32_dpp v{X2+k}, v{Bq+k} row_ror:8 row_mask:0xf bank_mask:0x3')
            C(f'global_store_dwordx4 v{4+hg}, {vr(X1, 4)}, {sp(P_WS)} offset:{128*pp} sc1')
            C(f'global_store_dwordx4 v{6+hg}, {vr(X2, 4)}, {sp(P_WS)} offset:{128*pp} sc1')
    for pr in range(4):
        for j in range(4):
            ids = [('p', j)] + ([('a', pr, 0, j), ('a', pr, 1, j)] if pr >= 1 else [])
            waitfor(ids)
            for tt in range(2):
                for hg in range(2):
                    t = 2 * pr + tt
                    a = 128 + (t * 2 + hg) * 4
                    c = '0' if j == 0 else vr(a, 4)
                    C(f'v_mfma_f32_16x16x32_bf16 {vr(a, 4)}, {vr(pvfrag(pr, tt, j), 4)}, {vr(64+(j*2+hg)*4, 4)}, {c}')
            if j == 1 and pr == 2: pack_store(0)
        if pr + 2 < 4: pvread(pr + 2)
        if pr == 0:
            lskip = C.newl('st3')
            C(f's_cmp_lg_u32 s{S_WAVE}, 0\ns_cbranch_scc1 {lskip}')
            C.wait(16, 4)
            for w in range(4): C(f'ds_read_b32 v{28+w}, v18 offset:{512 + 128*w}')
            C(f'''
            s_lshl_b32 s{T2}, s{T0}, 8
            s_lshl_b32 s{T3}, s{T1}, 3
            s_add_u32 s{T2}, s{T2}, s{T3}
            s_add_u32 s{T2}, s{T2}, {W_ST3}
            v_and_b32 v24, 31, v0
            v_lshl_add_u32 v24, v24, 8, s{T2}
            v_mov_b32 v36, v16
            s_waitcnt lgkmcnt(0)
            v_add_f32 v28, v28, v29
            v_add_f32 v30, v30, v31
            v_add_f32 v37, v28, v30
            ''')
            exec_set(C, '0xffffffff')
            C(f'global_store_dwordx2 v24, v[36:37], {sp(P_WS)} sc1')
            exec_restore(C)
            C.label(lskip)
    C.stamp(9)
    C.signal(9)
    C(f'''
    s_add_u32 s{T2}, s{T0}, s{T1}
    s_lshl_b32 s{T2}, s{T2}, 7
    s_lshl_b32 s{T3}, s{S_WAVE}, 2
    s_add_u32 s{T2}, s{T2}, s{T3}
    s_add_u32 s{T2}, s{T2}, {W_F3}
    v_mov_b32 v24, s{T2}
    v_mov_b32 v25, s{S_TAG}
    ''')
    pack_store(1)
    C('s_waitcnt vmcnt(0)')
    exec_set(C, '1')
    C(f'global_store_dword v24, v25, {sp(P_WS)} sc1')
    exec_restore(C)
    C.stamp(10)
    CA = C
    CA(f'''
    s_lshl_b32 s{S_J}, s{S_XCD}, 2
    s_lshr_b32 s{T5}, s{S_IDX}, 2
    s_add_u32 s{S_J}, s{S_J}, s{T5}
    s_and_b32 s{S_K}, s{S_IDX}, 3
    s_lshl_b32 s{T0}, s{S_K}, 12              ; b*32 flags*128B
    s_add_u32 s{T0}, s{T0}, {W_F3}
    v_and_b32 v4, 31, v0
    v_lshl_add_u32 v5, v4, 7, s{T0}
    s_lshl_b32 s{T0}, s{S_K}, 5
    s_add_u32 s{T0}, s{T0}, s{S_J}
    s_lshl_b32 s{T1}, s{T0}, 8
    s_add_u32 s{T1}, s{T1}, {W_ST3}
    v_lshl_add_u32 v6, v4, 3, s{T1}
    s_lshl_b32 s{T1}, s{T0}, 15
    s_lshl_b32 s{T2}, s{S_WAVE}, 13
    s_add_u32 s{T1}, s{T1}, s{T2}
    s_add_u32 s{T1}, s{T1}, {W_E3}
    v_lshl_add_u32 v7, v0, 4, s{T1}
    v_add_u32 v10, 4096, v7
    v_lshlrev_b32 v4, 5, v0
    v_add_u32 v4, {L_RED4}, v4
    s_lshl_b32 s{T0}, s{S_WAVE}, 11
    v_add_u32 v11, s{T0}, v4
    ''')
    CA(f'''
    v_lshrrev_b32 v12, 2, v1
    v_lshl_add_u32 v12, v2, 2, v12
    v_and_b32 v13, 7, v12
    v_lshlrev_b32 v13, 1, v13
    v_bfe_u32 v14, v1, 1, 1
    v_xor_b32 v13, v13, v14
    v_lshlrev_b32 v13, 4, v13
    v_and_b32 v14, 1, v1
    v_lshlrev_b32 v14, 3, v14
    v_lshlrev_b32 v12, 8, v12
    v_add3_u32 v12, v12, v13, v14
    s_lshl_b32 s{T0}, s{S_WAVE}, 6
    v_xor_b32 v12, s{T0}, v12
    v_xor_b32 v13, 32, v12
    v_add_u32 v14, 0x10000, v12
    v_add_u32 v15, 0x10000, v13
    ''')
    CA.wait(10, 4)
    for ks in range(16):
        for t in range(2):
            va = (12 + t) if ks < 8 else (14 + t)
            o = (ks % 8) * 8192
            r = 128 + (ks * 2 + t) * 4
            CA(f'ds_read_b64_tr_b16 {vr(r, 2)}, v{va} offset:{o}')
            CA(f'ds_read_b64_tr_b16 {vr(r+2, 2)}, v{va} offset:{o+4096}')
    CA('s_waitcnt lgkmcnt(0)')
    lk = CA.newl('f3w')
    CA(f's_cmp_lg_u32 s{S_WAVE}, 0\ns_cbranch_scc1 {lk}')
    poll2(CA, [f'global_load_dwordx4 v[96:99], v5, {sp(P_WS)} sc1'], [(96, None), (97, None), (98, None), (99, None)], 4, payload=0)
    CA.signal(21)
    CA.label(lk)
    CA.wait(21, 1)
    CA.stamp(11)
    CA(f'global_load_dwordx2 v[16:17], v6, {sp(P_WS)} sc1')
    for i in range(8):
        CA(f'global_load_dwordx4 v[{64+4*i}:{67+4*i}], v{7 if i < 4 else 10}, {sp(P_WS)} offset:{1024*(i%4)} sc1')
    CA('s_waitcnt vmcnt(8)')
    CA('v_mov_b32 v18, v16')
    allreduce(CA, 18, 19, 'max')
    CA(f'''
    v_sub_f32 v16, v16, v18
    v_exp_f32 v16, v16
    s_nop 0
    v_mul_f32 v17, v17, v16
    ''')
    allreduce(CA, 17, 19, 'add')
    CA(f'''
    v_rcp_f32 v17, v17
    s_nop 0
    v_mul_f32 v16, v16, v17
    v_add_f32 v16, v16, v16
    s_lshl_b32 s{T0}, s{S_WAVE}, 3
    s_nop 0
    ''')
    for i in range(8):
        CA(f's_add_u32 s{T1}, s{T0}, {i}')
        CA(f'v_readlane_b32 s{S_SC+i}, v16, s{T1}')
    for i in range(8):
        CA(f's_waitcnt vmcnt({7-i})')
        for q in range(4):
            unpack(CA, 20, 21, 64 + 4 * i + q)
            if i == 0:
                CA(f'v_mul_f32 v{32+2*q}, s{S_SC+i}, v20\nv_mul_f32 v{33+2*q}, s{S_SC+i}, v21')
            else:
                CA(f'v_fmac_f32 v{32+2*q}, s{S_SC+i}, v20\nv_fmac_f32 v{33+2*q}, s{S_SC+i}, v21')
    CA(f'''
    ds_write_b128 v11, v[32:35]
    ds_write_b128 v11, v[36:39] offset:16
    ''')
    CA.signal(17)
    CA(f'''
    s_lshl_b32 s{T0}, s{S_WAVE}, 10
    s_add_u32 s{T0}, s{T0}, {L_CC}
    v_lshl_add_u32 v5, v0, 4, s{T0}
    v_lshl_add_u32 v6, v2, 4, s{T0}
    s_lshl_b32 s{T0}, s{S_K}, 14
    s_lshl_b32 s{T1}, s{S_J}, 9
    s_add_u32 s{T0}, s{T0}, s{T1}
    s_lshl_b32 s{T1}, s{S_WAVE}, 7
    s_add_u32 s{T0}, s{T0}, s{T1}
    s_add_u32 s{T0}, s{T0}, {W_E4}
    v_lshlrev_b32 v14, 6, v1
    v_lshl_add_u32 v14, v2, 4, v14
    v_add_u32 v14, s{T0}, v14
    v_mov_b32 v38, s{S_TAG}
    v_mov_b32 v39, s{S_TAG2}
    v_cmp_gt_u32 vcc, 2, v1
    v_cmp_eq_u32 {sp(S_M)}, 1, v1
    ''')
    CA.wait(17, 4)
    CA.stamp(12)
    for w in range(4):
        CA(f'ds_read_b128 v[{64+8*w}:{67+8*w}], v4 offset:{2048*w}')
        CA(f'ds_read_b128 v[{68+8*w}:{71+8*w}], v4 offset:{2048*w+16}')
    CA('s_waitcnt lgkmcnt(0)')
    for q in range(4):
        CA(f'''
        v_pk_add_f32 v[{64+2*q}:{65+2*q}], v[{64+2*q}:{65+2*q}], v[{72+2*q}:{73+2*q}]
        v_pk_add_f32 v[{80+2*q}:{81+2*q}], v[{80+2*q}:{81+2*q}], v[{88+2*q}:{89+2*q}]
        v_pk_add_f32 v[{64+2*q}:{65+2*q}], v[{64+2*q}:{65+2*q}], v[{80+2*q}:{81+2*q}]
        v_cvt_pk_bf16_f32 v{32+q}, v{64+2*q}, v{65+2*q}
        ''')
    CA('ds_write_b128 v5, v[32:35]')
    CA('s_waitcnt lgkmcnt(0)')
    for ks in range(16): CA(f'ds_read_b128 v[{64+4*ks}:{67+4*ks}], v6 offset:{64*ks}')
    for ks in range(16):
        CA(f's_waitcnt lgkmcnt({15 - ks})')
        for t in range(2):
            c = '0' if ks == 0 else vr(28 + 4 * t, 4)
            CA(f'v_mfma_f32_16x16x32_bf16 {vr(28+4*t, 4)}, {vr(128+(ks*2+t)*4, 4)}, v[{64+4*ks}:{67+4*ks}], {c}')
    CA(f'''
    s_nop 7
    v_cvt_pk_bf16_f32 v36, v28, v29
    v_cvt_pk_bf16_f32 v37, v30, v31
    v_cvt_pk_bf16_f32 v40, v32, v33
    v_cvt_pk_bf16_f32 v41, v34, v35
    v_cndmask_b32 v36, v36, v40, {sp(S_M)}
    v_cndmask_b32 v37, v37, v41, {sp(S_M)}
    s_and_saveexec_b64 {sp(S_EX)}, vcc
    global_store_dwordx4 v14, v[36:39], {sp(P_WS)} sc1
    s_mov_b64 exec, {sp(S_EX)}
    ''')
    CA.stamp(13)
    CA('s_branch L_fin')

    FL = Prog(stamps); FC = Prog(stamps)
    FL.label('L_F_l')
    for p in (FL, FC):
        if p is FC: p.label('L_F_c')
        p(f'''
        s_sub_u32 s{S_J5}, s{S_IDX}, 16          ; j
        s_lshl_b32 s{S_STRIP}, s{S_XCD}, 3
        s_add_u32 s{S_STRIP}, s{S_STRIP}, s{S_J5}   ; Y: h*2+half
        s_mul_i32 s{S_R}, s{S_XCD}, 5
        s_add_u32 s{S_R}, s{S_R}, s{S_J5}
        s_sub_u32 s{S_R}, s{S_R}, 8
        s_cmp_lt_u32 s{S_J5}, 8
        s_cbranch_scc1 L_Y_{'l' if p is FL else 'c'}
        s_cmp_ge_u32 s{S_J5}, 13
        s_cbranch_scc1 L_tail_{'l' if p is FL else 'c'}
        ''')
    dma_voff(FL, 6, 128, 7680, 3, 4)
    FL(f'''
    s_lshr_b32 s{T4}, s{S_R}, 1
    s_lshl_b32 s{T4}, s{T4}, 7
    s_and_b32 s{T2}, s{S_R}, 1
    s_mul_i32 s{T2}, s{T2}, {320*7680}
    s_add_u32 s{T4}, s{T4}, s{T2}
    s_mul_i32 s{T2}, s{S_LW}, {10*8*7680}
    s_add_u32 s{T4}, s{T4}, s{T2}
    s_mul_i32 s{T5}, s{S_LW}, 10240
    ''')
    load_seq(FL, P_WMOD, T4, 8 * 7680, 10, [6], s_lds=T5, lds_const=0)
    FL('s_waitcnt vmcnt(0)'); FL.signal(0); FL.stamp(1)
    FL.wait(5, 4, sleep=1)
    FL('s_branch L_tail_l')
    def p0tile(C, colbase_bytes, s_tile, cnt_ready, cnt_done, half=False):
        act_prep(C, True, False, cnt=cnt_ready)
        if half:
            C(f's_and_b32 s{T0}, s{s_tile}, 1\ns_mul_i32 s{T0}, s{T0}, 640')
        else:
            C(f's_mov_b32 s{T0}, 0')
        aaddr(C, 8, L_ACT, ACTP, T0, 9)
        trpat(C, 25, 128, S_WAVE, 9, 24)
        C(f'''
        ''')
        if half:
            C(f'''
            s_lshr_b32 s{T0}, s{s_tile}, 1
            s_lshl_b32 s{T0}, s{T0}, 2
            s_add_u32 s{T0}, s{T0}, s{S_WAVE}
            s_lshl_b32 s{T0}, s{T0}, 8
            s_and_b32 s{T1}, s{s_tile}, 1
            s_mul_i32 s{T1}, s{T1}, {W_E0B - W_E0}
            s_add_u32 s{T0}, s{T0}, s{T1}
            ''')
        else:
            C(f'''
            s_lshl_b32 s{T0}, s{s_tile}, 2
            s_add_u32 s{T0}, s{T0}, s{S_WAVE}
            s_lshl_b32 s{T0}, s{T0}, 8
            ''')
        C(f'''
        s_add_u32 s{T0}, s{T0}, {W_E0 + colbase_bytes}
        v_lshl_add_u32 v21, v1, 4, s{T0}
        ''')
        tag_setup(C)
        C.stamp(1)
        C.wait(cnt_ready, 8)
        gemv2(C, 10 if half else 20, 8, 25, 4096, 2048, ACC, banks=(64, 144), batch=10)
        C.signal(cnt_done)
        C('s_nop 7')
        exec_set(C, '0xffff')
        store_granule(C, 21)
        exec_restore(C)
    C = FC
    p0tile(C, 0, S_R, 0, 5, half=True)
    C.stamp(2)
    C('s_branch L_tail_c')
    FL.label('L_Y_l')
    FL(f'''
    s_lshr_b32 s{T4}, s{S_STRIP}, 1
    s_lshl_b32 s{T4}, s{T4}, 8               ; h*256
    s_and_b32 s{T2}, s{S_STRIP}, 1
    s_mul_i32 s{T2}, s{T2}, {320*8192}
    s_add_u32 s{T4}, s{T4}, s{T2}
    s_mul_i32 s{T2}, s{S_LW}, {80*8192}
    s_add_u32 s{T4}, s{T4}, s{T2}
    s_mul_i32 s{T5}, s{S_LW}, 20480
    v_lshrrev_b32 v3, 4, v0
    v_and_b32 v4, 15, v0
    v_lshlrev_b32 v5, 1, v3
    v_xor_b32 v5, v5, v4
    v_xor_b32 v6, 8, v5
    v_lshlrev_b32 v5, 4, v5
    v_lshlrev_b32 v6, 4, v6
    v_lshl_add_u32 v5, v3, 13, v5
    v_lshl_add_u32 v6, v3, 13, v6
    ''')
    load_seq(FL, P_WQ, T4, 4 * 8192, 20, [5, 6], s_lds=T5, lds_const=0)
    FL(f'''
    s_lshr_b32 s{T4}, s{S_STRIP}, 1
    s_lshl_b32 s{T4}, s{T4}, 8               ; h*256
    s_and_b32 s{T2}, s{S_STRIP}, 1
    s_lshl_b32 s{T2}, s{T2}, 21
    s_add_u32 s{T4}, s{T4}, s{T2}
    s_lshl_b32 s{T2}, s{S_LW}, 19
    s_add_u32 s{T4}, s{T4}, s{T2}
    s_lshl_b32 s{T5}, s{S_LW}, 14
    v_lshrrev_b32 v3, 4, v0
    v_and_b32 v4, 15, v0
    v_xor_b32 v4, v4, v3
    ''')
    for q in range(4):
        FL(f'v_xor_b32 v{8+q}, {4*q}, v4\nv_lshlrev_b32 v{8+q}, 4, v{8+q}\nv_lshl_add_u32 v{8+q}, v3, 13, v{8+q}')
    if UKLATE:
        if UKE:
            load_seq(FL, P_WUK, T4, 4 * 8192, UKE, [8, 9, 10, 11], s_lds=T5, lds_const=L_WUK)
            FL(f's_add_u32 s{T4}, s{T4}, {UKE*4*8192}\ns_add_u32 s{T5}, s{T5}, {UKE*1024}')
        FL(f's_waitcnt vmcnt({UKE})'); FL.signal(2); FL.stamp(2)
        FL.wait(23, 4, sleep=1)
        load_seq(FL, P_WUK, T4, 4 * 8192, 16 - UKE, [8, 9, 10, 11], s_lds=T5, lds_const=L_WUK)
    else:
        load_seq(FL, P_WUK, T4, 4 * 8192, 16, [8, 9, 10, 11], s_lds=T5, lds_const=L_WUK)
        FL('s_waitcnt vmcnt(16)'); FL.signal(2); FL.stamp(2)
    FL('s_waitcnt vmcnt(0)'); FL.signal(4); FL.stamp(4)
    FL.wait(22, 4, sleep=1)
    FL('s_branch L_tail_l')
    C.label('L_Y_c')
    act_prep(C, False, True)
    C(f'''
    s_and_b32 s{S_K}, s{S_STRIP}, 1
    s_mul_i32 s{T0}, s{S_K}, 320
    v_add_u32 v5, 256, v3
    v_min_u32 v5, 319, v5
    v_add_u32 v4, s{T0}, v3                  ; m0
    v_add_u32 v6, s{T0}, v5                  ; m1
    v_lshlrev_b32 v7, 4, v4
    v_add_u32 v7, {W_E0}, v7                 ; sa(m0)
    v_lshlrev_b32 v10, 4, v6
    v_add_u32 v10, {W_E0}, v10               ; sa(m1)
    v_add_u32 v11, {640*16}, v7              ; ca(m0)
    v_add_u32 v12, {640*16}, v10             ; ca(m1)
    v_add_u32 v26, {W_E0B - W_E0}, v7
    v_add_u32 v27, {W_E0B - W_E0}, v10
    v_add_u32 v28, {W_E0B - W_E0}, v11
    v_add_u32 v29, {W_E0B - W_E0}, v12
    ''')
    C.wait(15, 4)
    C(f'''
    v_lshlrev_b32 v13, 3, v4
    v_add_u32 v13, {L_XNT}, v13
    ds_read_b64 v[14:15], v13
    v_lshlrev_b32 v13, 3, v6
    v_add_u32 v13, {L_XNT}, v13
    ds_read_b64 v[16:17], v13
    ''')
    permaddr(C, 20, 3, 56, 57); C(f'v_add_u32 v20, {L_ACT}, v20')
    permaddr(C, 21, 5, 56, 57); C(f'v_add_u32 v21, {L_ACT}, v21')
    C('s_waitcnt lgkmcnt(0)')
    for ci in range(2):
        for half in range(2):
            unpack(C, 40 + 4 * ci + 2 * half, 41 + 4 * ci + 2 * half, 14 + 2 * ci + half)
    C(f's_mov_b32 s{T0}, 0')
    aaddr(C, 8, L_ACT, ACTP, T0, 9)
    C(f'''
    v_lshrrev_b32 v24, 2, v1
    v_lshl_add_u32 v24, v2, 2, v24           ; row
    v_and_b32 v25, 7, v24
    v_lshlrev_b32 v25, 1, v25
    v_bfe_u32 v9, v1, 1, 1
    v_xor_b32 v25, v25, v9
    v_lshlrev_b32 v25, 4, v25
    v_and_b32 v9, 1, v1
    v_lshlrev_b32 v9, 3, v9
    v_lshlrev_b32 v24, 8, v24
    v_add3_u32 v24, v24, v25, v9
    s_lshl_b32 s{T0}, s{S_WAVE}, 6
    v_xor_b32 v24, s{T0}, v24                ; tile 2w
    v_xor_b32 v25, 32, v24                   ; tile 2w+1
    s_lshr_b32 s{T0}, s{S_STRIP}, 1
    s_lshl_b32 s{T0}, s{T0}, 3
    s_lshl_b32 s{T1}, s{S_WAVE}, 1
    s_add_u32 s{T0}, s{T0}, s{T1}
    s_lshl_b32 s{T0}, s{T0}, 8
    s_lshl_b32 s{T1}, s{S_K}, 16
    s_add_u32 s{T0}, s{T0}, s{T1}
    s_add_u32 s{T0}, s{T0}, {W_E1}
    v_lshrrev_b32 v13, 2, v1
    v_lshlrev_b32 v13, 8, v13
    v_and_b32 v14, 3, v1
    v_lshl_add_u32 v13, v14, 6, v13
    v_lshl_add_u32 v13, v2, 4, v13
    v_add_u32 v13, s{T0}, v13
    s_mov_b32 s{S_M}, 0x00ff00ff
    s_mov_b32 s{S_M+1}, 0x00ff00ff
    ''')
    tag_setup(C)
    C.stamp(1)
    C.wait(2, 4, sleep=1)
    prewt(C, 10, 24, 8192, 4096, 144)
    prewt(C, 10, 25, 8192, 4096, 184)
    C.stamp(2)
    loads = [f'global_load_dwordx4 v[{64+4*i}:{67+4*i}], v{a}, {sp(P_WS)} sc1' for i, a in enumerate([7, 10, 11, 12, 26, 27, 28, 29])]
    poll_loop(C, loads, [(66 + 4 * i, 67 + 4 * i) for i in range(8)])
    C.signal(23)
    C.stamp(3)
    for ci, ar in enumerate((20, 21)):
        sa = 64 + 4 * ci; ca = 72 + 4 * ci
        for half in range(2):
            x = 40 + 4 * ci + 2 * half
            unpack(C, 122, 123, sa + half)
            unpack(C, 124, 125, ca + half)
            unpack(C, 116, 117, sa + 16 + half)
            unpack(C, 118, 119, ca + 16 + half)
            C(f'''
            v_pk_add_f32 v[124:125], v[124:125], v[118:119]
            v_pk_add_f32 v[122:123], v[122:123], v[116:117]
            v_pk_fma_f32 v[120:121], v[{x}:{x+1}], v[124:125], v[{x}:{x+1}]
            v_pk_add_f32 v[120:121], v[120:121], v[122:123]
            v_cvt_pk_bf16_f32 v120, v120, v121
            ds_write_b16 v{ar}, v120 offset:{(2*half)*ACTP}
            ds_write_b16_d16_hi v{ar}, v120 offset:{(2*half+1)*ACTP}
            ''')
    C.signal(3); C.wait(3, 4)
    for i in range(10): C('ds_read_b128 %s, v8 offset:%d' % (vr(64 + 4 * i, 4), i * 64))
    for i in range(10):
        C('s_waitcnt lgkmcnt(%d)' % (9 - i))
        for t in range(2):
            c = '0' if i == 0 else vr(28 + 4 * t, 4)
            C('v_mfma_f32_16x16x32_bf16 %s, %s, %s, %s' % (vr(28 + 4 * t, 4), vr(144 + 40 * t + 4 * i, 4), vr(64 + 4 * i, 4), c))
    C(f'''
    v_mov_b32 v66, s{S_TAG}
    v_mov_b32 v67, s{S_TAG2}
    s_nop 5
    v_cvt_pk_bf16_f32 v64, v28, v29
    v_cvt_pk_bf16_f32 v65, v30, v31
    v_cvt_pk_bf16_f32 v68, v32, v33
    v_cvt_pk_bf16_f32 v69, v34, v35
    s_nop 1
    v_mov_b32_dpp v64, v68 row_shr:4 row_mask:0xf bank_mask:0x2
    v_mov_b32_dpp v65, v69 row_shr:4 row_mask:0xf bank_mask:0x2
    ''')
    exec_set(C, sp(S_M))
    C(f'global_store_dwordx4 v13, v[64:67], {sp(P_WS)} sc1')
    exec_restore(C)
    C.stamp(4)
    C(f'''
    v_xor_b32 v30, v1, v2
    v_lshlrev_b32 v30, 4, v30
    v_lshl_add_u32 v30, v1, 8, v30
    s_lshl_b32 s{T1}, s{S_WAVE}, 14
    s_add_u32 s{T1}, s{T1}, {L_WUK}
    v_add_u32 v30, s{T1}, v30
    ''')
    for ks in range(4): C(f'v_xor_b32 v{32+ks}, {64*ks}, v30')
    C(f'''
    s_lshr_b32 s{S_K}, s{S_STRIP}, 1         ; h
    s_lshl_b32 s{T0}, s{S_K}, 11
    s_add_u32 s{T0}, s{T0}, {W_E1}
    v_and_b32 v4, 3, v0
    v_lshlrev_b32 v4, 6, v4
    v_lshrrev_b32 v5, 1, v2
    v_lshl_add_u32 v4, v5, 8, v4
    v_and_b32 v5, 1, v2
    v_lshl_add_u32 v4, v5, 5, v4
    v_add_u32 v4, s{T0}, v4
    s_lshl_b32 s{T0}, s{S_K}, 11
    s_and_b32 s{T1}, s{S_STRIP}, 1
    s_lshl_b32 s{T1}, s{T1}, 2
    s_add_u32 s{T1}, s{T1}, s{S_WAVE}
    s_lshl_b32 s{T1}, s{T1}, 8
    s_add_u32 s{T0}, s{T0}, s{T1}
    s_add_u32 s{T0}, s{T0}, {W_E2}
    v_and_b32 v5, 3, v1
    v_lshlrev_b32 v5, 16, v5
    v_lshrrev_b32 v6, 2, v1
    v_lshl_add_u32 v5, v6, 6, v5
    v_lshl_add_u32 v5, v2, 4, v5
    v_add_u32 v5, s{T0}, v5
    s_mov_b32 s{T1}, {fl(LOG2E / (128 ** 0.5))}
    v_mov_b32 v74, s{S_TAG}
    v_mov_b32 v75, s{S_TAG2}
    ''')
    C.wait(4, 4)
    for t in range(4):
        for ks in range(4):
            C(f'ds_read_b128 {vr(128+(t*4+ks)*4, 4)}, v{32+ks} offset:{4096*t}')
    C('s_waitcnt lgkmcnt(0)')
    C.signal(5)
    C('v_add_u32 v6, 0x10000, v4')
    loads = []
    for pp in range(2):
        for ks in range(4):
            for hf in range(2):
                r = (192 if pp else 96) + 8 * ks + 4 * hf
                loads.append(f'global_load_dwordx4 {vr(r, 4)}, v{6 if pp else 4}, {sp(P_WS)} offset:{512*ks + 16*hf} sc1')
    poll_loop(C, loads, [(98 + 4 * i, 99 + 4 * i) for i in range(8)] + [(194 + 4 * i, 195 + 4 * i) for i in range(8)])
    C.stamp(5)
    for pb in (96, 192):
        for ks in range(4):
            C(f'v_mov_b32 v{pb+2+8*ks}, v{pb+4+8*ks}\nv_mov_b32 v{pb+3+8*ks}, v{pb+5+8*ks}')
    C('s_nop 0')
    for pi, pb in enumerate((96, 192)):
        for ks in range(4):
            for t in range(4):
                c = '0' if (ks == 0 and pi == 0) else vr(28 + 4 * t, 4)
                C(f'v_mfma_f32_16x16x32_bf16 {vr(28+4*t, 4)}, {vr(128+(t*4+ks)*4, 4)}, {vr(pb+8*ks, 4)}, {c}')
    C('s_nop 4')
    for t in range(4):
        a_ = 28 + 4 * t
        C(f'''
        v_mul_f32 v{a_}, s{T1}, v{a_}
        v_mul_f32 v{a_+1}, s{T1}, v{a_+1}
        v_mul_f32 v{a_+2}, s{T1}, v{a_+2}
        v_mul_f32 v{a_+3}, s{T1}, v{a_+3}
        v_cvt_pk_bf16_f32 v{64+2*t}, v{a_}, v{a_+1}
        v_cvt_pk_bf16_f32 v{65+2*t}, v{a_+2}, v{a_+3}
        ''')
    C('v_mov_b32 v72, v64\nv_mov_b32 v73, v65\ns_nop 0')
    for t in range(1, 4):
        C(f'v_mov_b32_dpp v72, v{64+2*t} row_shr:{4*t} row_mask:0xf bank_mask:{hex(1<<t)}')
        C(f'v_mov_b32_dpp v73, v{65+2*t} row_shr:{4*t} row_mask:0xf bank_mask:{hex(1<<t)}')
    C(f'global_store_dwordx4 v5, v[72:75], {sp(P_WS)} sc1')
    C.signal(22)
    C.stamp(6)
    for p, sfx in ((FL, 'l'), (C, 'c')):
        p.label('L_tail_' + sfx)
        if p is FL and UKPF:
            lb = p.newl('pf'); l2 = p.newl('pf2')
            p(f'''
            s_cmp_lt_u32 s{S_J5}, 13
            s_cbranch_scc1 {lb}
            s_sub_u32 s{T2}, s{S_J5}, 13             ; 0,1,2
            s_cmp_eq_u32 s{T2}, 0
            s_cselect_b32 s{T3}, 1, 0
            s_cmp_eq_u32 s{T2}, 2
            s_cselect_b32 s{T3}, 2, s{T3}
            s_lshl_b32 s{T4}, s{S_XCD}, 2
            s_add_u32 s{T4}, s{T4}, s{T3}
            s_lshl_b32 s{T4}, s{T4}, 8
            s_lshl_b32 s{T5}, s{S_LW}, 20
            s_add_u32 s{T4}, s{T4}, s{T5}
            s_lshl_b32 s{T5}, s{S_LW}, 15
            v_lshrrev_b32 v3, 4, v0
            v_and_b32 v4, 15, v0
            v_lshlrev_b32 v4, 4, v4
            v_lshl_add_u32 v8, v3, 13, v4
            ''')
            NTs = NT
            globals()['NT'] = PFPOL
            load_seq(p, P_WUK, T4, 4 * 8192, 32, [8], s_lds=T5, lds_const=0)
            p(f'''
            s_cmp_eq_u32 s{S_J5}, 13
            s_cbranch_scc1 {l2}
            s_lshl_b32 s{T4}, s{S_XCD}, 2
            s_add_u32 s{T4}, s{T4}, 3
            s_lshl_b32 s{T4}, s{T4}, 8
            s_sub_u32 s{T2}, s{S_J5}, 14
            s_lshl_b32 s{T2}, s{T2}, 21
            s_add_u32 s{T4}, s{T4}, s{T2}
            s_lshl_b32 s{T2}, s{S_LW}, 19
            s_add_u32 s{T4}, s{T4}, s{T2}
            s_lshl_b32 s{T5}, s{S_LW}, 14
            ''')
            load_seq(p, P_WUK, T4, 4 * 8192, 16, [8], s_lds=T5, lds_const=0)
            globals()['NT'] = NTs
            p.label(l2)
            p('s_waitcnt vmcnt(0)')
            p.label(lb)
        if p is FL and FTRIG:
            lb = p.newl('ft')
            p(f's_cmp_lt_u32 s{S_J5}, 8\ns_cbranch_scc1 {lb}')
            trig(p, W_E1 + 100 * 256, en=True)
            p.label(lb)
        p(f'''
        s_mul_i32 s{S_R}, s{S_XCD}, 5
        s_add_u32 s{S_R}, s{S_R}, s{S_J5}           ; j<5: P0n tile
        s_mul_i32 s{S_J}, s{S_XCD}, 7
        s_add_u32 s{S_J}, s{S_J}, s{S_J5}           ; j<7: j6
        s_cmp_lt_u32 s{S_J5}, 7
        s_cbranch_scc1 L_T6_{sfx}
        s_cmp_lt_u32 s{S_J5}, 8
        s_cbranch_scc1 L_fin
        s_sub_u32 s{S_R}, s{S_R}, 11                ; j>=11: unit5
        s_mul_i32 s{S_J}, s{S_XCD}, 3
        s_add_u32 s{S_J}, s{S_J}, s{S_J5}
        s_sub_u32 s{S_J}, s{S_J}, 8                 ; 8<=j<11: unit7
        s_cmp_lt_u32 s{S_J5}, 11
        s_cbranch_scc1 L_T7_{sfx}
        s_branch L_T5_{sfx}
        ''')
        p.label('L_T6_' + sfx)
        p(f's_cmp_ge_u32 s{S_J}, 54\ns_cbranch_scc1 L_fin')
    dma_voff(FL, 6, 128, 7680, 3, 4)
    dma_voff(FL, 5, 64, 3456, 3, 4)
    FL(f'''
    s_cmp_ge_u32 s{S_J5}, 5
    s_cbranch_scc1 L_F_no0n
    s_lshl_b32 s{T4}, s{S_R}, 7
    s_add_u32 s{T4}, s{T4}, {1280*2}
    s_mul_i32 s{T2}, s{S_LW}, {20*8*7680}
    s_add_u32 s{T4}, s{T4}, s{T2}
    s_mul_i32 s{T5}, s{S_LW}, 20480
    ''')
    load_seq(FL, P_WMOD, T4, 8 * 7680, 20, [6], s_lds=T5, lds_const=L_WMN)
    FL('s_waitcnt vmcnt(0)'); FL.signal(18); FL.stamp(3)
    FL.wait(19, 4, sleep=1)
    FL.label('L_F_no0n')
    FL(f'''
    s_lshl_b32 s{T4}, s{S_J}, 6
    s_and_b32 s{T2}, s{S_LW}, 1
    s_mul_i32 s{T2}, s{T2}, {20*16*3456}
    s_add_u32 s{T4}, s{T4}, s{T2}
    s_cmp_ge_u32 s{S_LW}, 2
    s_cselect_b32 s{S_CB}, s{P_WU}, s{P_WG}
    s_cselect_b32 s{S_CB+1}, s{P_WU+1}, s{P_WG+1}
    s_mul_i32 s{T5}, s{S_LW}, 20480
    ''')
    load_seq(FL, S_CB, T4, 16 * 3456, 20, [5], s_lds=T5, lds_const=L_WG6)
    FL('s_waitcnt vmcnt(0)'); FL.signal(13); FL.stamp(5)
    FL('s_branch L_fin')
    FL.label('L_T5_l')
    dma_voff(FL, 5, 64, 1280, 3, 4)
    FL(f'''
    s_lshr_b32 s{T4}, s{S_R}, 1
    s_lshl_b32 s{T4}, s{T4}, 6
    s_and_b32 s{T2}, s{S_R}, 1
    s_mul_i32 s{T2}, s{T2}, {2048*1280}
    s_add_u32 s{T4}, s{T4}, s{T2}
    s_mul_i32 s{T2}, s{S_LW}, {512*1280}
    s_add_u32 s{T4}, s{T4}, s{T2}
    s_lshl_b32 s{T5}, s{S_LW}, 15
    ''')
    load_seq(FL, P_WO, T4, 16 * 1280, 32, [5], s_lds=T5, lds_const=L_WO)
    FL('s_waitcnt vmcnt(0)'); FL.signal(10); FL.stamp(4)
    FL('s_branch L_fin')
    FL.label('L_T7_l')
    FL(f's_cmp_ge_u32 s{S_J}, 20\ns_cbranch_scc1 L_fin')
    dma_voff(FL, 5, 64, 1280, 3, 4)
    FL(f'''
    s_lshl_b32 s{T4}, s{S_J}, 6
    s_mul_i32 s{T2}, s{S_LW}, {27*16*1280}
    s_add_u32 s{T4}, s{T4}, s{T2}
    s_mul_i32 s{T5}, s{S_LW}, {27*1024}
    ''')
    load_seq(FL, P_WD, T4, 16 * 1280, 27, [5], s_lds=T5, lds_const=L_WD)
    FL('s_waitcnt vmcnt(0)'); FL.signal(10); FL.stamp(4)
    FL('s_branch L_fin')
    C(f's_cmp_ge_u32 s{S_J5}, 5\ns_cbranch_scc1 L_B_no0n')
    C.wait(5, 4)
    p0tile(C, 1280 * 16, S_R, 18, 19)
    C.label('L_B_no0n')
    C(f's_mov_b32 s{T0}, 0')
    aaddr(C, 8, L_ACT, ACTP, T0, 9)
    CA = C
    L_A12 = 98304; A12P = ACTP
    CA(f'''
    v_add_u32 v5, 512, v3
    v_min_u32 v5, 639, v5
    v_lshlrev_b32 v4, 4, v3
    v_lshlrev_b32 v6, 4, v5
    v_add_u32 v7, 4096, v4
    v_lshlrev_b32 v10, 1, v3
    v_lshlrev_b32 v11, 1, v5
    v_add_u32 v12, 512, v10
    ''')
    for b_ in range(4):
        CA(f'global_load_ushort v{108+b_}, v10, {sp(P_X)} offset:{1280*b_}')
        CA(f'global_load_ushort v{112+b_}, v12, {sp(P_X)} offset:{1280*b_}')
        CA(f'global_load_ushort v{116+b_}, v11, {sp(P_X)} offset:{1280*b_}')
    CA(f'''
    v_add_u32 v12, {W_E0}, v4
    v_add_u32 v13, {W_E0}, v7
    v_add_u32 v14, {W_E0}, v6
    ''')
    loads = []; checks = []
    for k, base in enumerate((1280, 1920, 2560)):
        for ci in range(3):
            CA(f'v_add_u32 v{200+3*k+ci}, {base*16}, v{12+ci}')
            r = 160 + 12 * k + 4 * ci
            loads.append(f'global_load_dwordx4 v[{r}:{r+3}], v{200+3*k+ci}, {sp(P_WS)} sc1')
            checks += [(r + 2, r + 3)]
    poll_loop(CA, loads, checks)
    CA(f'''
    v_add_u32 v12, {W_E5}, v4
    v_add_u32 v13, {W_E5}, v7
    v_add_u32 v14, {W_E5}, v6
    v_add_u32 v15, {640*16}, v12
    v_add_u32 v16, {640*16}, v13
    v_add_u32 v17, {640*16}, v14
    ''')
    permaddr(CA, 20, 3, 56, 57); CA(f'v_add_u32 v20, {L_A12}, v20')
    permaddr(CA, 21, 5, 56, 57); CA(f'v_add_u32 v21, {L_A12}, v21')
    for ci, (ar, off) in enumerate([(20, 0), (20, 512), (21, 0)]):
        for b_ in range(4): CA(f'v_lshlrev_b32 v{108+4*ci+b_}, 16, v{108+4*ci+b_}')
        for half in range(2):
            o = 4 * ci + 2 * half
            unpack(CA, 120 + o, 121 + o, 160 + 4 * ci + half)
            unpack(CA, 96 + o, 97 + o, 184 + 4 * ci + half)
            CA(f'''
            v_add_f32 v{96+o}, 1.0, v{96+o}
            v_add_f32 v{97+o}, 1.0, v{97+o}
            v_cvt_pk_bf16_f32 v90, v{96+o}, v{97+o}
            ds_write_b16 v{ar}, v90 offset:{off + (4+2*half)*A12P}
            ds_write_b16_d16_hi v{ar}, v90 offset:{off + (5+2*half)*A12P}
            ds_write_b16 v{ar}, v{172+4*ci+half} offset:{off + (8+2*half)*A12P}
            ds_write_b16_d16_hi v{ar}, v{172+4*ci+half} offset:{off + (9+2*half)*A12P}
            ''')
            unpack(CA, 96 + o, 97 + o, 90)
    CA(f's_and_b32 s{T4}, s{S_WAVE}, 1')
    trpat(CA, 10, 64, T4, 18, 19)
    CA(f'''
    s_lshr_b32 s{T0}, s{S_WAVE}, 1
    s_mul_i32 s{T0}, s{T0}, 40960
    v_add_u32 v10, s{T0}, v10
    s_lshl_b32 s{T0}, s{S_WAVE}, 5
    s_add_u32 s{T0}, s{T0}, {L_RED}
    v_mov_b32 v18, s{T0}
    v_and_b32 v19, 3, v1
    v_lshlrev_b32 v19, 2, v19
    v_add_u32 v19, {L_RED}, v19
    v_cmp_gt_u32 vcc, 128, v3
    s_and_b32 s{T0}, s{S_WAVE}, 1
    s_lshl_b32 s{T1}, s{T0}, 10
    s_add_u32 s{T1}, s{T1}, {L_RED4}
    v_lshl_add_u32 v22, v0, 4, s{T1}
    s_lshl_b32 s{T1}, s{S_J}, 1
    s_add_u32 s{T0}, s{T0}, s{T1}
    s_lshl_b32 s{T0}, s{T0}, 8
    s_add_u32 s{T0}, s{T0}, {W_E6}
    v_lshlrev_b32 v23, 6, v1
    v_lshl_add_u32 v23, v2, 4, v23
    v_add_u32 v23, s{T0}, v23
    s_mov_b64 {sp(S_M)}, vcc
    v_cmp_gt_u32 vcc, 12, v1
    v_and_b32 v24, 3, v1
    s_nop 0
    v_cndmask_b32 v24, v24, v1, vcc
    v_mul_u32_u24 v8, {A12P}, v24
    v_lshlrev_b32 v24, 4, v2
    v_add_u32 v8, v8, v24
    v_add_u32 v8, {L_A12}, v8
    ''')
    CA.wait(13, 4, sleep=1)
    prewt(CA, 20, 10, 2048, 1024, 160)
    loads = [f'global_load_dwordx4 v[{64+4*i}:{67+4*i}], v{12+i}, {sp(P_WS)} sc1' for i in range(6)]
    poll2(CA, loads, [(66 + 4 * i, 67 + 4 * i) for i in range(6)], -32)
    CA.stamp(14)
    for ci, (ar, off) in enumerate([(20, 0), (20, 512), (21, 0)]):
        for half in range(2):
            o = 4 * ci + 2 * half
            unpack(CA, 90, 91, 64 + 4 * ci + half)
            unpack(CA, 92, 93, 76 + 4 * ci + half)
            CA(f'''
            v_pk_add_f32 v[90:91], v[90:91], v[92:93]
            v_pk_fma_f32 v[90:91], v[90:91], v[{120+o}:{121+o}], v[{108+o}:{109+o}]
            v_cvt_pk_bf16_f32 v90, v90, v91
            ''')
            unpack(CA, 132 + o, 133 + o, 90)
            CA(f'''
            v_pk_mul_f32 v[90:91], v[{132+o}:{133+o}], v[{96+o}:{97+o}]
            v_cvt_pk_bf16_f32 v90, v90, v91
            ds_write_b16 v{ar}, v90 offset:{off + (2*half)*A12P}
            ds_write_b16_d16_hi v{ar}, v90 offset:{off + (2*half+1)*A12P}
            ''')
    CA.signal(14)
    for b_ in range(4):
        CA(f'''
        v_cndmask_b32 v90, 0, v{140+b_}, {sp(S_M)}
        v_add_f32 v{144+b_}, v{132+b_}, v{136+b_}
        v_add_f32 v{144+b_}, v{144+b_}, v90
        v_mul_f32 v{148+b_}, v{132+b_}, v{132+b_}
        v_fmac_f32 v{148+b_}, v{136+b_}, v{136+b_}
        v_fmac_f32 v{148+b_}, v90, v90
        ''')
    for m in ('quad_perm:[1,0,3,2]', 'quad_perm:[2,3,0,1]', 'row_half_mirror', 'row_mirror'):
        for r in range(8):
            CA('v_add_f32_dpp v%d, v%d, v%d %s row_mask:0xf bank_mask:0xf' % (144 + r, 144 + r, 144 + r, m))
    for r in range(8): CA(f'v_mov_b32 v{152+r}, v{144+r}')
    for r in range(8): CA(f'v_permlane16_swap_b32 v{144+r}, v{152+r}')
    for r in range(8): CA(f'v_add_f32 v{144+r}, v{144+r}, v{152+r}')
    for r in range(8): CA(f'v_mov_b32 v{152+r}, v{144+r}')
    for r in range(8): CA(f'v_permlane32_swap_b32 v{144+r}, v{152+r}')
    for r in range(8): CA(f'v_add_f32 v{144+r}, v{144+r}, v{152+r}')
    exec_set(CA, '1')
    CA('ds_write_b128 v18, v[144:147]\nds_write_b128 v18, v[148:151] offset:16')
    exec_restore(CA)
    CA.signal(12)
    CA.wait(14, 4)
    CA('s_waitcnt vmcnt(0)')
    gemv3(CA, 20, 8, 160, 64, ACC, swap=True)
    CA.wait(12, 4)
    for w in range(4):
        CA(f'ds_read_b32 v{144+w}, v19 offset:{32*w}')
        CA(f'ds_read_b32 v{148+w}, v19 offset:{32*w+16}')
    CA(f'''
    v_mov_b32_dpp v64, v28 row_shl:4 row_mask:0xf bank_mask:0xf
    v_mov_b32_dpp v65, v29 row_shl:4 row_mask:0xf bank_mask:0xf
    v_mov_b32_dpp v66, v30 row_shl:4 row_mask:0xf bank_mask:0xf
    v_mov_b32_dpp v67, v31 row_shl:4 row_mask:0xf bank_mask:0xf
    v_mov_b32_dpp v68, v28 row_shl:8 row_mask:0xf bank_mask:0xf
    v_mov_b32_dpp v69, v29 row_shl:8 row_mask:0xf bank_mask:0xf
    v_mov_b32_dpp v70, v30 row_shl:8 row_mask:0xf bank_mask:0xf
    v_mov_b32_dpp v71, v31 row_shl:8 row_mask:0xf bank_mask:0xf
    s_mov_b32 s{T1}, {fl(1.0/640)}
    s_waitcnt lgkmcnt(0)
    v_add_f32 v144, v144, v145
    v_add_f32 v146, v146, v147
    v_add_f32 v148, v148, v149
    v_add_f32 v150, v150, v151
    v_add_f32 v144, v144, v146
    v_add_f32 v148, v148, v150
    v_mul_f32 v144, s{T1}, v144              ; mean
    v_mul_f32 v148, s{T1}, v148
    v_fma_f32 v148, -v144, v144, v148
    v_add_f32 v148, {fl(1e-5)}, v148
    v_rsq_f32 v148, v148                     ; rstd
    ''')
    for r in range(4): CA(f'v_fma_f32 v{28+r}, -v144, v{64+r}, v{28+r}')
    for r in range(4): CA(f'v_fma_f32 v{28+r}, v{28+r}, v148, v{68+r}')
    lskip = CA.newl('p6w')
    CA(f'''
    s_cmp_lt_u32 s{S_WAVE}, 2
    s_cbranch_scc1 {lskip}
    ds_write_b128 v22, v[28:31]
    ''')
    CA.signal(15)
    CA('s_branch L_fin')
    CA.label(lskip)
    CA(f'''
    s_mov_b32 s{T0}, {fl(0.044715)}
    s_mov_b32 s{T1}, {fl(-2.0 * 0.7978845608028654 * LOG2E)}
    ''')
    for r in range(4): CA(f'v_mul_f32 v{70+r}, v{28+r}, v{28+r}')
    for r in range(4): CA(f'v_mul_f32 v{70+r}, s{T0}, v{70+r}')
    for r in range(4): CA(f'v_fma_f32 v{70+r}, v{70+r}, v{28+r}, v{28+r}')
    for r in range(4): CA(f'v_mul_f32 v{70+r}, s{T1}, v{70+r}')
    for r in range(4): CA(f'v_exp_f32 v{70+r}, v{70+r}')
    for r in range(4): CA(f'v_add_f32 v{70+r}, 1.0, v{70+r}')
    for r in range(4): CA(f'v_rcp_f32 v{70+r}, v{70+r}')
    for r in range(4): CA(f'v_mul_f32 v{28+r}, v{28+r}, v{70+r}')
    CA.wait(15, 6)
    CA('ds_read_b128 v[64:67], v22\ns_waitcnt lgkmcnt(0)')
    for r in range(4): CA(f'v_mul_f32 v{28+r}, v{28+r}, v{64+r}')
    exec_set(CA, sp(S_M4))
    store_granule(CA, 23)
    exec_restore(CA)
    CA.stamp(15)
    CA('s_branch L_fin')

    CB = Prog(stamps)
    CB.label('L_T5_c')
    red_regs(CB)
    tag_setup(CB)
    CB(f'''
    s_and_b32 s{S_K}, s{S_R}, 1
    s_lshl_b32 s{T0}, s{S_K}, 13
    s_add_u32 s{T0}, s{T0}, {W_E4}
    v_lshl_add_u32 v4, v3, 4, s{T0}
    v_add_u32 v5, 4096, v4
    ''')
    loads = []; checks = []
    for b in range(4):
        for hf in range(2):
            i = 2 * b + hf
            if b: CB(f'v_add_u32 v{10+i}, {16384*b}, v{4+hf}')
            else: CB(f'v_mov_b32 v{10+i}, v{4+hf}')
            loads.append(f'global_load_dwordx4 v[{64+4*i}:{67+4*i}], v{10+i}, {sp(P_WS)} sc1')
            checks += [(66 + 4 * i, 67 + 4 * i)]
    granaddr(CB, 20, 3, 22)
    CB(f'''
    v_add_u32 v20, {L_ACT5}, v20
    s_lshr_b32 s{T0}, s{S_WAVE}, 1
    s_lshl_b32 s{T0}, s{T0}, 11              ; kq*32*64
    ''')
    aaddr(CB, 8, L_ACT5, ACT5P, T0, 9)
    CB(f's_and_b32 s{T4}, s{S_WAVE}, 1')
    trpat(CB, 9, 64, T4, 18, 19)
    CB(f'''
    s_lshr_b32 s{T0}, s{S_WAVE}, 1
    s_lshl_b32 s{T0}, s{T0}, 16              ; kq*32*2048
    v_add_u32 v9, s{T0}, v9
    s_mul_i32 s{T0}, s{S_K}, 640
    s_lshr_b32 s{T1}, s{S_R}, 1
    s_lshl_b32 s{T1}, s{T1}, 5
    s_add_u32 s{T0}, s{T0}, s{T1}
    s_lshl_b32 s{T1}, s{T4}, 4
    s_add_u32 s{T0}, s{T0}, s{T1}
    s_lshl_b32 s{T0}, s{T0}, 4
    s_add_u32 s{T0}, s{T0}, {W_E5}
    v_lshl_add_u32 v21, v1, 4, s{T0}
    ''')
    CB.wait(10, 4, sleep=1)
    prewt(CB, 32, 9, 2048, 1024, 128)
    poll2(CB, loads, checks, 32)
    CB.stamp(11)
    for b in range(4):
        for hf in range(2):
            i = 2 * b + hf
            CB(f'ds_write_b64 v20, v[{64+4*i}:{65+4*i}] offset:{b*ACT5P + hf*2048}')
    CB.signal(11); CB.wait(11, 4)
    CB('s_waitcnt vmcnt(0)')
    CB.stamp(12)
    for hb in range(2):
        for i in range(16): CB('ds_read_b128 %s, v8 offset:%d' % (vr(64 + 4 * i, 4), (16 * hb + i) * 64))
        for i in range(16):
            CB('s_waitcnt lgkmcnt(%d)' % min(15, 15 - i))
            c = '0' if (hb == 0 and i == 0) else vr(ACC, 4)
            CB('v_mfma_f32_16x16x32_bf16 %s, %s, %s, %s' % (vr(ACC, 4), vr(64 + 4 * i, 4), vr(128 + 4 * (16 * hb + i), 4), c))
    pair_reduce(CB, 12, 'L_fin')
    exec_set(CB, '0xffff')
    store_granule(CB, 21)
    exec_restore(CB)
    CB.stamp(13)
    CB('s_branch L_fin')
    CC = Prog(stamps)
    CC.label('L_T7_c')
    CC(f's_cmp_ge_u32 s{S_J}, 20\ns_cbranch_scc1 L_fin')
    red_regs(CC)
    tag_setup(CC)
    CC(f'''
    s_lshl_b32 s{T0}, s{S_J}, 5
    s_and_b32 s{T4}, s{S_WAVE}, 1
    s_lshl_b32 s{T1}, s{T4}, 4
    s_add_u32 s{T0}, s{T0}, s{T1}
    v_add_u32 v5, s{T0}, v1                  ; col
    v_lshlrev_b32 v19, 1, v5
    ''')
    for b in range(4): CC(f'global_load_ushort v{96+b}, v19, {sp(P_X)} offset:{1280*b}')
    CC(f'''
    v_lshlrev_b32 v4, 4, v5
    v_add_u32 v11, {W_E0 + 1280*16}, v4
    v_add_u32 v12, {W_E0 + 3200*16}, v4
    v_add_u32 v13, {W_E5}, v4
    v_add_u32 v14, {W_E5 + 640*16}, v4
    v_add_u32 v5, 256, v3
    v_min_u32 v5, 431, v5
    v_lshrrev_b32 v4, 2, v3
    v_lshlrev_b32 v4, 8, v4
    v_and_b32 v6, 3, v3
    v_lshl_add_u32 v4, v6, 4, v4
    v_add_u32 v4, {W_E6}, v4
    v_lshrrev_b32 v6, 2, v5
    v_lshlrev_b32 v6, 8, v6
    v_and_b32 v7, 3, v5
    v_lshl_add_u32 v6, v7, 4, v6
    v_add_u32 v6, {W_E6}, v6
    ''')
    granaddr(CC, 20, 3, 22); CC(f'v_add_u32 v20, {L_ACT7}, v20')
    granaddr(CC, 21, 5, 22); CC(f'v_add_u32 v21, {L_ACT7}, v21')
    CC(f'''
    s_lshr_b32 s{T0}, s{S_WAVE}, 1
    s_mul_i32 s{T0}, s{T0}, {27*64}
    ''')
    aaddr(CC, 8, L_ACT7, ACT7P, T0, 9)
    trpat(CC, 9, 64, T4, 16, 17)
    CC(f'''
    s_lshr_b32 s{T0}, s{S_WAVE}, 1
    s_mul_i32 s{T0}, s{T0}, {27*2048}
    v_add_u32 v9, s{T0}, v9
    ''')
    CC.wait(10, 4, sleep=1)
    prewt(CC, 27, 9, 2048, 1024, 128)
    poll_loop(CC, [f'global_load_dwordx4 v[108:111], v11, {sp(P_WS)} sc1', f'global_load_dwordx4 v[240:243], v12, {sp(P_WS)} sc1',
                   f'global_load_dwordx4 v[116:119], v13, {sp(P_WS)} sc1', f'global_load_dwordx4 v[120:123], v14, {sp(P_WS)} sc1'],
              [(110, 111), (242, 243), (118, 119), (122, 123)])
    for half in range(2):
        unpack(CC, 90, 91, 116 + half)
        unpack(CC, 92, 93, 120 + half)
        unpack(CC, 94, 95, 108 + half)
        CC(f'''
        v_add_f32 v90, v90, v92
        v_add_f32 v91, v91, v93
        v_lshlrev_b32 v92, 16, v{96+2*half}
        v_lshlrev_b32 v93, 16, v{97+2*half}
        v_fma_f32 v90, v90, v94, v92
        v_fma_f32 v91, v91, v95, v93
        v_cvt_pk_bf16_f32 v90, v90, v91
        ''')
        unpack(CC, 40 + 2 * half, 41 + 2 * half, 90)
        unpack(CC, 44 + 2 * half, 45 + 2 * half, 240 + half)
    loads = []; checks = []
    for b in range(4):
        for hf in range(2):
            i = 2 * b + hf
            loads.append(f'global_load_dwordx4 v[{64+4*i}:{67+4*i}], v{4 if hf == 0 else 6}, {sp(P_WS)} offset:{64*b} sc1')
            checks += [(66 + 4 * i, 67 + 4 * i)]
    poll2(CC, loads, checks, 32)
    CC.stamp(11)
    for b in range(4):
        CC(f'ds_write_b64 v20, v[{64+8*b}:{65+8*b}] offset:{b*ACT7P}')
        CC(f'ds_write_b64 v21, v[{68+8*b}:{69+8*b}] offset:{b*ACT7P}')
    CC.signal(11); CC.wait(11, 4)
    CC('s_waitcnt vmcnt(0)')
    CC.stamp(12)
    for (s0, n) in ((0, 14), (14, 13)):
        for i in range(n): CC('ds_read_b128 %s, v8 offset:%d' % (vr(64 + 4 * i, 4), (s0 + i) * 64))
        for i in range(n):
            CC('s_waitcnt lgkmcnt(%d)' % min(15, n - 1 - i))
            c = '0' if (s0 == 0 and i == 0) else vr(ACC, 4)
            CC('v_mfma_f32_16x16x32_bf16 %s, %s, %s, %s' % (vr(ACC, 4), vr(64 + 4 * i, 4), vr(128 + 4 * (s0 + i), 4), c))
    pair_reduce(CC, 12, 'L_fin')
    exec_set(CC, '0xffff')
    CC(f'''
    v_pk_fma_f32 v[28:29], v[28:29], v[44:45], v[40:41]
    v_pk_fma_f32 v[30:31], v[30:31], v[46:47], v[42:43]
    v_cvt_pk_bf16_f32 v64, v28, v29
    v_cvt_pk_bf16_f32 v65, v30, v31
    global_store_short v19, v64, {sp(P_OUT)}
    global_store_short_d16_hi v19, v64, {sp(P_OUT)} offset:1280
    global_store_short v19, v65, {sp(P_OUT)} offset:2560
    global_store_short_d16_hi v19, v65, {sp(P_OUT)} offset:3840
    ''')
    exec_restore(CC)
    lskip = CC.newl('p7f')
    CC(f'''
    s_cmp_lg_u32 s{S_J}, 0
    s_cbranch_scc1 {lskip}
    s_cmp_lg_u32 s{S_WAVE}, 0
    s_cbranch_scc1 {lskip}
    v_mov_b32 v4, 0
    v_mov_b32 v5, s{S_TAG}
    ''')
    exec_set(CC, '1')
    CC(f'global_store_dword v4, v5, {sp(P_WS)} sc1')
    exec_restore(CC)
    CC.label(lskip)
    CC.stamp(13)
    F = Prog(stamps)
    F.label('L_fin')
    if stamps:
        F(f'''
        s_memrealtime {sp(S_STAMP + 2*15)}
        s_waitcnt lgkmcnt(0)
        s_lshl_b32 s{T0}, s2, 10
        s_lshl_b32 s{T1}, s{S_WAVE}, 7
        s_add_u32 s{T0}, s{T0}, s{T1}
        s_add_u32 s{T0}, s{T0}, {W_STAMP}
        v_mov_b32 v4, s{T0}
        s_mov_b64 exec, 1
        ''')
        for i in range(16):
            F(f'v_mov_b32 v5, s{S_STAMP+2*i}\nglobal_store_dword v4, v5, {sp(P_WS)} offset:{4*i}')
        if DBGOUT:
            sel = [(0, 0), (248, 0), (16 * 8, 3), (16 * 8, 4), (24 * 8, 5), (24 * 8, 6), (0, 7), (0, 9), (0, 10), (0, 11), (0, 13), (27 * 8, 13), (16 * 8, 14), (16 * 8, 15), (24 * 8, 13), (28 * 8, 2)]
            F(f's_cmp_lg_u32 s{S_WAVE}, 0\ns_cbranch_scc1 L_dbgdone\nv_mov_b32 v4, 0')
            for slot, (wg, si) in enumerate(sel):
                lab = F.newl('dg')
                F(f's_cmp_lg_u32 s2, {wg}\ns_cbranch_scc1 {lab}\nv_mov_b32 v5, s{S_STAMP+2*si}\nglobal_store_dword v4, v5, {sp(P_DBG)} offset:{4*slot}')
                F.label(lab)
            F.label('L_dbgdone')
    F('s_endpgm')
    body = (H.text() + FL.text() + FC.text() + AL.text() + AC.text() + CB.text() + CC.text() + F.text() + 'L_codeend:\n') if ORDER else (H.text() + AC.text() + FC.text() + CB.text() + CC.text() + F.text() + AL.text() + FL.text() + 'L_codeend:\n')
    return body

HEADER = open('adaLN_cond__compressed_kv_cla__glu_gated_geglu__decode.s.ref').read().split('; @launch')[0]

def full(stamps=False):
    body = gen(stamps)
    return (HEADER + f'; @launch grid=(256,1,1) block=(512,1,1) lds={LDS_BYTES}\n' +
            f'''.amdgcn_target "amdgcn-amd-amdhsa--gfx950"
.text
.globl {NAME}
.p2align 8
.type {NAME},@function
{NAME}:
{body}L_end:
    s_endpgm
.section .rodata,"a"
.p2align 6
.amdhsa_kernel {NAME}
  .amdhsa_next_free_vgpr 256
  .amdhsa_next_free_sgpr 102
  .amdhsa_accum_offset 256
  .amdhsa_group_segment_fixed_size 0
  .amdhsa_kernarg_size 120
  .amdhsa_user_sgpr_count 2
  .amdhsa_user_sgpr_kernarg_segment_ptr 1
  .amdhsa_system_sgpr_workgroup_id_x 1
.end_amdhsa_kernel
''')

if __name__ == '__main__':
    stamps = len(sys.argv) > 2 and sys.argv[2] == 'stamps'
    open(sys.argv[1], 'w').write(full(stamps))
```

```python
import sys, importlib
from h import *
import gen as G
asm = open(sys.argv[1]).read()
full = cl.with_harness_metadata(asm, G.NAME, 15, launch_lists=True)
open('_s.s', 'w').write(full)
r = subprocess.run(['clang', '-x', 'assembler', '-target', 'amdgcn-amd-amdhsa', '-mcpu=gfx950', '_s.s', '-o', '_s.co'], capture_output=True, text=True)
assert r.returncode == 0, r.stderr
if torch is None: raise SystemExit(0)
mod = importlib.import_module('adaLN_cond__compressed_kv_cla__glu_gated_geglu__decode_np')
k = cl.AsmKernel('_s.co', G.NAME)
order = ['A_x', 'A_c_kv', 'A_w_q', 'A_w_uk', 'A_w_uv', 'A_w_o', 'B_x', 'B_w_gate', 'B_w_up', 'B_w_down', 'c', 'w_mod']
ws = torch.zeros(256 << 20, dtype=torch.uint8, device='cuda')
big = torch.zeros(300 << 20, dtype=torch.uint8, device='cuda')
out = torch.zeros(4 * 640 + 64, dtype=torch.bfloat16, device='cuda')
dbg = torch.zeros(64, dtype=torch.int32, device='cuda')
worst = 0
for seed in range(4):
    np.random.seed(seed); torch.manual_seed(seed)
    inp = mod.setup_inputs()
    ref = mod.reference(**inp).float().reshape(-1)
    dev = {k2: v.cuda().contiguous() for k2, v in inp.items()}
    ka = args(*[dev[n].data_ptr() for n in order], out.data_ptr(), dbg.data_ptr(), ws.data_ptr())
    first = None; nbad = 0
    for it in range(120):
        m = it % 6
        if m == 0: ws.random_(0, 255)
        elif m == 1: ws.fill_(0xFF)
        elif m == 2: ws.zero_()
        elif m == 3: big.fill_(it & 255)
        out.fill_(float('nan')); out[2560:] = 7.0
        extra = it % 9
        numbering = (it // 3) % 3
        torch.cuda.synchronize()
        k.launch((256 + extra, 1, 1), (512, 1, 1), ka, G.LDS_BYTES, numbering=numbering)
        if it % 2: k.launch((256 + extra, 1, 1), (512, 1, 1), ka, G.LDS_BYTES, numbering=numbering)
        sync()
        o = out.float().cpu()
        assert (o[2560:] == 7.0).all()
        o = o[:2560]
        if first is None: first = o.clone()
        d = (o - first).abs().max().item()
        if not (d == 0): nbad += 1; print('seed', seed, 'iter', it, 'diff vs first', d, 'nan', torch.isnan(o).any().item())
    rel = ((first - ref).norm() / ref.norm()).item()
    print('seed', seed, 'rel err vs ref %.4f' % rel, 'mismatching launches', nbad)
```
